```python
import torch

def _softmax(x, axis=-1):
    return torch.softmax(x, dim=axis)
def _gelu(x):
    return torch.nn.functional.gelu(x, approximate="tanh")
def _silu(x):
    return torch.nn.functional.silu(x)
def _sigmoid(x):
    return torch.sigmoid(x)
def _layernorm(x, axis=-1, eps=1e-5):
    m = x.mean(dim=axis, keepdim=True)
    v = x.var(dim=axis, keepdim=True, unbiased=False)
    return (x - m) / torch.sqrt(v + eps)
def _scatter_add(tgt, idx, src, axis=0):
    return tgt.clone().index_add_(axis, idx, src)
def _segment_sum(src, seg, n):
    out = torch.zeros((n,) + src.shape[1:], dtype=src.dtype)
    return out.index_add_(0, seg, src)
def _pad(x, pw):
    flat = tuple(v for pair in reversed(pw) for v in pair)
    return torch.nn.functional.pad(x, flat)

kernel_name = 'standalone__dense_activation_silu__sampling'

def setup_inputs():

    _w = (lambda a: (lambda t: t.to(torch.bfloat16) if t.is_floating_point() else t)(torch.as_tensor(a)))
    B, S, D, F = 16, 32, 576, 4608
    return {
        "x": _w((lambda *s: torch.randn(*s, dtype=torch.bfloat16) * 0.1)(B, S, D)),
        "w1": _w((lambda *s: torch.randn(*s, dtype=torch.bfloat16) * 3.2)(D, F) * (D ** -0.5)),
        "w2": _w((lambda *s: torch.randn(*s, dtype=torch.bfloat16) * 3.2)(F, D) * (F ** -0.5)),
    }

def reference(x, w1, w2):
    h = torch.einsum("bsd,df->bsf", x, w1)
    h = _silu(h)
    out = torch.einsum("bsf,fd->bsd", h, w2)
    return out
```

```python
import re

REG = re.compile(r"\b([vas])\[(\d+):(\d+)\]|\b([vas])(\d+)\b")
def regs(tok):
    out = set()
    for m in REG.finditer(tok):
        if m.group(1):
            for i in range(int(m.group(2)), int(m.group(3)) + 1): out.add(m.group(1) + str(i))
        else:
            out.add(m.group(4) + m.group(5))
    for sp in ("vcc", "exec", "m0"):
        if re.search(r"\b%s\b" % sp, tok): out.add(sp)
    return out

TRANS = ("v_exp_f32", "v_log_f32", "v_rcp_f32", "v_rsq_f32", "v_sqrt_f32", "v_sin_f32", "v_cos_f32")

def parse(line):
    line = line.split(";")[0].strip()
    if not line or line.endswith(":") or line.startswith("."): return None
    parts = line.split(None, 1)
    mn = parts[0]
    ops = [o.strip() for o in parts[1].split(",")] if len(parts) > 1 else []
    d = dict(mn=mn, ops=ops, line=line, w=set(), r=set())
    if mn.startswith("v_mfma"):
        d["cls"] = "mfma"; d["w"] = regs(ops[0]); d["ab"] = regs(ops[1]) | regs(ops[2]); d["c"] = regs(ops[3]); d["r"] = d["ab"] | d["c"]
        d["passes"] = 8 if "32x32x16" in mn else 4
    elif mn.startswith("v_cmp"):
        d["cls"] = "valu"; d["w"] = regs(ops[0]); d["r"] = set().union(*[regs(o) for o in ops[1:]])
    elif mn.startswith("v_readfirstlane") or mn.startswith("v_readlane"):
        d["cls"] = "valu"; d["lane"] = True; d["w"] = regs(ops[0]); d["r"] = set().union(*[regs(o) for o in ops[1:]])
    elif mn.startswith("v_permlane"):
        d["cls"] = "valu"; d["w"] = regs(ops[0]) | regs(ops[1]); d["r"] = set(d["w"]); d["perm"] = True
    elif mn.startswith("v_"):
        d["cls"] = "valu"; d["w"] = regs(ops[0]); d["r"] = set().union(*[regs(o) for o in ops[1:]]) if len(ops) > 1 else set()
        if mn.startswith("v_cndmask") and len(ops) == 4: d["mask"] = regs(ops[3])
        if mn.startswith("v_fmac"): d["r"] |= d["w"]
        if "_co_" in mn: d["w"] |= regs(ops[1])
        d["trans"] = any(mn.startswith(t) for t in TRANS)
    elif mn.startswith("ds_read"):
        d["cls"] = "ds"; d["w"] = regs(ops[0]); d["r"] = regs(ops[1].split()[0])
    elif mn.startswith("ds_write"):
        d["cls"] = "ds"; d["r"] = set().union(*[regs(o.split()[0]) for o in ops])
    elif mn.startswith("buffer_load") or mn.startswith("global_load"):
        d["cls"] = "vmem"
        if " lds" in line and mn.startswith("buffer"):
            d["r"] = set().union(*[regs(o.split()[0]) for o in ops]) | {"m0"}; d["ldsdma"] = True
        else:
            d["w"] = regs(ops[0]); d["r"] = set().union(*[regs(o.split()[0]) for o in ops[1:]])
    elif mn.startswith("buffer_store") or mn.startswith("global_store"):
        d["cls"] = "vmem"; d["r"] = set().union(*[regs(o.split()[0]) for o in ops])
        d["wide"] = regs(ops[0] if mn.startswith("buffer") else ops[1]) if ("x4" in mn or "x3" in mn) else set()
    elif mn.startswith("buffer_inv") or mn.startswith("buffer_wb"):
        d["cls"] = "vmem"
    elif mn == "s_nop":
        d["cls"] = "nop"; d["n"] = int(ops[0], 0) + 1
    elif mn.startswith("s_"):
        d["cls"] = "salu"
        if mn.startswith(("s_cmp", "s_waitcnt", "s_barrier", "s_cbranch", "s_branch", "s_endpgm", "s_setprio", "s_sleep", "s_bitcmp")):
            d["r"] = set().union(*[regs(o) for o in ops]) if ops else set()
        else:
            d["w"] = regs(ops[0]); d["r"] = set().union(*[regs(o) for o in ops[1:]]) if len(ops) > 1 else set()
    else:
        raise Exception("unknown instr: " + line)
    return d

def check(text, verbose=True):
    ins = [p for p in (parse(l) for l in text.splitlines()) if p]
    problems = []
    for i, c in enumerate(ins):
        dist = 0
        j = i - 1
        while j >= 0 and dist < 20:
            p = ins[j]
            need = 0; why = ""
            if p["cls"] == "mfma":
                big = 12 if p["passes"] == 8 else 8
                if c["cls"] == "mfma":
                    if c["ab"] & p["w"]: need, why = big, "mfma D -> mfma A/B"
                    elif c["c"] & p["w"] and not (c["c"] == p["w"]): need, why = (10 if p["passes"] == 8 else 6), "mfma D -> partial C"
                elif c["cls"] in ("valu", "vmem", "ds"):
                    if (c["r"] | c["w"]) & p["w"]: need, why = big, "mfma D -> valu/vmem/ds"
                    if c["cls"] == "valu" and (c["w"] & p["c"]):
                        n2 = 7 if p["passes"] == 8 else 3
                        if n2 > need: need, why = n2, "mfma C WAR valu"
            elif p["cls"] == "valu":
                vw = {r for r in p["w"] if r[0] in "va" and r != "vcc"}
                sw = {r for r in p["w"] if r[0] == "s" or r == "vcc"}
                if c["cls"] == "mfma" and (c["r"] & vw): need, why = 2, "valu -> mfma"
                if c["cls"] == "valu" and p.get("trans") and not c.get("trans") and (c["r"] & vw): need, why = max(need, 1), "trans -> valu"
                if c["cls"] == "valu" and c.get("lane") and (c["r"] & vw): need, why = max(need, 1), "valu -> readlane"
                if c.get("perm") and (c["r"] & vw): need, why = max(need, 2), "valu -> permlane"
                if c["cls"] == "vmem" and (c["r"] & sw): need, why = 5, "valu sgpr -> vmem"
                if c["cls"] == "valu" and (c["r"] & sw): need, why = max(need, 2), "valu sgpr -> valu"
                if c["cls"] == "salu" and (c["r"] & sw): need, why = max(need, 1), "valu sgpr -> salu (pad)"
                if "exec" in p["w"] and c["cls"] == "mfma": need, why = 4, "valu exec -> mfma"
            elif p["cls"] == "salu":
                if "m0" in p["w"] and c.get("ldsdma"): need, why = 1, "m0 -> lds dma"
            elif p["cls"] == "vmem":
                if p.get("wide") and c["cls"] == "valu" and (c["w"] & p["wide"]): need, why = 2, "wide store WAR"
            if need > dist:
                problems.append((i, why, need, dist, p["line"], c["line"]))
            dist += p.get("n", 1)
            j -= 1
    if verbose:
        for pr in problems[:40]: print("HAZARD", pr)
    return problems
```

```python
import sys, os
sys.path.insert(0, os.path.dirname(__file__))
import hazard

KNAME = "standalone__dense_activation_silu__sampling_kernel"

NWG = 192
XH = 0
RING = 73728
UNIT = 8192
LDS_BYTES = 163840
WS_E, WS_HF, WS_PF, WS_H, WS_P, WS_ST = 0, 4096, 32768, 65536, 5242880, 16777216
WS_SIZE = 0x10000000
TAGC_LO, TAGC_HI = 0x7F4A7C15, 0x9E3779B9
SPIN_MAX = 20000

class Opt:
    stamps = False
    LA = 5
    DRAIN = 2
    ep_rate = 3
    flag1_step = 9
    flag2_step = 11
    prefetch_code = True
    prio = 0
    code_bytes = 12288

class E:
    def __init__(self): self.L = []
    def __call__(self, s):
        for l in s.split("\n"):
            l = l.strip()
            if l: self.L.append(l)
    def text(self): return "\n".join(self.L)

def vr(a, n=1): return f"v{a}" if n == 1 else f"v[{a}:{a+n-1}]"
def sr(a, n=1): return f"s{a}" if n == 1 else f"s[{a}:{a+n-1}]"

S_X, S_W1, S_W2, S_OUT, S_WS = 4, 6, 8, 10, 12
S_J, S_MT, S_G, S_WAVE, S_CU, S_LW = 14, 15, 16, 17, 18, 19
S_TAG = 20
S_T0, S_T1 = 22, 23
SRD_A, SRD_B, SRD_C = 24, 28, 32
SRD_WS, SRD_OUT = 36, 40
S_G1, S_G2 = 44, 45
S_CNT = 46
S_STAMP = 64

def srd(e, d, base, size):
    e(f"s_mov_b32 s{d}, s{base}\ns_and_b32 s{d+1}, s{base+1}, 0xffff\ns_mov_b32 s{d+2}, {size}\ns_mov_b32 s{d+3}, 0x20000")

def prologue(e, o):
    e(f"""
    s_cmp_ge_u32 s2, {NWG}
    s_cbranch_scc1 L_end
    s_load_dwordx4 s[4:7], s[0:1], 0
    s_load_dwordx4 s[8:11], s[0:1], 16
    s_load_dwordx2 s[12:13], s[0:1], 40
    """)
    if o.stamps:
        e(f"s_memrealtime s[{S_STAMP}:{S_STAMP+1}]\ns_memtime s[{S_STAMP+2}:{S_STAMP+3}]")
    e(f"""
    v_lshrrev_b32 v1, 6, v0
    s_and_b32 s{S_J}, s2, 7
    s_lshr_b32 s3, s2, 3
    v_readfirstlane_b32 s{S_WAVE}, v1
    s_mul_i32 s{S_MT}, s3, 171
    s_lshr_b32 s{S_MT}, s{S_MT}, 9
    s_mul_i32 s{S_G}, s{S_MT}, 3
    s_sub_u32 s{S_G}, s3, s{S_G}
    s_lshl_b32 s{S_CU}, s{S_J}, 3
    s_add_u32 s{S_CU}, s{S_CU}, s{S_MT}
    s_mul_i32 s{S_CU}, s{S_CU}, 3
    s_add_u32 s{S_CU}, s{S_CU}, s{S_G}
    v_and_b32 v0, 63, v0
    s_lshl_b32 s3, s{S_MT}, 7
    s_waitcnt lgkmcnt(0)
    s_load_dwordx2 s[{S_TAG}:{S_TAG+1}], s[{S_WS}:{S_WS+1}], s3
    """)
    srd(e, SRD_WS, S_WS, WS_SIZE)
    srd(e, SRD_OUT, S_OUT, 512*576*2)
    e(f"""
    s_add_u32 s{S_G1}, s{S_G}, 1
    s_cmp_eq_u32 s{S_G1}, 3
    s_cselect_b32 s{S_G1}, 0, s{S_G1}
    s_add_u32 s{S_G2}, s{S_G1}, 1
    s_cmp_eq_u32 s{S_G2}, 3
    s_cselect_b32 s{S_G2}, 0, s{S_G2}
    s_cmp_lt_u32 s{S_WAVE}, 4
    s_cbranch_scc1 L_compute
    s_cmp_eq_u32 s{S_WAVE}, 7
    s_cbranch_scc1 L_control
    """)

def finish_tag(e):
    e(f"""
    s_waitcnt lgkmcnt(0)
    s_add_u32 s{S_TAG}, s{S_TAG}, {TAGC_LO:#x}
    s_addc_u32 s{S_TAG+1}, s{S_TAG+1}, {TAGC_HI:#x}
    """)

def dma_unit(e, srd_r, vpats, s_off, s_step, ldsconst, s_ldsbase, s_1k, flags=""):
    if s_ldsbase is None: e(f"s_mov_b32 m0, {ldsconst}")
    else: e(f"s_add_u32 m0, s{s_ldsbase}, {ldsconst}")
    e("s_nop 0")
    for i8 in range(8):
        if i8:
            e(f"s_add_u32 m0, m0, s{s_1k}\ns_add_u32 s{s_off}, s{s_off}, s{s_step}")
        e(f"buffer_load_dwordx4 v{vpats[i8 % len(vpats)]}, s[{srd_r}:{srd_r+3}], s{s_off} offen {flags} lds")

def loader(e, o):
    V_W1, V_W2, V_XE, V_XO = 8, 9, 10, 11
    S_C = [48, 49, 50]
    S_XO = [51, 52, 53]
    S_WO = [54, 55, 56]
    S_GB = [57, 58, 59]
    S_OFF, S_1K, S_ST1, S_ST2, S_LB = 60, 61, 62, 63, 47
    e("L_loader:")
    e(f"s_sub_u32 s{S_LW}, s{S_WAVE}, 4")
    srd(e, SRD_A, S_X, 512*576*2)
    srd(e, SRD_B, S_W1, 576*4608*2)
    srd(e, SRD_C, S_W2, 576*4608*2)
    e(f"""
    v_lshrrev_b32 v1, 3, v0
    v_and_b32 v2, 7, v0
    v_and_b32 v3, 2, v1
    v_lshlrev_b32 v3, 1, v3
    v_xor_b32 v3, v2, v3
    v_lshlrev_b32 v3, 4, v3
    v_mul_u32_u24 v4, 9216, v1
    v_mul_u32_u24 v5, 1152, v1
    v_add_u32 v{V_W1}, v4, v3
    v_add_u32 v{V_W2}, v5, v3
    v_lshrrev_b32 v6, 1, v1
    v_xor_b32 v6, v2, v6
    v_lshlrev_b32 v7, 4, v6
    v_add_u32 v{V_XE}, v5, v7
    v_xor_b32 v7, 64, v7
    v_add_u32 v{V_XO}, v5, v7
    """)
    e(f"""
    s_mul_i32 s{S_T0}, s{S_G}, 3
    s_add_u32 s{S_T0}, s{S_T0}, s{S_MT}
    s_add_u32 s{S_T0}, s{S_T0}, s{S_LW}
    s_cmp_ge_u32 s{S_T0}, 9
    s_cselect_b32 s{S_T1}, 9, 0
    s_sub_u32 s{S_C[0]}, s{S_T0}, s{S_T1}
    """)
    for k in (1, 2):
        e(f"""
        s_add_u32 s{S_T0}, s{S_C[k-1]}, 3
        s_cmp_ge_u32 s{S_T0}, 9
        s_cselect_b32 s{S_T1}, 9, 0
        s_sub_u32 s{S_C[k]}, s{S_T0}, s{S_T1}
        """)
    e(f"""
    s_mul_i32 s{S_T0}, s{S_MT}, {64*1152}
    s_mul_i32 s{S_T1}, s{S_J}, 1152
    s_mul_i32 s3, s{S_G}, 384
    s_add_u32 s{S_T1}, s{S_T1}, s3
    """)
    for k in range(3):
        e(f"""
        s_lshl_b32 s3, s{S_C[k]}, 7
        s_add_u32 s{S_XO[k]}, s{S_T0}, s3
        s_mul_i32 s3, s{S_C[k]}, {64*9216}
        s_add_u32 s{S_WO[k]}, s{S_T1}, s3
        """)
    e(f"""
    s_mul_i32 s{S_T0}, s{S_J}, {576*1152}
    s_mul_i32 s{S_T1}, s{S_G}, 384
    s_add_u32 s{S_T0}, s{S_T0}, s{S_T1}
    s_lshl_b32 s{S_T1}, s{S_LW}, 7
    s_add_u32 s{S_T0}, s{S_T0}, s{S_T1}
    """)
    for k, sg in enumerate((S_G, S_G1, S_G2)):
        e(f"s_mul_i32 s3, s{sg}, {192*1152}\ns_add_u32 s{S_GB[k]}, s{S_T0}, s3")
    e(f"""
    s_mov_b32 s{S_1K}, 1024
    s_mov_b32 s{S_ST1}, {8*9216}
    s_mov_b32 s{S_ST2}, {8*1152}
    s_lshl_b32 s{S_LB}, s{S_LW}, 13
    """)
    def issue_w(st):
        if st < 9:
            s, t = st // 3, st % 3
            e(f"s_add_u32 s{S_OFF}, s{S_WO[t]}, {128*s}")
            dma_unit(e, SRD_B, [V_W1], S_OFF, S_ST1, RING + t * 3 * UNIT, S_LB, S_1K)
        else:
            p = st - 9
            k, s = ((0, 0), (0, 1), (0, 2), (1, 0), (2, 0), (1, 1), (2, 1), (1, 2), (2, 2))[p]
            e(f"s_add_u32 s{S_OFF}, s{S_GB[k]}, {73728*s}")
            dma_unit(e, SRD_C, [V_W2], S_OFF, S_ST2, RING + (st % 3) * 3 * UNIT, S_LB, S_1K)
    for t in range(3):
        e(f"s_mov_b32 s{S_OFF}, s{S_XO[t]}")
        dma_unit(e, SRD_A, [V_XE, V_XO], S_OFF, S_ST2, XH + t * 3 * UNIT, S_LB, S_1K)
        issue_w(t)
    finish_tag(e)
    for st in range(18):
        if st == 0: n = 32
        elif st == 1: n = 16
        elif st == 17: n = 0
        else: n = 8
        e(f"s_waitcnt vmcnt({n})\ns_barrier")
        if 1 <= st <= 15: issue_w(st + 2)
    e(f"s_cmp_lt_u32 s{S_WAVE}, 6\ns_cbranch_scc1 L_gather\ns_endpgm")

def poll(e, name, vaddr, imm, nlanes_mask, vtag, vtmp, dbg=None):
    _poll(e, name, vaddr, imm, nlanes_mask, vtag, vtmp)
    if dbg is not None:
        e(f"""
        s_lshl_b32 s3, s{S_CU}, 9
        s_add_u32 s3, s3, {WS_ST + 192*512 + dbg*192*512}
        v_lshlrev_b32 v{vtmp+2}, 4, v0
        v_mov_b32 v{vtmp+3}, s{S_CNT}
        v_mov_b32 v{vtmp+4}, v{vtmp}
        v_mov_b32 v{vtmp+5}, v{vtmp+1}
        v_mov_b32 v{vtmp+6}, v{vtmp+3}
        v_mov_b32 v{vtmp+7}, v{vtag}
        s_mov_b64 exec, 0xff
        buffer_store_dwordx4 v[{vtmp+4}:{vtmp+7}], v{vtmp+2}, s[{SRD_WS}:{SRD_WS+3}], s3 offen
        s_waitcnt vmcnt(0)
        s_mov_b64 exec, -1
        """)

def _poll(e, name, vaddr, imm, nlanes_mask, vtag, vtmp):
    e(f"""
    s_mov_b64 exec, {nlanes_mask}
    s_mov_b32 s{S_CNT}, {SPIN_MAX}
    L_poll_{name}:
    buffer_load_dwordx2 v[{vtmp}:{vtmp+1}], v{vaddr}, s[{SRD_WS}:{SRD_WS+3}], 0 offen offset:{imm} sc1
    s_waitcnt vmcnt(0)
    v_cmp_ne_u64 vcc, v[{vtmp}:{vtmp+1}], v[{vtag}:{vtag+1}]
    s_sub_u32 s{S_CNT}, s{S_CNT}, 1
    s_cmp_eq_u32 s{S_CNT}, 0
    s_cbranch_scc1 L_polldone_{name}
    s_nop 2
    s_cbranch_vccnz L_poll_{name}
    L_polldone_{name}:
    s_mov_b64 exec, -1
    """)

def control(e, o):
    V_LIN, V_POLL, V_TAG, V_TMP = 8, 9, 10, 12
    S_OFF, S_1K, S_H1, S_H2 = 60, 61, 48, 49
    e("L_control:")
    if o.prefetch_code:
        e(f"""
        s_getpc_b64 s[{S_T0}:{S_T0+1}]
        L_pf:
        v_lshlrev_b32 v1, 7, v0
        v_add_u32 v2, 8192, v1
        v_min_u32 v1, L_end-L_pf, v1
        v_min_u32 v2, L_end-L_pf, v2
        global_load_dword v30, v1, s[{S_T0}:{S_T0+1}]
        global_load_dword v31, v2, s[{S_T0}:{S_T0+1}]
        """)
    e(f"""
    v_lshlrev_b32 v{V_LIN}, 4, v0
    s_sub_u32 s{S_T0}, s{S_CU}, s{S_G}
    s_add_u32 s{S_H1}, s{S_T0}, s{S_G1}
    s_add_u32 s{S_H2}, s{S_T0}, s{S_G2}
    s_lshl_b32 s{S_T0}, s{S_H1}, 7
    s_lshl_b32 s{S_T1}, s{S_H2}, 7
    s_add_u32 s{S_T0}, s{S_T0}, {WS_HF}
    s_add_u32 s{S_T1}, s{S_T1}, {WS_HF - 32}
    v_mov_b32 v1, s{S_T0}
    v_mov_b32 v2, s{S_T1}
    v_cmp_gt_u32 vcc, 4, v0
    v_lshlrev_b32 v3, 3, v0
    s_mul_i32 s{S_H1}, s{S_H1}, 24576
    v_cndmask_b32 v1, v2, v1, vcc
    s_mul_i32 s{S_H2}, s{S_H2}, 24576
    v_add_u32 v{V_POLL}, v1, v3
    s_add_u32 s{S_H1}, s{S_H1}, {WS_H}
    s_add_u32 s{S_H2}, s{S_H2}, {WS_H}
    s_mov_b32 s{S_1K}, 1024
    """)
    finish_tag(e)
    e(f"v_mov_b32 v{V_TAG}, s{S_TAG}\nv_mov_b32 v{V_TAG+1}, s{S_TAG+1}")
    def hdma(s):
        for k, sh in enumerate((S_H1, S_H2)):
            p = 3 + 2 * s + k
            e(f"s_add_u32 s{S_OFF}, s{sh}, {s*UNIT}")
            dma_unit(e, SRD_WS, [V_LIN], S_OFF, S_1K, XH + p * UNIT, None, S_1K, "sc1")
    def stamp(k):
        if o.stamps: e(f"s_memtime s[{S_STAMP+4+2*k}:{S_STAMP+5+2*k}]\ns_waitcnt lgkmcnt(0)")
    for st in range(18):
        if st == 12:
            poll(e, "h0", V_POLL, 0, "0xff", V_TAG, V_TMP, 0 if o.stamps else None); hdma(0)
            poll(e, "h1", V_POLL, 32, "0xff", V_TAG, V_TMP, 1 if o.stamps else None); hdma(1)
        if st == 14:
            poll(e, "h2", V_POLL, 64, "0xff", V_TAG, V_TMP, 2 if o.stamps else None); hdma(2)
        if st == 16: e("s_waitcnt vmcnt(8)")
        if st == 17: e("s_waitcnt vmcnt(0)")
        e("s_barrier")
        if st < 17 or True: stamp(st) if st < 14 else None
    if o.stamps:
        e(f"s_waitcnt lgkmcnt(0)")
        e(f"s_lshl_b32 s3, s{S_CU}, 9\ns_add_u32 s3, s3, {WS_ST}")
        e("s_mov_b64 exec, 1\nv_mov_b32 v1, 0")
        for k in range(0, 32, 4):
            for q in range(4): e(f"v_mov_b32 v{4+q}, s{S_STAMP+k+q}")
            e(f"buffer_store_dwordx4 v[4:7], v1, s[{SRD_WS}:{SRD_WS+3}], s3 offen offset:{k*4}\ns_nop 1")
        e(f"v_mov_b32 v4, s{S_TAG}\nv_mov_b32 v5, s{S_TAG+1}\nbuffer_store_dwordx2 v[4:5], v1, s[{SRD_WS}:{SRD_WS+3}], s3 offen offset:128")
        e("s_waitcnt vmcnt(0)")
    e("s_endpgm")

V_T1, V_T1B, V_T2, V_T2B = 2, 3, 4, 5
V_X = 6
V_X8 = 10
V_H, V_H8, V_HW, V_HG = 14, 15, 16, 17
V_TAG = 18
V_EP = 20
V_P = 24
V_WF = 32
V_ACC1 = 56
V_XF = 112
V_ACC2 = 112
V_HF = 160
V_MISC = 88
S_MH, S_NH, S_HST, S_NL2E = 48, 49, 50, 51
S_PO = 52

class Stream:
    def __init__(self, e): self.e = e; self.nlds = 0; self.done = 0; self.count = 0
    def emit(self, s):
        self.e(s); self.count += 1
    def lds(self, s):
        self.emit(s); self.nlds += 1; return self.nlds
    def wait_lds(self, opid):
        if opid <= self.done: return
        n = self.nlds - opid
        assert n <= 15, n
        self.emit(f"s_waitcnt lgkmcnt({n})"); self.done = opid

def silu_ops(acc, s):
    ops = []
    for q in range(4):
        v = [acc + 4 * q + r for r in range(4)]
        t = [V_EP + r for r in range(4)]
        for r in range(4): ops.append(("v", f"v_mul_f32 v{t[r]}, s{S_NL2E}, v{v[r]}"))
        for r in range(4): ops.append(("v", f"v_exp_f32 v{t[r]}, v{t[r]}"))
        for r in range(4): ops.append(("v", f"v_add_f32 v{t[r]}, 1.0, v{t[r]}"))
        for r in range(4): ops.append(("v", f"v_rcp_f32 v{t[r]}, v{t[r]}"))
        for r in range(4): ops.append(("v", f"v_mul_f32 v{v[r]}, v{v[r]}, v{t[r]}"))
        ops.append(("v", f"v_cvt_pk_bf16_f32 v{V_P+2*q}, v{v[0]}, v{v[1]}"))
        ops.append(("v", f"v_cvt_pk_bf16_f32 v{V_P+2*q+1}, v{v[2]}, v{v[3]}"))
        if q % 2 == 1:
            tt = q // 2
            ops.append(("lds", f"ds_write_b128 v{V_HW}, v[{V_P+4*tt}:{V_P+4*tt+3}] offset:{s*UNIT + tt*1024}"))
            ops.append(("v", f"buffer_store_dwordx4 v[{V_P+4*tt}:{V_P+4*tt+3}], v{V_HG}, s[{SRD_WS}:{SRD_WS+3}], s{S_HST} offen offset:{tt*1024} sc1"))
    if s < 2: ops.append(("v", f"s_add_u32 s{S_HST}, s{S_HST}, {UNIT}"))
    return ops

def flag_ops(s, n):
    return [("v", f"s_waitcnt vmcnt({n})"),
            ("v", "s_mov_b64 exec, 1"),
            ("v", f"buffer_store_dwordx2 v[{V_TAG}:{V_TAG+1}], v{V_MISC}, s[{SRD_WS}:{SRD_WS+3}], 0 offen offset:{s*32} sc1"),
            ("v", "s_mov_b64 exec, -1")]

def compute(e, o):
    e("L_compute:")
    if o.prio: e(f"s_setprio {o.prio}")
    e(f"""
    s_lshr_b32 s{S_MH}, s{S_WAVE}, 1
    s_and_b32 s{S_NH}, s{S_WAVE}, 1
    s_mov_b32 s{S_NL2E}, 0xbfb8aa3b
    v_lshrrev_b32 v20, 5, v0
    v_lshrrev_b32 v21, 4, v0
    v_and_b32 v21, 1, v21
    v_and_b32 v22, 15, v0
    v_lshrrev_b32 v23, 2, v22
    v_and_b32 v22, 3, v22
    v_lshrrev_b32 v24, 1, v22
    v_lshl_add_u32 v24, v21, 1, v24
    s_lshl_b32 s3, s{S_NH}, 2
    v_add_u32 v24, s3, v24
    v_and_b32 v25, 2, v23
    v_lshlrev_b32 v25, 1, v25
    v_xor_b32 v24, v24, v25
    v_lshlrev_b32 v24, 4, v24
    v_and_b32 v22, 1, v22
    v_lshl_add_u32 v24, v22, 3, v24
    v_lshl_add_u32 v24, v23, 7, v24
    v_add_u32 v24, {RING}, v24
    v_lshl_add_u32 v{V_T1}, v20, 10, v24
    v_lshl_add_u32 v{V_T2}, v20, 9, v24
    v_add_u32 v{V_T1B}, {8*UNIT}, v{V_T1}
    v_add_u32 v{V_T2B}, {8*UNIT}, v{V_T2}
    v_and_b32 v25, 31, v0
    v_lshrrev_b32 v26, 1, v25
    v_and_b32 v26, 7, v26
    v_xor_b32 v26, v20, v26
    v_lshlrev_b32 v26, 4, v26
    s_lshl_b32 s3, s{S_MH}, 12
    v_lshl_add_u32 v26, v25, 7, v26
    v_add_u32 v{V_X}, s3, v26
    v_xor_b32 v{V_X+1}, 32, v{V_X}
    v_xor_b32 v{V_X+2}, 64, v{V_X}
    v_xor_b32 v{V_X+3}, 96, v{V_X}
    """)
    for ks in range(4): e(f"v_add_u32 v{V_X8+ks}, {8*UNIT}, v{V_X+ks}")
    e(f"""
    v_lshlrev_b32 v27, 4, v0
    v_add_u32 v{V_H}, s3, v27
    v_add_u32 v{V_H8}, {8*UNIT}, v{V_H}
    s_lshl_b32 s{S_T0}, s{S_NH}, 11
    v_add_u32 v{V_HW}, s{S_T0}, v{V_H}
    v_mov_b32 v{V_HG}, v{V_HW}
    s_mul_i32 s{S_HST}, s{S_CU}, 24576
    s_add_u32 s{S_HST}, s{S_HST}, {WS_H}
    s_lshl_b32 s{S_T0}, s{S_CU}, 7
    s_lshl_b32 s{S_T1}, s{S_WAVE}, 3
    s_add_u32 s{S_T0}, s{S_T0}, s{S_T1}
    s_add_u32 s{S_T0}, s{S_T0}, {WS_HF}
    v_mov_b32 v{V_MISC}, s{S_T0}
    """)
    e(f"""
    s_mul_i32 s{S_T0}, s{S_MT}, 3
    s_add_u32 s{S_T0}, s{S_T0}, s{S_G}
    s_lshl_b32 s{S_T1}, s{S_MH}, 2
    s_mul_i32 s{S_T1}, s{S_T1}, 24
    s_add_u32 s{S_T0}, s{S_T0}, s{S_T1}
    """)
    e(f"""
    s_mul_i32 s{S_PO}, s{S_T0}, 49152
    s_mul_i32 s3, s{S_J}, 6144
    s_add_u32 s{S_PO}, s{S_PO}, s3
    s_mul_i32 s3, s{S_NH}, 3072
    s_add_u32 s{S_PO}, s{S_PO}, s3
    s_add_u32 s{S_PO}, s{S_PO}, {WS_P}
    s_add_u32 s{S_PO+1}, s{S_PO}, {24*49152}
    s_add_u32 s{S_PO+2}, s{S_PO+1}, {24*49152}
    s_add_u32 s{S_PO+3}, s{S_PO+2}, {24*49152}
    s_lshl_b32 s{S_T0}, s{S_T0}, 7
    s_lshl_b32 s3, s{S_J}, 4
    s_add_u32 s{S_T0}, s{S_T0}, s3
    s_lshl_b32 s3, s{S_NH}, 3
    s_add_u32 s{S_T0}, s{S_T0}, s3
    s_add_u32 s{S_T0}, s{S_T0}, {WS_PF}
    v_mul_u32_u24 v{V_MISC+1}, {24*128}, v0
    v_add_u32 v{V_MISC+1}, s{S_T0}, v{V_MISC+1}
    v_mov_b32 v{V_MISC+2}, v27
    """)
    finish_tag(e)
    e(f"v_mov_b32 v{V_TAG}, s{S_TAG}\nv_mov_b32 v{V_TAG+1}, s{S_TAG+1}")

    tasks = []
    for st in range(9):
        s = st // 3
        for uu in range(3):
            i = 3 * (st % 3) + uu
            for ks in range(4):
                t = dict(step=st, first=(uu == 0 and ks == 0), reads=[], idx=len(tasks))
                base = V_T1B if i == 8 else V_T1
                so = 0 if i == 8 else i * UNIT
                t["wr"] = [(base, so + (16 * ks + 4 * b) * 128) for b in range(2)]
                xf = V_XF + (i * 4 + ks) * 4
                if s == 0:
                    xb = (V_X8 + ks) if i == 8 else (V_X + ks)
                    t["pre"] = [f"ds_read_b128 v[{xf}:{xf+3}], v{xb} offset:{0 if i == 8 else i*UNIT}"]
                else: t["pre"] = []
                acc = V_ACC1 + 16 * (s & 1)
                t["mf"] = lambda wf, acc=acc, xf=xf, z=(i == 0 and ks == 0): f"v_mfma_f32_32x32x16_bf16 v[{acc}:{acc+15}], v[{wf}:{wf+3}], v[{xf}:{xf+3}], " + ("0" if z else f"v[{acc}:{acc+15}]")
                tasks.append(t)
    hcount = 0
    for p in range(9):
        st = 9 + p
        for ks in range(4):
            hf = V_HF + 4 * (hcount % 3); hcount += 1
            for u in range(3):
                slot = 3 * (st % 3) + u
                t = dict(step=st, first=(ks == 0 and u == 0), idx=len(tasks))
                base = V_T2B if slot == 8 else V_T2
                so = 0 if slot == 8 else slot * UNIT
                t["wr"] = [(base, so + (16 * ks + 8 * b) * 128) for b in range(2)]
                if u == 0:
                    hb = V_H8 if p == 8 else V_H
                    t["pre"] = [f"ds_read_b128 v[{hf}:{hf+3}], v{hb} offset:{(0 if p == 8 else p*UNIT) + ks*1024}"]
                else: t["pre"] = []
                acc = V_ACC2 + 16 * u
                t["mf"] = lambda wf, acc=acc, hf=hf, z=(p == 0 and ks == 0): f"v_mfma_f32_32x32x16_bf16 v[{acc}:{acc+15}], v[{hf}:{hf+3}], v[{wf}:{wf+3}], " + ("0" if z else f"v[{acc}:{acc+15}]")
                tasks.append(t)
    n = len(tasks)
    S = Stream(e)
    NW = o.LA + 1
    side = []
    side_start = 0
    last_of_step = {}
    for t in tasks: last_of_step[t["step"]] = t["idx"]
    ir = 0
    def issue_reads(t):
        if t["first"]:
            if S.nlds > S.done or True:
                S.emit("s_waitcnt lgkmcnt(0)"); S.done = S.nlds
            S.emit("s_barrier")
        wf = V_WF + 4 * (t["idx"] % NW)
        for x in t["pre"]: S.lds(x)
        for b, (base, off) in enumerate(t["wr"]):
            last = S.lds(f"ds_read_b64_tr_b16 v[{wf+2*b}:{wf+2*b+1}], v{base} offset:{off}")
        t["last"] = last; t["wf"] = wf
    def pop_side(k):
        while k > 0 and side and S.count >= side_start:
            kind, txt = side.pop(0)
            if kind == "lds": S.lds(txt)
            else: S.emit(txt)
            k -= 1
    rate = o.ep_rate
    for im in range(n):
        t = tasks[im]
        budget = 2 if im > 0 else o.LA
        while ir < n and ir - im < o.LA and budget > 0:
            nt = tasks[ir]
            if nt["first"] and ir > 0 and (ir - im) > o.LA - o.DRAIN: break
            if nt["first"]:
                stp = nt["step"] - 1
                if stp == o.flag1_step and "f1" not in last_of_step:
                    last_of_step["f1"] = 1
                    assert not side, "side queue not drained before flag1"
                    for k, x in flag_ops(1, 3): S.emit(x)
                if stp == o.flag2_step and "f2" not in last_of_step:
                    last_of_step["f2"] = 1
                    for k, x in flag_ops(2, 2): S.emit(x)
            issue_reads(nt); ir += 1; budget -= 1
        S.wait_lds(t["last"])
        S.emit(t["mf"](t["wf"]))
        if im == last_of_step.get(2): side += silu_ops(V_ACC1, 0); side_start = S.count + 12; rate = o.ep_rate
        if im == last_of_step.get(5):
            assert not side
            side += silu_ops(V_ACC1 + 16, 1); side_start = S.count + 12; rate = o.ep_rate
        if im == last_of_step.get(8):
            assert not side, len(side)
            side += silu_ops(V_ACC1, 2) + flag_ops(0, 4); side_start = S.count + 12; rate = 1000
        pop_side(rate)
    assert not side
    e("s_nop 7")
    if o.stamps: e(f"s_memtime s[{S_STAMP+4}:{S_STAMP+5}]")
    e("s_nop 3")
    for u in range(3):
        for g4 in range(4):
            a = V_ACC2 + 16 * u + 4 * g4
            e(f"buffer_store_dwordx4 v[{a}:{a+3}], v{V_MISC+2}, s[{SRD_WS}:{SRD_WS+3}], s{S_PO+g4} offen offset:{u*1024} sc1")
    e("s_waitcnt vmcnt(0)")
    if o.stamps: e(f"s_memtime s[{S_STAMP+6}:{S_STAMP+7}]")
    e(f"""
    s_mov_b64 exec, 0xf
    buffer_store_dwordx2 v[{V_TAG}:{V_TAG+1}], v{V_MISC+1}, s[{SRD_WS}:{SRD_WS+3}], 0 offen sc1
    s_mov_b64 exec, -1
    """)

def gather(e, o):
    VT, VA, VL, VD = 2, 4, 5, 8
    e("L_gather:")
    e(f"""
    s_cmp_ge_u32 s{S_WAVE}, 3
    s_cselect_b32 s{S_T0}, 1, 0
    s_mul_i32 s{S_T1}, s{S_T0}, 3
    s_sub_u32 s{S_T1}, s{S_WAVE}, s{S_T1}
    s_lshl_b32 s3, s{S_CU}, 7
    s_lshl_b32 s48, s{S_T0}, 3
    s_add_u32 s3, s3, s48
    s_add_u32 s3, s3, {WS_PF}
    v_lshlrev_b32 v{VA}, 4, v0
    v_mov_b32 v{VL}, v{VA}
    v_add_u32 v{VA}, s3, v{VA}
    v_mov_b32 v{VT}, s{S_TAG}
    v_mov_b32 v{VT+1}, s{S_TAG+1}
    s_mul_i32 s48, s{S_CU}, 49152
    s_lshl_b32 s49, s{S_WAVE}, 10
    s_add_u32 s48, s48, s49
    s_add_u32 s48, s48, {WS_P}
    """)
    e(f"""
    v_lshrrev_b32 v6, 5, v0
    v_mul_u32_u24 v6, {4*1152}, v6
    v_and_b32 v7, 31, v0
    v_lshl_add_u32 v6, v7, 1, v6
    s_lshl_b32 s50, s{S_MT}, 6
    s_lshl_b32 s51, s{S_J}, 3
    s_add_u32 s50, s50, s51
    s_mul_i32 s50, s50, 1152
    s_mul_i32 s51, s{S_G}, 384
    s_add_u32 s50, s50, s51
    s_lshl_b32 s51, s{S_T1}, 7
    s_add_u32 s50, s50, s51
    s_lshl_b32 s51, s{S_T0}, 6
    s_add_u32 s50, s50, s51
    """)
    poll(e, "p", VA, 0, "0xff", VT, 40)
    if o.stamps: e(f"s_memtime s[{S_STAMP+8}:{S_STAMP+9}]")
    for p in range(8):
        e(f"buffer_load_dwordx4 v[{VD+4*p}:{VD+4*p+3}], v{VL}, s[{SRD_WS}:{SRD_WS+3}], s48 offen sc1")
        if p < 7: e(f"s_add_u32 s48, s48, 6144")
    e(f"""
    s_or_b32 s51, s{S_J}, s{S_G}
    s_or_b32 s51, s51, s{S_WAVE}
    s_cmp_lg_u32 s51, 0
    s_cbranch_scc1 L_noepoch
    s_lshl_b32 s51, s{S_MT}, 7
    v_mov_b32 v{VA}, s51
    s_mov_b64 exec, 1
    buffer_store_dwordx2 v[{VT}:{VT+1}], v{VA}, s[{SRD_WS}:{SRD_WS+3}], 0 offen sc1
    s_mov_b64 exec, -1
    s_waitcnt vmcnt(0)
    L_noepoch:
    """)
    for p in range(1, 8):
        e(f"s_waitcnt vmcnt({7-p})")
        for r in range(4): e(f"v_add_f32 v{VD+r}, v{VD+r}, v{VD+4*p+r}")
    e(f"""
    v_cvt_pk_bf16_f32 v{VD}, v{VD}, v{VD+1}
    v_cvt_pk_bf16_f32 v{VD+1}, v{VD+2}, v{VD+3}
    buffer_store_short v{VD}, v6, s[{SRD_OUT}:{SRD_OUT+3}], s50 offen
    buffer_store_short_d16_hi v{VD}, v6, s[{SRD_OUT}:{SRD_OUT+3}], s50 offen offset:1152
    buffer_store_short v{VD+1}, v6, s[{SRD_OUT}:{SRD_OUT+3}], s50 offen offset:2304
    buffer_store_short_d16_hi v{VD+1}, v6, s[{SRD_OUT}:{SRD_OUT+3}], s50 offen offset:3456
    """)
    if o.stamps:
        e(f"""
        s_cmp_lg_u32 s{S_WAVE}, 0
        s_cbranch_scc1 L_end
        s_waitcnt vmcnt(0)
        s_memtime s[{S_STAMP+10}:{S_STAMP+11}]
        s_memrealtime s[{S_STAMP+12}:{S_STAMP+13}]
        s_waitcnt lgkmcnt(0)
        s_lshl_b32 s3, s{S_CU}, 9
        s_add_u32 s3, s3, {WS_ST + 256}
        s_mov_b64 exec, 1
        v_mov_b32 v1, 0
        """)
        for k in range(0, 16, 4):
            for q in range(4): e(f"v_mov_b32 v{4+q}, s{S_STAMP+k+q}")
            e(f"buffer_store_dwordx4 v[4:7], v1, s[{SRD_WS}:{SRD_WS+3}], s3 offen offset:{k*4}\ns_nop 1")
        e(f"v_mov_b32 v4, s{S_TAG}\nv_mov_b32 v5, s{S_TAG+1}\nbuffer_store_dwordx2 v[4:5], v1, s[{SRD_WS}:{SRD_WS+3}], s3 offen offset:64")
        e("s_waitcnt vmcnt(0)")

def build(o):
    e = E()
    prologue(e, o)
    parts = {}
    el = E(); loader(el, o); parts["loader"] = el
    ec = E(); control(ec, o); parts["control"] = ec
    ek = E(); compute(ek, o); parts["compute"] = ek
    eg = E(); gather(eg, o); parts["gather"] = eg
    for k, v in parts.items():
        pr = hazard.check(e.text() + "\n" + v.text() + ("\n" + eg.text() if k == "compute" else ""))
        if pr: raise SystemExit(f"hazards in {k}")
    body = "\n".join([e.text(), el.text(), ec.text(), ek.text(), eg.text(), "L_end:", "s_endpgm"])
    nsgpr = 100 if o.stamps else 72
    hdr = f"""; Fused FFN: out = silu(x @ w1) @ w2   (M=512, D=576, F=4608), one persistent launch.
; @launch grid=({NWG},1,1) block=(512,1,1) lds={LDS_BYTES}
.amdgcn_target "amdgcn-amd-amdhsa--gfx950"
.text
.globl {KNAME}
.p2align 8
.type {KNAME},@function
{KNAME}:
"""
    tail = f"""
.section .rodata,"a"
.p2align 6
.amdhsa_kernel {KNAME}
  .amdhsa_next_free_vgpr 256
  .amdhsa_next_free_sgpr {nsgpr}
  .amdhsa_accum_offset 256
  .amdhsa_group_segment_fixed_size 0
  .amdhsa_kernarg_size 48
  .amdhsa_user_sgpr_count 2
  .amdhsa_user_sgpr_kernarg_segment_ptr 1
  .amdhsa_system_sgpr_workgroup_id_x 1
.end_amdhsa_kernel
"""
    return hdr + body + tail

if __name__ == "__main__":
    o = Opt()
    out = sys.argv[1]
    for a in sys.argv[2:]:
        k, v = a.split("=")
        setattr(o, k, type(getattr(Opt, k))(int(v)) if not isinstance(getattr(Opt, k), bool) else bool(int(v)))
    open(out, "w").write(build(o))
    print("wrote", out)
```

```python
import sys, os
sys.path.insert(0, os.path.dirname(__file__))
import hazard

KNAME = "standalone__dense_activation_silu__sampling_kernel"
NWG = 192
NPF = 64
XH = 0
RING = 73728
R = 11
UNIT = 8192
LDS_BYTES = 163840
WS_E, WS_ID, WS_HF, WS_PF, WS_H, WS_P, WS_ST = 0, 4096, 32768, 65536, 262144, 5242880, 16777216
WS_SIZE = 0x10000000
TAGC_LO, TAGC_HI = 0x7F4A7C15, 0x9E3779B9
SPIN_MAX = 100000
FASTW = XH + 3 * UNIT

P2 = [(0,0),(1,0),(2,0), (0,1),(1,1),(2,1), (0,2),(1,2),(2,2), (3,0),(4,0),(5,0), (3,1),(4,1),(5,1),
      (6,0),(7,0),(8,0), (6,1),(7,1),(8,1), (3,2),(4,2),(5,2), (6,2),(7,2),(8,2)]
P2B = [(0,0),(1,0),(2,0), (0,1),(1,1),(2,1), (0,2),(1,2),(2,2), (3,0),(4,0),(5,0), (3,1),(4,1),(5,1),
       (3,2),(4,2),(5,2), (6,0),(7,0),(8,0), (6,1),(7,1),(8,1), (6,2),(7,2),(8,2)]
PCH = [(p % 3, p // 3) for p in range(9)]

class Opt:
    stamps = False
    LP = 3
    pairw = True
    pub0 = 17
    pub1 = 11
    DRAIN = 2
    epb = 52
    epb2 = 110
    f1pos = 8
    h0b = 8
    h1b = 11
    h2b = 13
    fastb = 4
    gap0 = 5
    gap2 = 4
    tlbw = True
    ctouch = False
    ptouch = 1
    t0b = 3
    t1b = 5
    t2b = 7
    order = 0
    touch = 2
    early = True
    astamp = 0
    ep2_rate = 9
    prefetch_code = True
    prio = 0
    npf = 64
    force_slow = False
    sleep = 1
    w_nt = False
    x_noep = False
    x_nodma = False
    x_nopub = False
    x_nost = False
    x_hplain = False
    x_nodsw = False
    psleep = 1
    stampset = 0

class E:
    def __init__(self): self.L = []
    def __call__(self, s):
        for l in s.split("\n"):
            l = l.strip()
            if l: self.L.append(l)
    def text(self): return "\n".join(self.L)

S_X, S_W1, S_W2, S_OUT, S_WS = 4, 6, 8, 10, 12
S_J, S_MT, S_G, S_WAVE, S_CU = 14, 15, 16, 17, 18
S_FAST = 19
S_TAG = 20
S_T0, S_T1 = 22, 23
SRD_A, SRD_B, SRD_C = 24, 28, 32
SRD_WS, SRD_OUT = 36, 40
S_G1, S_G2 = 44, 45
S_CNT = 46
S_STAMP = 64

def srd(e, d, base, size):
    e(f"s_mov_b32 s{d}, s{base}\ns_and_b32 s{d+1}, s{base+1}, 0xffff\ns_mov_b32 s{d+2}, {size}\ns_mov_b32 s{d+3}, 0x20000")

def prologue(e, o):
    e(f"""
    s_cmp_ge_u32 s2, {NWG + o.npf}
    s_cbranch_scc1 L_end
    s_load_dwordx4 s[4:7], s[0:1], 0
    s_load_dwordx4 s[8:11], s[0:1], 16
    s_load_dwordx2 s[12:13], s[0:1], 40
    """)
    if o.prefetch_code:
        e(f"""
        s_getpc_b64 s[{S_T0}:{S_T0+1}]
        L_pf:
        v_lshlrev_b32 v1, 7, v0
        v_min_u32 v1, L_end-L_pf, v1
        global_load_dword v31, v1, s[{S_T0}:{S_T0+1}]
        """)
    if o.stamps:
        e(f"s_memrealtime s[{S_STAMP}:{S_STAMP+1}]\ns_memtime s[{S_STAMP+2}:{S_STAMP+3}]")
    e(f"""
    v_lshrrev_b32 v1, 6, v0
    s_and_b32 s{S_J}, s2, 7
    s_lshr_b32 s3, s2, 3
    v_readfirstlane_b32 s{S_WAVE}, v1
    s_cmp_ge_u32 s2, {NWG}
    s_cbranch_scc1 L_prefetch
    s_mul_i32 s{S_MT}, s3, 171
    s_lshr_b32 s{S_MT}, s{S_MT}, 9
    s_mul_i32 s{S_G}, s{S_MT}, 3
    s_sub_u32 s{S_G}, s3, s{S_G}
    v_and_b32 v0, 63, v0
    s_cmp_lt_u32 s{S_WAVE}, 4
    s_cbranch_scc1 L_compute
    s_cmp_eq_u32 s{S_WAVE}, 7
    s_cbranch_scc1 L_control
    """)

def common_ids(e):
    e(f"""
    s_add_u32 s{S_G1}, s{S_G}, 1
    s_cmp_eq_u32 s{S_G1}, 3
    s_cselect_b32 s{S_G1}, 0, s{S_G1}
    s_add_u32 s{S_G2}, s{S_G1}, 1
    s_cmp_eq_u32 s{S_G2}, 3
    s_cselect_b32 s{S_G2}, 0, s{S_G2}
    s_lshl_b32 s{S_CU}, s{S_J}, 3
    s_add_u32 s{S_CU}, s{S_CU}, s{S_MT}
    s_mul_i32 s{S_CU}, s{S_CU}, 3
    s_add_u32 s{S_CU}, s{S_CU}, s{S_G}
    s_lshl_b32 s3, s{S_MT}, 7
    """)

def load_epoch(e):
    e(f"s_load_dwordx2 s[{S_TAG}:{S_TAG+1}], s[{S_WS}:{S_WS+1}], s3")
    srd(e, SRD_WS, S_WS, WS_SIZE)
    srd(e, SRD_OUT, S_OUT, 512*576*2)

def finish_tag(e):
    e(f"""
    s_waitcnt lgkmcnt(0)
    s_add_u32 s{S_TAG}, s{S_TAG}, {TAGC_LO:#x}
    s_addc_u32 s{S_TAG+1}, s{S_TAG+1}, {TAGC_HI:#x}
    """)

def dma_unit(e, srd_r, vp, s_off, half_step, lds, flags="", s_tmp=61, s_lb=None):
    pats = vp if len(vp) == 4 else vp * 4
    m0 = (lambda c: f"s_mov_b32 m0, {c}") if s_lb is None else (lambda c: f"s_add_u32 m0, s{s_lb}, {c}")
    e(f"{m0(lds)}\ns_add_u32 s{s_tmp}, s{s_off}, {half_step}")
    for k in range(4):
        e(f"buffer_load_dwordx4 v{pats[k]}, s[{srd_r}:{srd_r+3}], s{s_off} offen offset:{1024*k} {flags} lds")
    e(f"{m0(lds + 4096)}\ns_nop 0")
    for k in range(4):
        e(f"buffer_load_dwordx4 v{pats[k]}, s[{srd_r}:{srd_r+3}], s{s_tmp} offen offset:{1024*k} {flags} lds")

def issue_barrier(n): return -1 if n < R else (n - R) // 3 + 1

V_LX, V_LW1, V_LW2 = 8, 12, 16
S_C = [48, 49, 50]; S_XO = [51, 52, 53]; S_WO = [54, 55, 56]; S_GB = [57, 58, 59]; S_OFF = 60
S_LW, S_LB = 62, 63
S_LH = 47
V_LIN = 20

def lstamp(e, o, k):
    if o.stamps and not o.astamp: e(f"s_memtime s[{S_STAMP+16+2*k}:{S_STAMP+17+2*k}]")

def loader_start(e, o):
    wf = "nt" if o.w_nt else ""
    e(f"""
    s_sub_u32 s{S_LW}, s{S_WAVE}, 4
    v_lshrrev_b32 v1, 3, v0
    v_and_b32 v2, 7, v0
    v_lshrrev_b32 v6, 1, v1
    v_mul_u32_u24 v5, 1152, v1
    v_xor_b32 v6, v2, v6
    v_lshlrev_b32 v7, 4, v6
    v_add_u32 v{V_LX}, v5, v7
    v_xor_b32 v7, 64, v7
    v_add_u32 v{V_LX+1}, v5, v7
    v_add_u32 v{V_LX+1}, {9216-1024}, v{V_LX+1}
    v_add_u32 v{V_LX+2}, {2*(9216-1024)}, v{V_LX}
    v_add_u32 v{V_LX+3}, {2*(9216-1024)}, v{V_LX+1}
    s_mul_i32 s{S_T0}, s{S_G}, 3
    s_add_u32 s{S_T0}, s{S_T0}, s{S_MT}
    s_add_u32 s{S_T0}, s{S_T0}, s{S_LW}
    s_cmp_ge_u32 s{S_T0}, 9
    s_cselect_b32 s{S_T1}, 9, 0
    s_sub_u32 s{S_C[0]}, s{S_T0}, s{S_T1}
    s_mul_i32 s{S_T0}, s{S_MT}, {64*1152}
    s_lshl_b32 s{S_XO[0]}, s{S_C[0]}, 7
    s_add_u32 s{S_XO[0]}, s{S_XO[0]}, s{S_T0}
    s_lshl_b32 s{S_LB}, s{S_LW}, 13
    v_and_b32 v3, 2, v1
    v_lshlrev_b32 v3, 1, v3
    v_xor_b32 v3, v2, v3
    v_lshlrev_b32 v3, 4, v3
    v_mul_u32_u24 v4, 9216, v1
    v_add_u32 v{V_LW1}, v4, v3
    v_add_u32 v{V_LW2}, v5, v3
    s_mul_i32 s{S_T1}, s{S_J}, 1152
    s_mul_i32 s3, s{S_G}, 384
    s_add_u32 s{S_T1}, s{S_T1}, s3
    s_mul_i32 s3, s{S_C[0]}, {64*9216}
    s_add_u32 s{S_WO[0]}, s{S_T1}, s3
    v_add_u32 v{V_LW1+1}, {1*(73728-1024)}, v{V_LW1}
    v_add_u32 v{V_LW1+2}, {2*(73728-1024)}, v{V_LW1}
    v_add_u32 v{V_LW1+3}, {3*(73728-1024)}, v{V_LW1}
    s_waitcnt lgkmcnt(0)
    """)
    lstamp(e, o, 0)
    srd(e, SRD_A, S_X, 512*576*2)
    XP = [V_LX, V_LX+1, V_LX+2, V_LX+3]; WP = [V_LW1, V_LW1+1, V_LW1+2, V_LW1+3]
    dma_unit(e, SRD_A, XP, S_XO[0], 4*9216, XH, s_lb=S_LB)
    srd(e, SRD_B, S_W1, 576*4608*2)
    dma_unit(e, SRD_B, WP, S_WO[0], 4*73728, RING, wf, s_lb=S_LB)
    lstamp(e, o, 1)
    for k in (1, 2):
        e(f"""
        s_add_u32 s3, s{S_C[k-1]}, 3
        s_cmp_ge_u32 s3, 9
        s_cselect_b32 s{S_C[k]}, 9, 0
        s_sub_u32 s{S_C[k]}, s3, s{S_C[k]}
        s_lshl_b32 s3, s{S_C[k]}, 7
        s_add_u32 s{S_XO[k]}, s{S_T0}, s3
        s_mul_i32 s3, s{S_C[k]}, {64*9216}
        s_add_u32 s{S_WO[k]}, s{S_T1}, s3
        """)
        if k == 1 or not o.early:
            dma_unit(e, SRD_A, XP, S_XO[k], 4*9216, XH + 3*k*UNIT, s_lb=S_LB)
            dma_unit(e, SRD_B, WP, S_WO[k], 4*73728, RING + 3*k*UNIT, wf, s_lb=S_LB)
    if not o.early:
        e(f"s_cmp_eq_u32 s{S_LW}, 2\ns_cbranch_scc1 L_ld_no4")
        e(f"s_add_u32 s{S_OFF}, s{S_WO[0]}, 128")
        dma_unit(e, SRD_B, WP, S_OFF, 4*73728, RING + 9*UNIT, wf, s_lb=S_LB)
        e("L_ld_no4:")
    lstamp(e, o, 2)
    common_ids(e)
    srd(e, SRD_C, S_W2, 576*4608*2)
    for k in (1, 2, 3):
        e(f"v_add_u32 v{V_LW2+k}, {k*(9216-1024)}, v{V_LW2}")
    e(f"""
    s_mul_i32 s{S_T0}, s{S_J}, {576*1152}
    s_mul_i32 s{S_T1}, s{S_G}, 384
    s_add_u32 s{S_T0}, s{S_T0}, s{S_T1}
    """)
    for k, sg in enumerate((S_G, S_G1, S_G2)):
        e(f"s_mul_i32 s3, s{sg}, {192*1152}\ns_add_u32 s{S_GB[k]}, s{S_T0}, s3")
    e(f"""
    s_cmp_eq_u32 s{S_LW}, 1
    s_cselect_b32 s3, s{S_G1}, s{S_G}
    s_cmp_eq_u32 s{S_LW}, 2
    s_cselect_b32 s3, s{S_G2}, s3
    s_sub_u32 s{S_LH}, s{S_CU}, s{S_G}
    s_add_u32 s{S_LH}, s{S_LH}, s3
    s_mul_i32 s{S_LH}, s{S_LH}, 24576
    s_add_u32 s{S_LH}, s{S_LH}, {WS_H}
    v_lshlrev_b32 v{V_LIN}, 4, v0
    """)
    e(f"s_lshl_b32 s3, s{S_MT}, 7")
    load_epoch(e)
    finish_tag(e)
    e(f"""
    s_cmp_eq_u32 s{S_LW}, 1
    s_cbranch_scc1 L_loader1
    s_cmp_eq_u32 s{S_LW}, 2
    s_cbranch_scc1 L_loader2
    """)

def loader(e, o, lw):
    wf = "nt" if o.w_nt else ""
    WP = [V_LW1, V_LW1+1, V_LW1+2, V_LW1+3]; W2P = [V_LW2, V_LW2+1, V_LW2+2, V_LW2+3]
    e(f"L_loader{lw}:")
    XP = [V_LX, V_LX+1, V_LX+2, V_LX+3]
    if o.early: seq = [("x", lw), ("w", lw), ("x", 3+lw), ("w", 3+lw)]
    else: seq = [("x", lw), ("w", lw), ("x", 3+lw), ("w", 3+lw), ("x", 6+lw), ("w", 6+lw)] + ([("w", 9+lw)] if 9 + lw < R else [])
    def issue_w(n):
        slot = n % R
        if n < 27:
            s, i = n // 9, n % 9
            t = i // 3
            e(f"s_add_u32 s{S_OFF}, s{S_WO[t]}, {128*s}")
            dma_unit(e, SRD_B, WP, S_OFF, 4*73728, RING + slot*UNIT, wf)
        else:
            p, u = P2[n - 27]
            k, s = PCH[p]
            e(f"s_add_u32 s{S_OFF}, s{S_GB[k]}, {73728*s + 128*u}")
            dma_unit(e, SRD_C, W2P, S_OFF, 4*9216, RING + slot*UNIT, wf)
        seq.append(("w", n))
    hb = {o.h0b: 0, o.h1b: 1, o.h2b: 2}
    hneed = {9: 0, 12: 1, (15 if o.order else 14): 2}
    for st in range(18):
        need = [("w", 3*st + lw)] + ([("x", 3*st + lw)] if st < 3 else []) + ([("h", hneed[st])] if st in hneed else [])
        last = max(seq.index(x) for x in need)
        n = 8 * (len(seq) - 1 - last)
        assert n <= 63
        e(f"s_waitcnt vmcnt({n})")
        if st == 0 and not o.astamp: lstamp(e, o, 3)
        if o.astamp and o.astamp <= st < o.astamp + 6: e(f"s_memtime s[{S_STAMP+16+2*(st-o.astamp)}:{S_STAMP+17+2*(st-o.astamp)}]")
        e("s_barrier")
        if st in hb:
            sg = hb[st]
            e(f"s_add_u32 s{S_OFF}, s{S_LH}, {sg*UNIT}")
            dma_unit(e, SRD_WS, [V_LIN], S_OFF, 4096, XH + (3*sg + lw)*UNIT, "" if o.x_hplain else "sc1"); seq.append(("h", sg))
        if o.early and st == 0:
            dma_unit(e, SRD_A, XP, S_XO[2], 4*9216, XH + (6 + lw)*UNIT); seq.append(("x", 6 + lw))
            issue_w(6 + lw)
        if o.early and st == 1 and 9 + lw < R: issue_w(9 + lw)
        for nn in range(R, 54):
            if nn % 3 == lw and issue_barrier(nn) == st:
                if o.x_nodma: seq.append(('w', nn))
                else: issue_w(nn)
    if o.stamps and (lw == 0 or o.astamp):
        base = WS_ST + 192 if not o.astamp else WS_ST + 192*512 + (1 + lw)*64
        e(f"s_waitcnt lgkmcnt(0)\ns_lshl_b32 s3, s{S_CU}, 9\ns_add_u32 s3, s3, {base}\ns_mov_b64 exec, 1\nv_mov_b32 v1, 0")
        for k, r0 in enumerate((S_STAMP, S_STAMP+16, S_STAMP+20, S_STAMP+24)):
            for q in range(4): e(f"v_mov_b32 v{4+q}, s{r0+q}")
            e(f"buffer_store_dwordx4 v[4:7], v1, s[{SRD_WS}:{SRD_WS+3}], s3 offen offset:{k*16}\ns_nop 1")
        e("s_mov_b64 exec, -1")
    e("s_branch L_gather")

def _poll(e, o, name, vaddr, imm, mask, vtag, vtmp, sleep=None):
    sleep = o.sleep if sleep is None else sleep
    e(f"""
    s_mov_b64 exec, {mask}
    s_mov_b32 s{S_CNT}, {SPIN_MAX}
    L_poll_{name}:
    buffer_load_dwordx2 v[{vtmp}:{vtmp+1}], v{vaddr}, s[{SRD_WS}:{SRD_WS+3}], 0 offen offset:{imm} sc1
    s_waitcnt vmcnt(0)
    v_cmp_ne_u64 vcc, v[{vtmp}:{vtmp+1}], v[{vtag}:{vtag+1}]
    s_sub_u32 s{S_CNT}, s{S_CNT}, 1
    s_cmp_eq_u32 s{S_CNT}, 0
    s_cbranch_scc1 L_polldone_{name}
    s_nop 1
    s_cbranch_vccz L_polldone_{name}
    """)
    if sleep: e(f"s_sleep {sleep}")
    e(f"""
    s_branch L_poll_{name}
    L_polldone_{name}:
    s_mov_b64 exec, -1
    """)

def control(e, o):
    V_LIN, V_POLL, V_TAG, V_TMP, V_ID = 8, 9, 10, 12, 14
    S_OFF, S_H1, S_H2, S_XCC, S_H0 = 60, 48, 49, 50, 51
    e("L_control:")
    common_ids(e)
    e("s_waitcnt lgkmcnt(0)")
    load_epoch(e)
    if o.tlbw:
        e(f"""
        v_min_u32 v1, 39, v0
        v_lshlrev_b32 v1, 18, v1
        buffer_load_dword v29, v1, s[{SRD_WS}:{SRD_WS+3}], 0 offen offset:2048 sc1
        v_min_u32 v2, 8, v0
        v_lshlrev_b32 v2, 16, v2
        buffer_load_dword v28, v2, s[{SRD_OUT}:{SRD_OUT+3}], 0 offen sc1
        """)
    e(f"""
    s_getreg_b32 s{S_XCC}, hwreg(HW_REG_XCC_ID, 0, 4)
    v_lshlrev_b32 v{V_LIN}, 4, v0
    s_sub_u32 s{S_T0}, s{S_CU}, s{S_G}
    s_add_u32 s{S_H1}, s{S_T0}, s{S_G1}
    s_add_u32 s{S_H2}, s{S_T0}, s{S_G2}
    s_lshl_b32 s{S_T0}, s{S_H1}, 7
    s_lshl_b32 s{S_T1}, s{S_H2}, 7
    v_mov_b32 v1, s{S_T0}
    v_mov_b32 v2, s{S_T1}
    s_lshl_b32 s{S_OFF}, s{S_CU}, 7
    v_mov_b32 v7, s{S_OFF}
    v_lshrrev_b32 v3, 2, v0
    v_cmp_eq_u32 vcc, 1, v3
    v_and_b32 v6, 3, v0
    v_lshlrev_b32 v6, 3, v6
    v_cndmask_b32 v4, v7, v1, vcc
    v_cmp_eq_u32 vcc, 2, v3
    s_mul_i32 s{S_H1}, s{S_H1}, 24576
    s_mul_i32 s{S_H2}, s{S_H2}, 24576
    v_cndmask_b32 v4, v4, v2, vcc
    v_add_u32 v4, {WS_HF}, v4
    v_add_u32 v{V_POLL}, v4, v6
    v_cmp_eq_u32 vcc, 0, v0
    s_mul_i32 s{S_H0}, s{S_CU}, 24576
    s_add_u32 s{S_H0}, s{S_H0}, {WS_H}
    v_cndmask_b32 v4, v2, v1, vcc
    v_add_u32 v{V_ID}, {WS_ID}, v4
    s_add_u32 s{S_H1}, s{S_H1}, {WS_H}
    s_add_u32 s{S_H2}, s{S_H2}, {WS_H}
    """)
    finish_tag(e)
    e(f"""
    s_add_u32 s{S_T0}, s{S_XCC}, 16
    s_add_u32 s{S_T0}, s{S_TAG}, s{S_T0}
    s_addc_u32 s{S_T1}, s{S_TAG+1}, 0
    v_mov_b32 v4, s{S_T0}
    v_mov_b32 v5, s{S_T1}
    s_lshl_b32 s3, s{S_CU}, 7
    s_add_u32 s3, s3, {WS_ID}
    v_mov_b32 v6, s3
    v_mov_b32 v{V_TAG}, s{S_TAG}
    v_mov_b32 v{V_TAG+1}, s{S_TAG+1}
    s_mov_b64 exec, 1
    buffer_store_dwordx2 v[4:5], v6, s[{SRD_WS}:{SRD_WS+3}], 0 offen sc1
    s_mov_b64 exec, -1
    """)
    def hdma(s):
        for k, sh in enumerate((S_H0, S_H1, S_H2)):
            p = 3 * s + k
            e(f"s_add_u32 s{S_OFF}, s{sh}, {s*UNIT}")
            dma_unit(e, SRD_WS, [V_LIN], S_OFF, 4096, XH + p * UNIT, "sc1")
    def stamp(k):
        if o.stamps: e(f"s_memtime s[{S_STAMP+4+2*k}:{S_STAMP+5+2*k}]\ns_waitcnt lgkmcnt(0)")
    bl = [0,1,2,3,6,9,10,11,12,13,14,15,16,17] if o.stampset == 0 else [0,2,3,4,5,6,7,8,9,10,11,12,14,17]
    slots = {b: i for i, b in enumerate(bl)}
    for st in range(18):
        if st == o.fastb - 2:
            e(f"s_mov_b64 exec, 3\nbuffer_load_dwordx2 v[{V_TMP}:{V_TMP+1}], v{V_ID}, s[{SRD_WS}:{SRD_WS+3}], 0 offen sc1\ns_mov_b64 exec, -1")
        if o.touch and st == o.fastb - 2:
            e(f"""
            v_lshlrev_b32 v20, 7, v0
            s_mul_i32 s{S_OFF}, s{S_CU}, 384
            s_add_u32 s{S_OFF}, s{S_OFF}, {WS_PF}
            s_mov_b64 exec, 7
            buffer_load_dword v24, v20, s[{SRD_WS}:{SRD_WS+3}], s{S_OFF} offen sc1
            s_lshl_b32 s{S_OFF}, s{S_CU}, 7
            s_add_u32 s{S_OFF}, s{S_OFF}, {WS_HF}
            s_mov_b64 exec, 1
            buffer_load_dword v25, v20, s[{SRD_WS}:{SRD_WS+3}], s{S_OFF} offen
            s_mov_b64 exec, -1
            """)
        for sg, tb in enumerate((o.t0b, o.t1b, o.t2b)):
            if o.ctouch and st == tb:
                e(f"""
                s_mul_i32 s{S_OFF}, s{S_CU}, 24576
                s_add_u32 s{S_OFF}, s{S_OFF}, {WS_H + sg*UNIT}
                buffer_load_dword v{21+sg}, v20, s[{SRD_WS}:{SRD_WS+3}], s{S_OFF} offen
                """)
        if st == o.fastb: e("s_waitcnt lgkmcnt(0)")
        if st == o.fastb - 1:
            e(f"""
            s_mov_b64 exec, 3
            s_mov_b32 s{S_CNT}, {SPIN_MAX}
            s_waitcnt vmcnt({(2 + (o.ctouch and o.fastb - 2 <= o.t0b <= o.fastb - 1)) if o.touch else 0})
            s_branch L_check_id
            L_poll_id:
            buffer_load_dwordx2 v[{V_TMP}:{V_TMP+1}], v{V_ID}, s[{SRD_WS}:{SRD_WS+3}], 0 offen sc1
            s_waitcnt vmcnt(0)
            L_check_id:
            v_subrev_co_u32 v4, vcc, s{S_TAG}, v{V_TMP}
            v_mov_b32 v6, s{S_TAG+1}
            s_nop 0
            v_subb_co_u32 v5, vcc, v{V_TMP+1}, v6, vcc
            v_subrev_u32 v4, 16, v4
            v_lshrrev_b32 v6, 4, v4
            v_or_b32 v6, v6, v5
            v_cmp_ne_u32 vcc, 0, v6
            s_sub_u32 s{S_CNT}, s{S_CNT}, 1
            s_cmp_eq_u32 s{S_CNT}, 0
            s_cbranch_scc1 L_id_done
            s_nop 1
            s_cbranch_vccz L_id_done
            s_sleep 1
            s_branch L_poll_id
            L_id_done:
            v_cmp_ne_u32 vcc, s{S_XCC}, v4
            s_mov_b32 s{S_FAST}, {0 if o.force_slow else 1}
            s_nop 1
            s_cmp_eq_u64 vcc, 0
            s_cselect_b32 s{S_FAST}, s{S_FAST}, 0
            s_mov_b64 exec, 1
            v_mov_b32 v4, s{S_FAST}
            v_mov_b32 v5, {FASTW}
            ds_write_b32 v5, v4
            s_mov_b64 exec, -1
            """)
        if st == o.h0b: _poll(e, o, "h0", V_POLL, 0, "0xfff", V_TAG, V_TMP)
        if st == o.h1b: _poll(e, o, "h1", V_POLL, 32, "0xfff", V_TAG, V_TMP)
        if st == o.h2b: _poll(e, o, "h2", V_POLL, 64, "0xfff", V_TAG, V_TMP)
        e("s_barrier")
        if st in slots: stamp(slots[st])
    if o.stamps:
        e(f"s_waitcnt lgkmcnt(0)")
        e(f"s_lshl_b32 s3, s{S_CU}, 9\ns_add_u32 s3, s3, {WS_ST}")
        e("s_mov_b64 exec, 1\nv_mov_b32 v1, 0")
        for k in range(0, 32, 4):
            for q in range(4): e(f"v_mov_b32 v{4+q}, s{S_STAMP+k+q}")
            e(f"buffer_store_dwordx4 v[4:7], v1, s[{SRD_WS}:{SRD_WS+3}], s3 offen offset:{k*4}\ns_nop 1")
        e(f"v_mov_b32 v4, s{S_FAST}\nbuffer_store_dword v4, v1, s[{SRD_WS}:{SRD_WS+3}], s3 offen offset:128")
        e("s_mov_b64 exec, -1")
    e("s_branch L_gather")

V_T1, V_T1B, V_T2, V_T2B = 2, 3, 4, 5
V_X = 6; V_X8 = 10
V_PF, V_PV = 6, 7
V_H, V_H8, V_FW, V_HG = 14, 15, 16, 17
V_HF = 1
V_TAG = 18
V_EP = 20
V_P = 24
V_WF = 32
V_ACC1 = 64
V_XF = 112
S_MH, S_NH, S_HST, S_NL2E = 48, 49, 50, 51
S_PO = 52
S_PFB = 54

class Stream:
    def __init__(self, e): self.e = e; self.nlds = 0; self.done = 0; self.count = 0; self.fast_ok = False; self.flags = set(); self.hold_silu = 0
    def emit(self, s):
        for l in s.split("\n"):
            l = l.strip()
            if l:
                self.e(l)
                if not l.endswith(":"): self.count += 1
    def lds(self, s):
        self.emit(s); self.nlds += 1; return self.nlds
    def wait_lds(self, opid):
        if opid <= self.done: return
        n = min(self.nlds - opid, 15)
        self.emit(f"s_waitcnt lgkmcnt({n})"); self.done = self.nlds - n

_uid = [0]
OUTLINE = []
NOST = [False, False]
def dual(txt):
    _uid[0] += 1; k = _uid[0]
    OUTLINE.append(f"L_ds{k}:\n{txt} sc1\ns_branch L_dd{k}")
    return (f"s_cmp_eq_u32 s{S_FAST}, 0\ns_cbranch_scc1 L_ds{k}\n{txt}\nL_dd{k}:")

def silu_ops(acc, s, noep=False):
    ops = []
    for q in range(4):
        v = [acc + 4 * q + r for r in range(4)]
        t = [V_EP + r for r in range(4)]
        if not noep:
            for r in range(4): ops.append(("silu", f"v_mul_f32 v{t[r]}, s{S_NL2E}, v{v[r]}"))
            for r in range(4): ops.append(("v", f"v_exp_f32 v{t[r]}, v{t[r]}"))
            for r in range(4): ops.append(("v", f"v_add_f32 v{t[r]}, 1.0, v{t[r]}"))
            for r in range(4): ops.append(("v", f"v_rcp_f32 v{t[r]}, v{t[r]}"))
            for r in range(4): ops.append(("silu", f"v_mul_f32 v{v[r]}, v{v[r]}, v{t[r]}"))
        ops.append(("silu", f"v_cvt_pk_bf16_f32 v{V_P+2*q}, v{v[0]}, v{v[1]}"))
        ops.append(("silu", f"v_cvt_pk_bf16_f32 v{V_P+2*q+1}, v{v[2]}, v{v[3]}"))
    for tt in range(2):
        ops.append(("st", "s_nop 0" if NOST[0] else dual(f"buffer_store_dwordx4 v[{V_P+4*tt}:{V_P+4*tt+3}], v{V_HG}, s[{SRD_WS}:{SRD_WS+3}], s{S_HST} offen offset:{tt*1024}")))
    if s < 2: ops.append(("v", f"s_add_u32 s{S_HST}, s{S_HST}, {UNIT}"))
    return ops

def hflag_ops(s, n):
    return [("v", f"s_waitcnt vmcnt({n})\ns_mov_b64 exec, 1"),
            ("st", dual(f"buffer_store_dwordx2 v[{V_TAG}:{V_TAG+1}], v{V_HF}, s[{SRD_WS}:{SRD_WS+3}], 0 offen offset:{s*32}")),
            ("flag%d" % s, "s_mov_b64 exec, -1")]

def pflag(e, u, n):
    e(f"""
    s_waitcnt vmcnt({n})
    s_mov_b64 exec, 0xf
    buffer_store_dwordx2 v[{V_TAG}:{V_TAG+1}], v{V_PF}, s[{SRD_WS}:{SRD_WS+3}], 0 offen offset:{u*128} sc1
    s_mov_b64 exec, -1
    """)

def compute(e, o):
    e("L_compute:")
    if o.prio: e(f"s_setprio {o.prio}")
    common_ids(e)
    e(f"""
    s_lshr_b32 s{S_MH}, s{S_WAVE}, 1
    s_and_b32 s{S_NH}, s{S_WAVE}, 1
    s_mov_b32 s{S_NL2E}, 0xbfb8aa3b
    v_lshrrev_b32 v20, 5, v0
    v_lshrrev_b32 v21, 4, v0
    v_and_b32 v21, 1, v21
    v_and_b32 v22, 15, v0
    v_lshrrev_b32 v23, 2, v22
    v_and_b32 v22, 3, v22
    v_lshrrev_b32 v24, 1, v22
    v_lshl_add_u32 v24, v21, 1, v24
    s_lshl_b32 s{S_T0}, s{S_NH}, 2
    v_add_u32 v24, s{S_T0}, v24
    v_and_b32 v25, 2, v23
    v_lshlrev_b32 v25, 1, v25
    v_xor_b32 v24, v24, v25
    v_lshlrev_b32 v24, 4, v24
    v_and_b32 v22, 1, v22
    v_lshl_add_u32 v24, v22, 3, v24
    v_lshl_add_u32 v24, v23, 7, v24
    v_add_u32 v24, {RING}, v24
    v_lshl_add_u32 v{V_T1}, v20, 10, v24
    v_lshl_add_u32 v{V_T2}, v20, 9, v24
    v_add_u32 v{V_T1B}, {8*UNIT}, v{V_T1}
    v_add_u32 v{V_T2B}, {8*UNIT}, v{V_T2}
    v_and_b32 v25, 31, v0
    v_lshrrev_b32 v26, 1, v25
    v_and_b32 v26, 7, v26
    v_xor_b32 v26, v20, v26
    v_lshlrev_b32 v26, 4, v26
    s_lshl_b32 s{S_T1}, s{S_MH}, 12
    v_lshl_add_u32 v26, v25, 7, v26
    v_add_u32 v{V_X}, s{S_T1}, v26
    v_xor_b32 v{V_X+1}, 32, v{V_X}
    v_xor_b32 v{V_X+2}, 64, v{V_X}
    v_xor_b32 v{V_X+3}, 96, v{V_X}
    """)
    for ks in range(4): e(f"v_add_u32 v{V_X8+ks}, {8*UNIT}, v{V_X+ks}")
    e(f"""
    v_lshlrev_b32 v27, 4, v0
    v_add_u32 v{V_H}, s{S_T1}, v27
    v_add_u32 v{V_H8}, {8*UNIT}, v{V_H}
    s_lshl_b32 s{S_T0}, s{S_NH}, 11
    v_add_u32 v{V_HG}, s{S_T0}, v{V_H}
    s_mul_i32 s{S_HST}, s{S_CU}, 24576
    s_add_u32 s{S_HST}, s{S_HST}, {WS_H}
    s_lshl_b32 s{S_T0}, s{S_CU}, 7
    s_lshl_b32 s{S_T1}, s{S_WAVE}, 3
    s_add_u32 s{S_T0}, s{S_T0}, s{S_T1}
    s_add_u32 s{S_T0}, s{S_T0}, {WS_HF}
    v_mov_b32 v{V_HF}, s{S_T0}
    s_mul_i32 s{S_T0}, s{S_MT}, 3
    s_add_u32 s{S_T0}, s{S_T0}, s{S_G}
    s_lshl_b32 s{S_T1}, s{S_MH}, 2
    s_mul_i32 s{S_T1}, s{S_T1}, 24
    s_add_u32 s{S_T0}, s{S_T0}, s{S_T1}
    s_mul_i32 s{S_PO}, s{S_T0}, 24576
    s_mul_i32 s{S_T1}, s{S_J}, 3072
    s_add_u32 s{S_PO}, s{S_PO}, s{S_T1}
    s_lshl_b32 s{S_T1}, s{S_NH}, 9
    s_add_u32 s{S_PO}, s{S_PO}, s{S_T1}
    s_add_u32 s{S_PO}, s{S_PO}, {WS_P}
    s_add_u32 s{S_PO+1}, s{S_PO}, {2*24*24576}
    s_mul_i32 s{S_T0}, s{S_T0}, 384
    s_lshl_b32 s{S_T1}, s{S_J}, 4
    s_add_u32 s{S_T0}, s{S_T0}, s{S_T1}
    s_lshl_b32 s{S_T1}, s{S_NH}, 3
    s_add_u32 s{S_T0}, s{S_T0}, s{S_T1}
    s_add_u32 s{S_PFB}, s{S_T0}, {WS_PF}
    v_mov_b32 v{V_FW}, {FASTW}
    s_waitcnt lgkmcnt(0)
    """)
    load_epoch(e)
    finish_tag(e)
    e(f"v_mov_b32 v{V_TAG}, s{S_TAG}\nv_mov_b32 v{V_TAG+1}, s{S_TAG+1}\ns_waitcnt vmcnt(0)")

    tasks = []
    def ringbase(n, vA, vB):
        slot = n % R
        return (vA, slot * UNIT) if slot < 8 else (vB, (slot - 8) * UNIT)
    for n in range(27):
        st = n // 3; s = n // 9; i = n % 9
        base, so = ringbase(n, V_T1, V_T1B)
        for ks in range(4):
            t = dict(step=st, first=(n % 3 == 0 and ks == 0), idx=len(tasks))
            t["wr"] = [(base, so + (16 * ks + 4 * b) * 128) for b in range(2)]
            xf = V_XF + (i * 4 + ks) * 4
            t["pre"] = []
            if s == 0:
                xb = (V_X8 + ks) if i == 8 else (V_X + ks)
                t["pre"] = [f"ds_read_b128 v[{xf}:{xf+3}], v{xb} offset:{0 if i == 8 else i*UNIT}"]
            acc = V_ACC1 + 16 * (s & 1)
            t["mf"] = lambda wf, acc=acc, xf=xf, z=(i == 0 and ks == 0): f"v_mfma_f32_32x32x16_bf16 v[{acc}:{acc+15}], v[{wf}:{wf+3}], v[{xf}:{xf+3}], " + ("0" if z else f"v[{acc}:{acc+15}]")
            tasks.append(t)
    seen_p, seen_u, last_u = set(), set(), {}
    ACCU = {0: V_ACC1 + 16, 1: V_ACC1 + 32, 2: V_ACC1}
    for q, (p, u) in enumerate(P2):
        n = 27 + q; st = n // 3
        base, so = ringbase(n, V_T2, V_T2B)
        for ks in range(4):
            t = dict(step=st, first=(n % 3 == 0 and ks == 0), idx=len(tasks))
            t["wr"] = [(base, so + (16 * ks + 8 * b) * 128) for b in range(2)]
            hf = V_XF + (p * 4 + ks) * 4
            t["pre"] = []
            if p not in seen_p:
                hb = V_H8 if p == 8 else V_H
                t["pre"] = [f"ds_read_b128 v[{hf}:{hf+3}], v{hb} offset:{(0 if p == 8 else p*UNIT) + ks*1024}"]
            acc = ACCU[u]
            t["mf"] = lambda wf, acc=acc, hf=hf, z=(u not in seen_u and ks == 0): f"v_mfma_f32_32x32x16_bf16 v[{acc}:{acc+15}], v[{hf}:{hf+3}], v[{wf}:{wf+3}], " + ("0" if z else f"v[{acc}:{acc+15}]")
            tasks.append(t); last_u[u] = t["idx"]
        seen_p.add(p); seen_u.add(u)
    global PUBACC
    n = len(tasks)
    S = Stream(e)
    NP = n // 2
    side = []; side_start = [0]; hold = [0]; cur = [0]
    last_of_step = {}
    for t in tasks: last_of_step[t["step"]] = t["idx"]
    def pubops(u):
        ops = []
        a = ACCU[u]
        for q in range(8): ops.append(("v", f"v_cvt_pk_bf16_f32 v{V_P+q}, v{a+2*q}, v{a+2*q+1}"))
        ops.append(("v", "s_nop 0"))
        for q in range(2):
            d = V_P + 4 * q
            ops.append(("v", f"v_permlane32_swap_b32 v{d}, v{d+2}"))
            ops.append(("v", f"v_permlane32_swap_b32 v{d+1}, v{d+3}"))
        if not o.x_nopub:
            for q in range(2):
                d = V_P + 4 * q
                ops.append(("st", f"buffer_store_dwordx4 v[{d}:{d+3}], v{V_PV}, s[{SRD_WS}:{SRD_WS+3}], s{S_PO+q} offen offset:{u*1024} sc1"))
            ops.append(("v", "s_nop 0"))
        return ops
    def cost(kind, txt):
        if kind == "lds": return 24
        if kind == "st": return 16
        if txt.startswith(("v_exp", "v_rcp")): return 8
        if txt.startswith("s_") and not txt.startswith(("s_waitcnt", "s_nop")): return 2
        return 4
    def pop_side(budget):
        used = 0
        while side and S.count >= side_start[0] and cur[0] >= hold[0]:
            kind, txt = side[0]
            if kind == "gap": side.pop(0); hold[0] = cur[0] + txt; continue
            if kind == "st" and "L_ds" in txt and not S.fast_ok: break
            if kind == "silu" and S.count < S.hold_silu: break
            c = cost(kind, txt)
            if used and used + c > budget: break
            side.pop(0)
            if kind == "lds": S.lds(txt)
            else: S.emit(txt)
            if kind.startswith("flag"): S.flags.add(int(kind[4:]))
            used += c
    NR = o.LP + 1
    def tr_reads(q):
        for h in range(2):
            t = tasks[2*q + h]
            wf = V_WF + 8 * (q % NR) + 4 * h
            t["wf"] = wf
            for b, (base, off) in enumerate(t["wr"]):
                t["last"] = S.lds(f"ds_read_b64_tr_b16 v[{wf+2*b}:{wf+2*b+1}], v{base} offset:{off}")
    def pre_reads(q):
        k = 0
        for h in range(2):
            t = tasks[2*q + h]
            for x in t["pre"]:
                t["last"] = S.lds(x); k += 1
        return k
    def barrier(step):
        for fs, fb in ((0, o.h0b), (1, o.h1b), (2, o.h2b)):
            if step == fb: assert fs in S.flags, f"flag {fs} must be sent before B_{fb} (the control wave waits for it there)"
        if o.astamp and o.astamp <= step < o.astamp + 6: S.emit(f"s_memtime s[{S_STAMP+16+2*(step-o.astamp)}:{S_STAMP+17+2*(step-o.astamp)}]")
        S.emit("s_waitcnt lgkmcnt(0)"); S.done = S.nlds
        S.emit("s_barrier")
    late_addr = [("v", f"v_and_b32 v{V_PV}, 31, v0"), ("v", f"v_lshrrev_b32 v{V_PF}, 5, v0"), ("v", f"v_lshlrev_b32 v{V_PV}, 4, v{V_PV}"),
                 ("v", f"v_mul_u32_u24 v{V_PF}, {24*24576}, v{V_PF}"), ("v", f"v_add_u32 v{V_PV}, v{V_PV}, v{V_PF}"),
                 ("v", f"v_mul_u32_u24 v{V_PF}, {24*384}, v0"), ("v", f"v_add_u32 v{V_PF}, s{S_PFB}, v{V_PF}")]
    budget = o.epb
    pubq = []
    fast_known = False
    barrier(0)
    for q0 in range(o.LP):
        tr_reads(q0); pre_reads(q0)
    for q in range(NP):
        cur[0] = q
        A, B = tasks[2*q], tasks[2*q+1]
        nq = q + o.LP
        deferred = False
        if nq < NP:
            if tasks[2*nq]["first"]:
                barrier(tasks[2*nq]["step"]); deferred = True
            else:
                tr_reads(nq)
        if A["first"] and A["step"] == 11:
            assert not any(x[0] == "silu" for x in side), "acc of sub-tile 2 still in use"
        S.wait_lds(max(A["last"], B["last"]))
        S.emit(A["mf"](A["wf"]))
        if deferred:
            if tasks[2*nq]["step"] == o.fastb: S.lds(f"ds_read_b32 v{V_FW}, v{V_FW}")
            tr_reads(nq); pre_reads(nq)
        else:
            k = pre_reads(nq) if nq < NP else 0
            pop_side(budget if k == 0 else max(budget - 24, 4))
        S.emit(B["mf"](B["wf"]))
        if A["first"] and A["step"] == o.fastb:
            S.emit(f"v_readfirstlane_b32 s{S_FAST}, v{V_FW}"); S.fast_ok = True
        im = B["idx"]
        if im == last_of_step.get(2):
            side += silu_ops(V_ACC1, 0, o.x_noep) + [("gap", o.gap0)] + hflag_ops(0, 0); side_start[0] = S.count + 12; budget = o.epb
        if im == last_of_step.get(5):
            assert not any(x[0] == "silu" or x[0] == "st" and "x4" in x[1] for x in side), len(side)
            side += silu_ops(V_ACC1 + 16, 1, o.x_noep); budget = o.epb
            S.hold_silu = S.count + 12
        if im == last_of_step.get(8):
            assert not side, len(side)
            ops2 = silu_ops(V_ACC1, 2, o.x_noep)
            k1 = min(o.f1pos, len(ops2) - 2)
            ops2 = ops2[:k1] + hflag_ops(1, 0) + ops2[k1:]
            side += ops2 + late_addr + [("gap", o.gap2)] + hflag_ops(2, 0); side_start[0] = S.count + 12; budget = o.epb2
        for u, at in ((0, o.pub0), (1, o.pub1)):
            if at and q >= NP - at and im >= last_u[u] + 4 and u not in pubq and not side:
                pubq.append(u); side += pubops(u); side_start[0] = S.count; budget = 24
    assert not side
    e("s_nop 7")
    if o.stamps: e(f"s_memtime s[{S_STAMP+4}:{S_STAMP+5}]")
    e("s_nop 3")
    rest = [u for u in (0, 1, 2) if u not in pubq]
    order = pubq + rest
    for u in rest:
        for k, x in pubops(u): e(x)
    for i, u in enumerate(order):
        younger = 2 * (len(order) - 1 - i) + i
        if o.x_nopub: younger = i
        if o.stamps and i == 2: e(f"s_memtime s[{S_STAMP+14}:{S_STAMP+15}]")
        pflag(e, u, younger)
    if o.stamps:
        e(f"s_memtime s[{S_STAMP+6}:{S_STAMP+7}]")
        e(f"s_cmp_lg_u32 s{S_WAVE}, 0\ns_cbranch_scc1 L_end\ns_waitcnt lgkmcnt(0)")
        e(f"s_lshl_b32 s3, s{S_CU}, 9\ns_add_u32 s3, s3, {WS_ST + 256}\ns_mov_b64 exec, 1\nv_mov_b32 v1, 0")
        for k in range(0, 16, 4):
            for q in range(4): e(f"v_mov_b32 v{4+q}, s{S_STAMP+k+q}")
            e(f"buffer_store_dwordx4 v[4:7], v1, s[{SRD_WS}:{SRD_WS+3}], s3 offen offset:{k*4}\ns_nop 1")
        if o.astamp:
            e(f"s_lshl_b32 s3, s{S_CU}, 9\ns_add_u32 s3, s3, {WS_ST + 192*512}")
            for k, r0 in enumerate((S_STAMP, S_STAMP+16, S_STAMP+20, S_STAMP+24)):
                for q in range(4): e(f"v_mov_b32 v{4+q}, s{r0+q}")
                e(f"buffer_store_dwordx4 v[4:7], v1, s[{SRD_WS}:{SRD_WS+3}], s3 offen offset:{k*16}\ns_nop 1")
        e("s_waitcnt vmcnt(0)")
    e("s_endpgm")

def gather(e, o):
    VT, VA, VL, VD, VS = 2, 4, 5, 8, 44
    S_U = 48
    e("L_gather:")
    e(f"""
    s_cmp_eq_u32 s{S_WAVE}, 7
    s_cbranch_scc1 L_end
    s_sub_u32 s{S_U}, s{S_WAVE}, 4
    s_mul_i32 s3, s{S_CU}, 384
    s_lshl_b32 s50, s{S_U}, 7
    s_add_u32 s3, s3, s50
    s_add_u32 s3, s3, {WS_PF}
    v_lshlrev_b32 v{VA}, 3, v0
    v_add_u32 v{VA}, s3, v{VA}
    v_lshlrev_b32 v{VL}, 4, v0
    v_mov_b32 v{VT}, s{S_TAG}
    v_mov_b32 v{VT+1}, s{S_TAG+1}
    s_mul_i32 s52, s{S_CU}, 24576
    s_lshl_b32 s53, s{S_U}, 10
    s_add_u32 s52, s52, s53
    s_add_u32 s52, s52, {WS_P}
    v_lshlrev_b32 v6, 1, v0
    s_lshl_b32 s50, s{S_MT}, 6
    s_lshl_b32 s51, s{S_J}, 3
    s_add_u32 s50, s50, s51
    s_mul_i32 s50, s50, 1152
    s_mul_i32 s51, s{S_G}, 384
    s_add_u32 s50, s50, s51
    s_lshl_b32 s51, s{S_U}, 7
    s_add_u32 s50, s50, s51
    s_add_u32 s53, s50, 4608
    s_mov_b32 s54, 0xffff0000
    """)
    _poll(e, o, "p", VA, 0, "0xffff", VT, 40, o.psleep)
    if o.stamps: e(f"s_memtime s[{S_STAMP+8}:{S_STAMP+9}]")
    for p in range(8):
        e(f"buffer_load_dwordx4 v[{VD+4*p}:{VD+4*p+3}], v{VL}, s[{SRD_WS}:{SRD_WS+3}], s52 offen sc1")
        if p < 7: e(f"s_add_u32 s52, s52, 3072")
    e(f"""
    s_or_b32 s51, s{S_J}, s{S_G}
    s_or_b32 s51, s51, s{S_U}
    s_cmp_lg_u32 s51, 0
    s_cbranch_scc1 L_noepoch
    s_lshl_b32 s51, s{S_MT}, 7
    v_mov_b32 v{VA}, s51
    s_mov_b64 exec, 1
    buffer_store_dwordx2 v[{VT}:{VT+1}], v{VA}, s[{SRD_WS}:{SRD_WS+3}], 0 offen sc1
    s_mov_b64 exec, -1
    s_waitcnt vmcnt(0)
    L_noepoch:
    """)
    for p in range(8):
        e(f"s_waitcnt vmcnt({7-p})")
        for d in range(4):
            src = VD + 4 * p + d
            if p == 0:
                e(f"v_lshlrev_b32 v{VS+2*d}, 16, v{src}\nv_and_b32 v{VS+2*d+1}, s54, v{src}")
            else:
                e(f"v_lshlrev_b32 v{VS+8}, 16, v{src}\nv_and_b32 v{VS+9}, s54, v{src}")
                e(f"v_add_f32 v{VS+2*d}, v{VS+2*d}, v{VS+8}\nv_add_f32 v{VS+2*d+1}, v{VS+2*d+1}, v{VS+9}")
    for d in range(4):
        e(f"v_cvt_pk_bf16_f32 v{VD+d}, v{VS+2*d}, v{VS+2*d+1}")
    for d in range(4):
        so = "s50" if d < 2 else "s53"
        e(f"buffer_store_short v{VD+d}, v6, s[{SRD_OUT}:{SRD_OUT+3}], {so} offen offset:{(2*d % 4)*1152}")
        e(f"buffer_store_short_d16_hi v{VD+d}, v6, s[{SRD_OUT}:{SRD_OUT+3}], {so} offen offset:{((2*d+1) % 4)*1152}")
    if o.stamps:
        e(f"""
        s_cmp_lg_u32 s{S_WAVE}, 6
        s_cbranch_scc1 L_end
        s_waitcnt vmcnt(0)
        s_memtime s[{S_STAMP+10}:{S_STAMP+11}]
        s_memrealtime s[{S_STAMP+12}:{S_STAMP+13}]
        s_waitcnt lgkmcnt(0)
        s_lshl_b32 s3, s{S_CU}, 9
        s_add_u32 s3, s3, {WS_ST + 384}
        s_mov_b64 exec, 1
        v_mov_b32 v1, 0
        """)
        for k in range(0, 16, 4):
            for q in range(4): e(f"v_mov_b32 v{4+q}, s{S_STAMP+k+q}")
            e(f"buffer_store_dwordx4 v[4:7], v1, s[{SRD_WS}:{SRD_WS+3}], s3 offen offset:{k*4}\ns_nop 1")
        e("s_waitcnt vmcnt(0)")
    e("s_endpgm")

def prefetch(e, o):
    e("L_prefetch:")
    e(f"""
    s_sub_u32 s3, s3, 24
    s_mov_b32 s52, s3
    s_mov_b32 s{S_T0}, 10923
    v_mul_u32_u24 v1, s{S_T0}, v0
    v_lshrrev_b32 v1, 16, v1
    v_mul_u32_u24 v2, 6, v1
    v_sub_u32 v2, v0, v2
    v_lshrrev_b32 v3, 1, v2
    v_and_b32 v2, 1, v2
    v_mul_u32_u24 v3, 384, v3
    v_lshl_add_u32 v3, v2, 7, v3
    v_mul_u32_u24 v1, 9216, v1
    v_add_u32 v1, v1, v3
    s_mul_i32 s{S_T0}, s3, {72*9216}
    s_mul_i32 s{S_T1}, s{S_J}, 1152
    s_add_u32 s{S_T0}, s{S_T0}, s{S_T1}
    s_add_u32 s{S_T0}, s{S_T0}, 128
    s_mul_i32 s{S_T1}, s{S_J}, {576*1152}
    s_mul_i32 s3, s3, {72*1152}
    s_add_u32 s{S_T1}, s{S_T1}, s3
    v_lshlrev_b32 v4, 7, v0
    v_add_u32 v5, 65536, v4
    v_min_u32 v5, {647*128}, v5
    v_cmp_gt_u32 vcc, 432, v0
    s_waitcnt lgkmcnt(0)
    """)
    srd(e, SRD_B, S_W1, 576*4608*2)
    srd(e, SRD_C, S_W2, 576*4608*2)
    e(f"""
    v_mov_b32 v6, 0
    v_cndmask_b32 v1, v6, v1, vcc
    buffer_load_dword v8, v1, s[{SRD_B}:{SRD_B+3}], s{S_T0} offen
    """)
    if o.ptouch:
        srd(e, SRD_WS, S_WS, WS_SIZE)
        e(f"""
        s_mul_i32 s50, s{S_J}, {24*24576}
        s_mul_i32 s51, s52, {576*128}
        s_add_u32 s50, s50, s51
        s_add_u32 s50, s50, {WS_H}
        v_min_u32 v11, 63, v0
        v_lshlrev_b32 v11, 7, v11
        v_add_u32 v11, 65536, v11
        """)
    e("s_waitcnt vmcnt(0)")
    if o.ptouch == 2:
        e(f"buffer_load_dword v12, v4, s[{SRD_WS}:{SRD_WS+3}], s50 offen\nbuffer_load_dword v13, v11, s[{SRD_WS}:{SRD_WS+3}], s50 offen")
    e(f"""
    buffer_load_dword v9, v4, s[{SRD_C}:{SRD_C+3}], s{S_T1} offen
    buffer_load_dword v10, v5, s[{SRD_C}:{SRD_C+3}], s{S_T1} offen
    s_waitcnt vmcnt(0)
    """)
    if o.ptouch == 1:
        e(f"buffer_load_dword v12, v4, s[{SRD_WS}:{SRD_WS+3}], s50 offen\nbuffer_load_dword v13, v11, s[{SRD_WS}:{SRD_WS+3}], s50 offen\ns_waitcnt vmcnt(0)")
    e("s_endpgm")

def build(o):
    if o.order: P2[:] = P2B
    _uid[0] = 0; OUTLINE.clear(); NOST[0] = o.x_nost; NOST[1] = o.x_nodsw
    e = E(); prologue(e, o)
    parts = []
    ls = E(); loader_start(ls, o)
    for lw in range(3):
        x = E(); loader(x, o, lw); parts.append(("loader%d" % lw, x))
    x = E(); control(x, o); parts.append(("control", x))
    x = E(); prefetch(x, o); parts.append(("prefetch", x))
    x = E(); compute(x, o); parts.append(("compute", x))
    eg = E(); gather(eg, o)
    for k, v in parts:
        pre = e.text() + "\n" + (ls.text() + "\n" if k.startswith("loader") else "")
        pr = hazard.check(pre + v.text() + "\n" + eg.text())
        if pr: raise SystemExit(f"hazards in {k}")
    body = "\n".join([e.text(), ls.text()] + [v.text() for k, v in parts] + [eg.text(), "\n".join(OUTLINE), "L_end:", "s_endpgm"])
    nsgpr = 100 if o.stamps else 72
    hdr = f"""; Fused FFN: out = silu(x @ w1) @ w2   (M=512, D=576, F=4608), one launch.
; 192 compute workgroups = 8 F-slices (j) x 8 row tiles (mt) x 3 column groups (g): 4 MFMA waves, 3 LDS-DMA loader waves, 1 control wave;
; @launch grid=({NWG + o.npf},1,1) block=(512,1,1) lds={LDS_BYTES}
.amdgcn_target "amdgcn-amd-amdhsa--gfx950"
.text
.globl {KNAME}
.p2align 8
.type {KNAME},@function
{KNAME}:
"""
    tail = f"""
.section .rodata,"a"
.p2align 6
.amdhsa_kernel {KNAME}
  .amdhsa_next_free_vgpr 256
  .amdhsa_next_free_sgpr {nsgpr}
  .amdhsa_accum_offset 256
  .amdhsa_group_segment_fixed_size 0
  .amdhsa_kernarg_size 48
  .amdhsa_user_sgpr_count 2
  .amdhsa_user_sgpr_kernarg_segment_ptr 1
  .amdhsa_system_sgpr_workgroup_id_x 1
.end_amdhsa_kernel
"""
    return hdr + body + tail

if __name__ == "__main__":
    o = Opt()
    out = sys.argv[1]
    for a in sys.argv[2:]:
        k, v = a.split("=")
        setattr(o, k, bool(int(v)) if isinstance(getattr(Opt, k), bool) else int(v))
    open(out, "w").write(build(o))
    print("wrote", out)
```

```python
import sys, os
sys.path.insert(0, os.path.dirname(__file__))
import hazard

KNAME = "standalone__dense_activation_silu__sampling_kernel"
NWG = 192
NPF = 64
XH = 0
RING = 73728
R = 11
UNIT = 8192
LDS_BYTES = 163840
WS_E, WS_ID, WS_HF, WS_PF, WS_H, WS_P, WS_ST = 0, 4096, 32768, 65536, 262144, 5242880, 16777216
WS_SIZE = 0x10000000
TAGC_LO, TAGC_HI = 0x7F4A7C15, 0x9E3779B9
SPIN_MAX = 100000
FASTW = XH + 3 * UNIT

P2 = [(0,0),(1,0),(2,0), (0,1),(1,1),(2,1), (0,2),(1,2),(2,2), (3,0),(4,0),(5,0), (3,1),(4,1),(5,1),
      (6,0),(7,0),(8,0), (6,1),(7,1),(8,1), (3,2),(4,2),(5,2), (6,2),(7,2),(8,2)]
P2B = [(0,0),(1,0),(2,0), (0,1),(1,1),(2,1), (0,2),(1,2),(2,2), (3,0),(4,0),(5,0), (3,1),(4,1),(5,1),
       (3,2),(4,2),(5,2), (6,0),(7,0),(8,0), (6,1),(7,1),(8,1), (6,2),(7,2),(8,2)]
PCH = [(p % 3, p // 3) for p in range(9)]

class Opt:
    stamps = False
    LP = 3
    pairw = True
    pub0 = 17
    pub1 = 11
    DRAIN = 2
    epb = 52
    epb2 = 110
    f1pos = 8
    h0b = 8
    h1b = 11
    h2b = 13
    fastb = 4
    gap0 = 5
    gap2 = 4
    tlbw = False
    ctouch = False
    ptouch = 3
    t0b = 3
    t1b = 5
    t2b = 7
    order = 0
    touch = 2
    wgap2 = True
    ppipe = 0
    outx4 = 0
    tlbb = 0
    wbl2 = 0
    hsc1 = 2
    early = 1
    astamp = 0
    ep2_rate = 9
    prefetch_code = True
    prio = 0
    npf = 64
    force_slow = False
    sleep = 1
    w_nt = True
    x_noep = False
    x_nodma = False
    x_nopub = False
    x_nost = False
    x_hplain = False
    x_nodsw = False
    psleep = 1
    stampset = 0

class E:
    def __init__(self): self.L = []
    def __call__(self, s):
        for l in s.split("\n"):
            l = l.strip()
            if l: self.L.append(l)
    def text(self): return "\n".join(self.L)

S_X, S_W1, S_W2, S_OUT, S_WS = 4, 6, 8, 10, 12
S_J, S_MT, S_G, S_WAVE, S_CU = 14, 15, 16, 17, 18
S_FAST = 19
S_TAG = 20
S_T0, S_T1 = 22, 23
SRD_A, SRD_B, SRD_C = 24, 28, 32
SRD_WS, SRD_OUT = 36, 40
S_G1, S_G2 = 44, 45
S_CNT = 46
S_STAMP = 64

def srd(e, d, base, size):
    e(f"s_mov_b32 s{d}, s{base}\ns_and_b32 s{d+1}, s{base+1}, 0xffff\ns_mov_b32 s{d+2}, {size}\ns_mov_b32 s{d+3}, 0x20000")

def prologue(e, o):
    e(f"""
    s_cmp_ge_u32 s2, {NWG + o.npf}
    s_cbranch_scc1 L_end
    s_load_dwordx4 s[4:7], s[0:1], 0
    s_load_dwordx4 s[8:11], s[0:1], 16
    s_load_dwordx2 s[12:13], s[0:1], 40
    """)
    if o.prefetch_code:
        e(f"""
        s_getpc_b64 s[{S_T0}:{S_T0+1}]
        L_pf:
        v_lshlrev_b32 v1, 7, v0
        v_min_u32 v1, L_end-L_pf, v1
        global_load_dword v31, v1, s[{S_T0}:{S_T0+1}]
        """)
    if o.stamps:
        e(f"s_memrealtime s[{S_STAMP}:{S_STAMP+1}]\ns_memtime s[{S_STAMP+2}:{S_STAMP+3}]")
    e(f"""
    v_lshrrev_b32 v1, 6, v0
    s_and_b32 s{S_J}, s2, 7
    s_lshr_b32 s3, s2, 3
    v_readfirstlane_b32 s{S_WAVE}, v1
    s_cmp_ge_u32 s2, {NWG}
    s_cbranch_scc1 L_prefetch
    s_mul_i32 s{S_MT}, s3, 171
    s_lshr_b32 s{S_MT}, s{S_MT}, 9
    s_mul_i32 s{S_G}, s{S_MT}, 3
    s_sub_u32 s{S_G}, s3, s{S_G}
    v_and_b32 v0, 63, v0
    s_cmp_lt_u32 s{S_WAVE}, 4
    s_cbranch_scc1 L_compute
    s_cmp_eq_u32 s{S_WAVE}, 7
    s_cbranch_scc1 L_control
    """)

def common_ids(e):
    e(f"""
    s_add_u32 s{S_G1}, s{S_G}, 1
    s_cmp_eq_u32 s{S_G1}, 3
    s_cselect_b32 s{S_G1}, 0, s{S_G1}
    s_add_u32 s{S_G2}, s{S_G1}, 1
    s_cmp_eq_u32 s{S_G2}, 3
    s_cselect_b32 s{S_G2}, 0, s{S_G2}
    s_lshl_b32 s{S_CU}, s{S_J}, 3
    s_add_u32 s{S_CU}, s{S_CU}, s{S_MT}
    s_mul_i32 s{S_CU}, s{S_CU}, 3
    s_add_u32 s{S_CU}, s{S_CU}, s{S_G}
    s_lshl_b32 s3, s{S_MT}, 7
    """)

def load_epoch(e):
    e(f"s_load_dwordx2 s[{S_TAG}:{S_TAG+1}], s[{S_WS}:{S_WS+1}], s3")
    srd(e, SRD_WS, S_WS, WS_SIZE)
    srd(e, SRD_OUT, S_OUT, 512*576*2)

def finish_tag(e):
    e(f"""
    s_waitcnt lgkmcnt(0)
    s_add_u32 s{S_TAG}, s{S_TAG}, {TAGC_LO:#x}
    s_addc_u32 s{S_TAG+1}, s{S_TAG+1}, {TAGC_HI:#x}
    """)

def dma_unit(e, srd_r, vp, s_off, half_step, lds, flags="", s_tmp=61, s_lb=None):
    pats = vp if len(vp) == 4 else vp * 4
    m0 = (lambda c: f"s_mov_b32 m0, {c}") if s_lb is None else (lambda c: f"s_add_u32 m0, s{s_lb}, {c}")
    e(f"{m0(lds)}\ns_add_u32 s{s_tmp}, s{s_off}, {half_step}")
    for k in range(4):
        e(f"buffer_load_dwordx4 v{pats[k]}, s[{srd_r}:{srd_r+3}], s{s_off} offen offset:{1024*k} {flags} lds")
    e(f"{m0(lds + 4096)}\ns_nop 0")
    for k in range(4):
        e(f"buffer_load_dwordx4 v{pats[k]}, s[{srd_r}:{srd_r+3}], s{s_tmp} offen offset:{1024*k} {flags} lds")

def issue_barrier(n): return -1 if n < R else (n - R) // 3 + 1

V_LX, V_LW1, V_LW2 = 8, 12, 16
S_C = [48, 49, 50]; S_XO = [51, 52, 53]; S_WO = [54, 55, 56]; S_GB = [57, 58, 59]; S_OFF = 60
S_LW, S_LB = 62, 63
S_LH = 47
V_LIN = 20

def lstamp(e, o, k):
    if o.stamps and not o.astamp: e(f"s_memtime s[{S_STAMP+16+2*k}:{S_STAMP+17+2*k}]")

def loader_start(e, o):
    wf = "nt" if o.w_nt else ""
    e(f"""
    s_sub_u32 s{S_LW}, s{S_WAVE}, 4
    v_lshrrev_b32 v1, 3, v0
    v_and_b32 v2, 7, v0
    v_lshrrev_b32 v6, 1, v1
    v_mul_u32_u24 v5, 1152, v1
    v_xor_b32 v6, v2, v6
    v_lshlrev_b32 v7, 4, v6
    v_add_u32 v{V_LX}, v5, v7
    v_xor_b32 v7, 64, v7
    v_add_u32 v{V_LX+1}, v5, v7
    v_add_u32 v{V_LX+1}, {9216-1024}, v{V_LX+1}
    v_add_u32 v{V_LX+2}, {2*(9216-1024)}, v{V_LX}
    v_add_u32 v{V_LX+3}, {2*(9216-1024)}, v{V_LX+1}
    s_mul_i32 s{S_T0}, s{S_G}, 3
    s_add_u32 s{S_T0}, s{S_T0}, s{S_MT}
    s_add_u32 s{S_T0}, s{S_T0}, s{S_LW}
    s_cmp_ge_u32 s{S_T0}, 9
    s_cselect_b32 s{S_T1}, 9, 0
    s_sub_u32 s{S_C[0]}, s{S_T0}, s{S_T1}
    s_mul_i32 s{S_T0}, s{S_MT}, {64*1152}
    s_lshl_b32 s{S_XO[0]}, s{S_C[0]}, 7
    s_add_u32 s{S_XO[0]}, s{S_XO[0]}, s{S_T0}
    s_lshl_b32 s{S_LB}, s{S_LW}, 13
    v_and_b32 v3, 2, v1
    v_lshlrev_b32 v3, 1, v3
    v_xor_b32 v3, v2, v3
    v_lshlrev_b32 v3, 4, v3
    v_mul_u32_u24 v4, 9216, v1
    v_add_u32 v{V_LW1}, v4, v3
    v_add_u32 v{V_LW2}, v5, v3
    s_mul_i32 s{S_T1}, s{S_J}, 1152
    s_mul_i32 s3, s{S_G}, 384
    s_add_u32 s{S_T1}, s{S_T1}, s3
    s_mul_i32 s3, s{S_C[0]}, {64*9216}
    s_add_u32 s{S_WO[0]}, s{S_T1}, s3
    v_add_u32 v{V_LW1+1}, {1*(73728-1024)}, v{V_LW1}
    v_add_u32 v{V_LW1+2}, {2*(73728-1024)}, v{V_LW1}
    v_add_u32 v{V_LW1+3}, {3*(73728-1024)}, v{V_LW1}
    s_waitcnt lgkmcnt(0)
    """)
    lstamp(e, o, 0)
    srd(e, SRD_A, S_X, 512*576*2)
    XP = [V_LX, V_LX+1, V_LX+2, V_LX+3]; WP = [V_LW1, V_LW1+1, V_LW1+2, V_LW1+3]
    dma_unit(e, SRD_A, XP, S_XO[0], 4*9216, XH, s_lb=S_LB)
    srd(e, SRD_B, S_W1, 576*4608*2)
    dma_unit(e, SRD_B, WP, S_WO[0], 4*73728, RING, wf, s_lb=S_LB)
    lstamp(e, o, 1)
    for k in (1, 2):
        e(f"""
        s_add_u32 s3, s{S_C[k-1]}, 3
        s_cmp_ge_u32 s3, 9
        s_cselect_b32 s{S_C[k]}, 9, 0
        s_sub_u32 s{S_C[k]}, s3, s{S_C[k]}
        s_lshl_b32 s3, s{S_C[k]}, 7
        s_add_u32 s{S_XO[k]}, s{S_T0}, s3
        s_mul_i32 s3, s{S_C[k]}, {64*9216}
        s_add_u32 s{S_WO[k]}, s{S_T1}, s3
        """)
        if (k == 1 and o.early < 2) or not o.early:
            dma_unit(e, SRD_A, XP, S_XO[k], 4*9216, XH + 3*k*UNIT, s_lb=S_LB)
            dma_unit(e, SRD_B, WP, S_WO[k], 4*73728, RING + 3*k*UNIT, wf, s_lb=S_LB)
    if not o.early:
        e(f"s_cmp_eq_u32 s{S_LW}, 2\ns_cbranch_scc1 L_ld_no4")
        e(f"s_add_u32 s{S_OFF}, s{S_WO[0]}, 128")
        dma_unit(e, SRD_B, WP, S_OFF, 4*73728, RING + 9*UNIT, wf, s_lb=S_LB)
        e("L_ld_no4:")
    lstamp(e, o, 2)
    common_ids(e)
    srd(e, SRD_C, S_W2, 576*4608*2)
    for k in (1, 2, 3):
        e(f"v_add_u32 v{V_LW2+k}, {k*(9216-1024)}, v{V_LW2}")
    e(f"""
    s_mul_i32 s{S_T0}, s{S_J}, {576*1152}
    s_mul_i32 s{S_T1}, s{S_G}, 384
    s_add_u32 s{S_T0}, s{S_T0}, s{S_T1}
    """)
    for k, sg in enumerate((S_G, S_G1, S_G2)):
        e(f"s_mul_i32 s3, s{sg}, {192*1152}\ns_add_u32 s{S_GB[k]}, s{S_T0}, s3")
    e(f"""
    s_cmp_eq_u32 s{S_LW}, 1
    s_cselect_b32 s3, s{S_G1}, s{S_G}
    s_cmp_eq_u32 s{S_LW}, 2
    s_cselect_b32 s3, s{S_G2}, s3
    s_sub_u32 s{S_LH}, s{S_CU}, s{S_G}
    s_add_u32 s{S_LH}, s{S_LH}, s3
    s_mul_i32 s{S_LH}, s{S_LH}, 24576
    s_add_u32 s{S_LH}, s{S_LH}, {WS_H}
    v_lshlrev_b32 v{V_LIN}, 4, v0
    """)
    e(f"s_lshl_b32 s3, s{S_MT}, 7")
    load_epoch(e)
    finish_tag(e)
    e(f"""
    s_cmp_eq_u32 s{S_LW}, 1
    s_cbranch_scc1 L_loader1
    s_cmp_eq_u32 s{S_LW}, 2
    s_cbranch_scc1 L_loader2
    """)

def loader(e, o, lw):
    wf = "nt" if o.w_nt else ""
    WP = [V_LW1, V_LW1+1, V_LW1+2, V_LW1+3]; W2P = [V_LW2, V_LW2+1, V_LW2+2, V_LW2+3]
    e(f"L_loader{lw}:")
    XP = [V_LX, V_LX+1, V_LX+2, V_LX+3]
    if o.early == 2: seq = [("x", lw), ("w", lw)]
    elif o.early: seq = [("x", lw), ("w", lw), ("x", 3+lw), ("w", 3+lw)]
    else: seq = [("x", lw), ("w", lw), ("x", 3+lw), ("w", 3+lw), ("x", 6+lw), ("w", 6+lw)] + ([("w", 9+lw)] if 9 + lw < R else [])
    def issue_w(n):
        slot = n % R
        if n < 27:
            s, i = n // 9, n % 9
            t = i // 3
            e(f"s_add_u32 s{S_OFF}, s{S_WO[t]}, {128*s}")
            dma_unit(e, SRD_B, WP, S_OFF, 4*73728, RING + slot*UNIT, wf)
        else:
            p, u = P2[n - 27]
            k, s = PCH[p]
            e(f"s_add_u32 s{S_OFF}, s{S_GB[k]}, {73728*s + 128*u}")
            dma_unit(e, SRD_C, W2P, S_OFF, 4*9216, RING + slot*UNIT, wf)
        seq.append(("w", n))
    hb = {o.h0b: 0, o.h1b: 1, o.h2b: 2}
    hneed = {9: 0, 12: 1, (15 if o.order else 14): 2}
    for st in range(18):
        need = [("w", 3*st + lw)] + ([("x", 3*st + lw)] if st < 3 else []) + ([("h", hneed[st])] if st in hneed else [])
        last = max(seq.index(x) for x in need)
        n = 8 * (len(seq) - 1 - last)
        assert n <= 63
        e(f"s_waitcnt vmcnt({n})")
        if st == 0 and not o.astamp: lstamp(e, o, 3)
        if o.astamp and o.astamp <= st < o.astamp + 6: e(f"s_memtime s[{S_STAMP+16+2*(st-o.astamp)}:{S_STAMP+17+2*(st-o.astamp)}]")
        e("s_barrier")
        if st in hb:
            sg = hb[st]
            e(f"s_add_u32 s{S_OFF}, s{S_LH}, {sg*UNIT}")
            dma_unit(e, SRD_WS, [V_LIN], S_OFF, 4096, XH + (3*sg + lw)*UNIT, "" if o.x_hplain else "sc1"); seq.append(("h", sg))
        if o.early == 2 and st == 0:
            dma_unit(e, SRD_A, XP, S_XO[1], 4*9216, XH + (3 + lw)*UNIT); seq.append(("x", 3 + lw))
            issue_w(3 + lw)
        if o.early and st == 0:
            dma_unit(e, SRD_A, XP, S_XO[2], 4*9216, XH + (6 + lw)*UNIT); seq.append(("x", 6 + lw))
            issue_w(6 + lw)
        if o.early and st == 1 and 9 + lw < R: issue_w(9 + lw)
        for nn in range(R, 54):
            if nn % 3 == lw and issue_barrier(nn) == st:
                if o.x_nodma: seq.append(('w', nn))
                else: issue_w(nn)
    if o.stamps and (lw == 0 or o.astamp):
        base = WS_ST + 192 if not o.astamp else WS_ST + 192*512 + (1 + lw)*64
        e(f"s_waitcnt lgkmcnt(0)\ns_lshl_b32 s3, s{S_CU}, 9\ns_add_u32 s3, s3, {base}\ns_mov_b64 exec, 1\nv_mov_b32 v1, 0")
        for k, r0 in enumerate((S_STAMP, S_STAMP+16, S_STAMP+20, S_STAMP+24)):
            for q in range(4): e(f"v_mov_b32 v{4+q}, s{r0+q}")
            e(f"buffer_store_dwordx4 v[4:7], v1, s[{SRD_WS}:{SRD_WS+3}], s3 offen offset:{k*16}\ns_nop 1")
        e("s_mov_b64 exec, -1")
    e("s_branch L_gather")

def _poll(e, o, name, vaddr, imm, mask, vtag, vtmp, sleep=None):
    sleep = o.sleep if sleep is None else sleep
    e(f"""
    s_mov_b64 exec, {mask}
    s_mov_b32 s{S_CNT}, {SPIN_MAX}
    L_poll_{name}:
    buffer_load_dwordx2 v[{vtmp}:{vtmp+1}], v{vaddr}, s[{SRD_WS}:{SRD_WS+3}], 0 offen offset:{imm} sc1
    s_waitcnt vmcnt(0)
    v_cmp_ne_u64 vcc, v[{vtmp}:{vtmp+1}], v[{vtag}:{vtag+1}]
    s_sub_u32 s{S_CNT}, s{S_CNT}, 1
    s_cmp_eq_u32 s{S_CNT}, 0
    s_cbranch_scc1 L_polldone_{name}
    s_nop 1
    s_cbranch_vccz L_polldone_{name}
    """)
    if sleep: e(f"s_sleep {sleep}")
    e(f"""
    s_branch L_poll_{name}
    L_polldone_{name}:
    s_mov_b64 exec, -1
    """)

def control(e, o):
    V_LIN, V_POLL, V_TAG, V_TMP, V_ID = 8, 9, 10, 12, 14
    S_OFF, S_H1, S_H2, S_XCC, S_H0 = 60, 48, 49, 50, 51
    e("L_control:")
    common_ids(e)
    e("s_waitcnt lgkmcnt(0)")
    load_epoch(e)
    def tlb_warm():
        e(f"""
        v_min_u32 v26, 39, v0
        v_lshlrev_b32 v26, 18, v26
        buffer_load_dword v29, v26, s[{SRD_WS}:{SRD_WS+3}], 0 offen offset:2048 sc1
        v_min_u32 v27, 8, v0
        v_lshlrev_b32 v27, 16, v27
        buffer_load_dword v28, v27, s[{SRD_OUT}:{SRD_OUT+3}], 0 offen sc1
        """)
    if o.tlbw and not o.tlbb: tlb_warm()
    e(f"""
    s_getreg_b32 s{S_XCC}, hwreg(HW_REG_XCC_ID, 0, 4)
    v_lshlrev_b32 v{V_LIN}, 4, v0
    s_sub_u32 s{S_T0}, s{S_CU}, s{S_G}
    s_add_u32 s{S_H1}, s{S_T0}, s{S_G1}
    s_add_u32 s{S_H2}, s{S_T0}, s{S_G2}
    s_lshl_b32 s{S_T0}, s{S_H1}, 7
    s_lshl_b32 s{S_T1}, s{S_H2}, 7
    v_mov_b32 v1, s{S_T0}
    v_mov_b32 v2, s{S_T1}
    s_lshl_b32 s{S_OFF}, s{S_CU}, 7
    v_mov_b32 v7, s{S_OFF}
    v_lshrrev_b32 v3, 2, v0
    v_cmp_eq_u32 vcc, 1, v3
    v_and_b32 v6, 3, v0
    v_lshlrev_b32 v6, 3, v6
    v_cndmask_b32 v4, v7, v1, vcc
    v_cmp_eq_u32 vcc, 2, v3
    s_mul_i32 s{S_H1}, s{S_H1}, 24576
    s_mul_i32 s{S_H2}, s{S_H2}, 24576
    v_cndmask_b32 v4, v4, v2, vcc
    v_add_u32 v4, {WS_HF}, v4
    v_add_u32 v{V_POLL}, v4, v6
    v_cmp_eq_u32 vcc, 0, v0
    s_mul_i32 s{S_H0}, s{S_CU}, 24576
    s_add_u32 s{S_H0}, s{S_H0}, {WS_H}
    v_cndmask_b32 v4, v2, v1, vcc
    v_add_u32 v{V_ID}, {WS_ID}, v4
    s_add_u32 s{S_H1}, s{S_H1}, {WS_H}
    s_add_u32 s{S_H2}, s{S_H2}, {WS_H}
    """)
    finish_tag(e)
    e(f"""
    s_add_u32 s{S_T0}, s{S_XCC}, 16
    s_add_u32 s{S_T0}, s{S_TAG}, s{S_T0}
    s_addc_u32 s{S_T1}, s{S_TAG+1}, 0
    v_mov_b32 v4, s{S_T0}
    v_mov_b32 v5, s{S_T1}
    s_lshl_b32 s3, s{S_CU}, 7
    s_add_u32 s3, s3, {WS_ID}
    v_mov_b32 v6, s3
    v_mov_b32 v{V_TAG}, s{S_TAG}
    v_mov_b32 v{V_TAG+1}, s{S_TAG+1}
    s_mov_b64 exec, 1
    buffer_store_dwordx2 v[4:5], v6, s[{SRD_WS}:{SRD_WS+3}], 0 offen sc1
    s_mov_b64 exec, -1
    """)
    def hdma(s):
        for k, sh in enumerate((S_H0, S_H1, S_H2)):
            p = 3 * s + k
            e(f"s_add_u32 s{S_OFF}, s{sh}, {s*UNIT}")
            dma_unit(e, SRD_WS, [V_LIN], S_OFF, 4096, XH + p * UNIT, "sc1")
    def stamp(k):
        if o.stamps: e(f"s_memtime s[{S_STAMP+4+2*k}:{S_STAMP+5+2*k}]\ns_waitcnt lgkmcnt(0)")
    bl = [0,1,2,3,6,9,10,11,12,13,14,15,16,17] if o.stampset == 0 else [0,2,3,4,5,6,7,8,9,10,11,12,14,17]
    slots = {b: i for i, b in enumerate(bl)}
    for st in range(18):
        if st == o.fastb - 2:
            e(f"s_mov_b64 exec, 3\nbuffer_load_dwordx2 v[{V_TMP}:{V_TMP+1}], v{V_ID}, s[{SRD_WS}:{SRD_WS+3}], 0 offen sc1\ns_mov_b64 exec, -1")
        if o.touch and st == o.fastb - 2:
            e(f"""
            v_lshlrev_b32 v20, 7, v0
            s_mul_i32 s{S_OFF}, s{S_CU}, 384
            s_add_u32 s{S_OFF}, s{S_OFF}, {WS_PF}
            s_mov_b64 exec, 7
            buffer_load_dword v24, v20, s[{SRD_WS}:{SRD_WS+3}], s{S_OFF} offen sc1
            s_lshl_b32 s{S_OFF}, s{S_CU}, 7
            s_add_u32 s{S_OFF}, s{S_OFF}, {WS_HF}
            s_mov_b64 exec, 1
            buffer_load_dword v25, v20, s[{SRD_WS}:{SRD_WS+3}], s{S_OFF} offen
            s_mov_b64 exec, -1
            """)
        for sg, tb in enumerate((o.t0b, o.t1b, o.t2b)):
            if o.ctouch and st == tb:
                e(f"""
                s_mul_i32 s{S_OFF}, s{S_CU}, 24576
                s_add_u32 s{S_OFF}, s{S_OFF}, {WS_H + sg*UNIT}
                buffer_load_dword v{21+sg}, v20, s[{SRD_WS}:{SRD_WS+3}], s{S_OFF} offen
                """)
        if st == o.fastb: e("s_waitcnt lgkmcnt(0)")
        if st == o.fastb - 1:
            e(f"""
            s_mov_b64 exec, 3
            s_mov_b32 s{S_CNT}, {SPIN_MAX}
            s_waitcnt vmcnt({(2 + (o.ctouch and o.fastb - 2 <= o.t0b <= o.fastb - 1)) if o.touch else 0})
            s_branch L_check_id
            L_poll_id:
            buffer_load_dwordx2 v[{V_TMP}:{V_TMP+1}], v{V_ID}, s[{SRD_WS}:{SRD_WS+3}], 0 offen sc1
            s_waitcnt vmcnt(0)
            L_check_id:
            v_subrev_co_u32 v4, vcc, s{S_TAG}, v{V_TMP}
            v_mov_b32 v6, s{S_TAG+1}
            s_nop 0
            v_subb_co_u32 v5, vcc, v{V_TMP+1}, v6, vcc
            v_subrev_u32 v4, 16, v4
            v_lshrrev_b32 v6, 4, v4
            v_or_b32 v6, v6, v5
            v_cmp_ne_u32 vcc, 0, v6
            s_sub_u32 s{S_CNT}, s{S_CNT}, 1
            s_cmp_eq_u32 s{S_CNT}, 0
            s_cbranch_scc1 L_id_done
            s_nop 1
            s_cbranch_vccz L_id_done
            s_sleep 1
            s_branch L_poll_id
            L_id_done:
            v_cmp_ne_u32 vcc, s{S_XCC}, v4
            s_mov_b32 s{S_FAST}, {0 if o.force_slow else 1}
            s_nop 1
            s_cmp_eq_u64 vcc, 0
            s_cselect_b32 s{S_FAST}, s{S_FAST}, 0
            s_mov_b64 exec, 1
            v_mov_b32 v4, s{S_FAST}
            v_mov_b32 v5, {FASTW}
            ds_write_b32 v5, v4
            s_mov_b64 exec, -1
            """)
        if st == o.h0b: _poll(e, o, "h0", V_POLL, 0, "0xfff", V_TAG, V_TMP)
        if st == o.h1b: _poll(e, o, "h1", V_POLL, 32, "0xfff", V_TAG, V_TMP)
        if st == o.h2b: _poll(e, o, "h2", V_POLL, 64, "0xfff", V_TAG, V_TMP)
        e("s_barrier")
        if o.tlbw and o.tlbb and st == o.tlbb: tlb_warm()
        if o.wbl2 and st == o.wbl2:
            e(f"""
            s_or_b32 s3, s{S_MT}, s{S_G}
            s_cmp_lg_u32 s3, 0
            s_cbranch_scc1 L_nowb
            buffer_wbl2 sc1
            L_nowb:
            """)
        if st in slots: stamp(slots[st])
    if o.stamps:
        e(f"s_waitcnt lgkmcnt(0)")
        e(f"s_lshl_b32 s3, s{S_CU}, 9\ns_add_u32 s3, s3, {WS_ST}")
        e("s_mov_b64 exec, 1\nv_mov_b32 v1, 0")
        for k in range(0, 32, 4):
            for q in range(4): e(f"v_mov_b32 v{4+q}, s{S_STAMP+k+q}")
            e(f"buffer_store_dwordx4 v[4:7], v1, s[{SRD_WS}:{SRD_WS+3}], s3 offen offset:{k*4}\ns_nop 1")
        e(f"v_mov_b32 v4, s{S_FAST}\nbuffer_store_dword v4, v1, s[{SRD_WS}:{SRD_WS+3}], s3 offen offset:128")
        e("s_mov_b64 exec, -1")
    e("s_branch L_gather")

V_T1, V_T1B, V_T2, V_T2B = 2, 3, 4, 5
V_X = 6; V_X8 = 10
V_PF, V_PV = 6, 7
V_H, V_H8, V_FW, V_HG = 14, 15, 16, 17
V_HF = 1
V_TAG = 18
V_EP = 20
V_P = 24
V_WF = 32
V_ACC1 = 64
V_XF = 112
S_MH, S_NH, S_HST, S_NL2E = 48, 49, 50, 51
S_PO = 52
S_PFB = 54

class Stream:
    def __init__(self, e): self.e = e; self.nlds = 0; self.done = 0; self.count = 0; self.fast_ok = False; self.flags = set(); self.hold_silu = 0
    def emit(self, s):
        for l in s.split("\n"):
            l = l.strip()
            if l:
                self.e(l)
                if not l.endswith(":"): self.count += 1
    def lds(self, s):
        self.emit(s); self.nlds += 1; return self.nlds
    def wait_lds(self, opid):
        if opid <= self.done: return
        n = min(self.nlds - opid, 15)
        self.emit(f"s_waitcnt lgkmcnt({n})"); self.done = self.nlds - n

_uid = [0]
OUTLINE = []
NOST = [False, False, 0]
def dual(txt, force_sc1=False):
    if force_sc1: return txt + " sc1"
    _uid[0] += 1; k = _uid[0]
    OUTLINE.append(f"L_ds{k}:\n{txt} sc1\ns_branch L_dd{k}")
    return (f"s_cmp_eq_u32 s{S_FAST}, 0\ns_cbranch_scc1 L_ds{k}\n{txt}\nL_dd{k}:")

def silu_ops(acc, s, noep=False):
    ops = []
    for q in range(4):
        v = [acc + 4 * q + r for r in range(4)]
        t = [V_EP + r for r in range(4)]
        if not noep:
            for r in range(4): ops.append(("silu", f"v_mul_f32 v{t[r]}, s{S_NL2E}, v{v[r]}"))
            for r in range(4): ops.append(("v", f"v_exp_f32 v{t[r]}, v{t[r]}"))
            for r in range(4): ops.append(("v", f"v_add_f32 v{t[r]}, 1.0, v{t[r]}"))
            for r in range(4): ops.append(("v", f"v_rcp_f32 v{t[r]}, v{t[r]}"))
            for r in range(4): ops.append(("silu", f"v_mul_f32 v{v[r]}, v{v[r]}, v{t[r]}"))
        ops.append(("silu", f"v_cvt_pk_bf16_f32 v{V_P+2*q}, v{v[0]}, v{v[1]}"))
        ops.append(("silu", f"v_cvt_pk_bf16_f32 v{V_P+2*q+1}, v{v[2]}, v{v[3]}"))
    for tt in range(2):
        ops.append(("st", "s_nop 0" if NOST[0] else dual(f"buffer_store_dwordx4 v[{V_P+4*tt}:{V_P+4*tt+3}], v{V_HG}, s[{SRD_WS}:{SRD_WS+3}], s{S_HST} offen offset:{tt*1024}", s < NOST[2])))
    if s < 2: ops.append(("v", f"s_add_u32 s{S_HST}, s{S_HST}, {UNIT}"))
    return ops

def hflag_ops(s, n):
    return [("v", f"s_waitcnt vmcnt({n})\ns_mov_b64 exec, 1"),
            ("st", dual(f"buffer_store_dwordx2 v[{V_TAG}:{V_TAG+1}], v{V_HF}, s[{SRD_WS}:{SRD_WS+3}], 0 offen offset:{s*32}")),
            ("flag%d" % s, "s_mov_b64 exec, -1")]

def pflag(e, u, n):
    e(f"""
    s_waitcnt vmcnt({n})
    s_mov_b64 exec, 0xf
    buffer_store_dwordx2 v[{V_TAG}:{V_TAG+1}], v{V_PF}, s[{SRD_WS}:{SRD_WS+3}], 0 offen offset:{u*128} sc1
    s_mov_b64 exec, -1
    """)

def compute(e, o):
    e("L_compute:")
    if o.prio: e(f"s_setprio {o.prio}")
    common_ids(e)
    e(f"""
    s_lshr_b32 s{S_MH}, s{S_WAVE}, 1
    s_and_b32 s{S_NH}, s{S_WAVE}, 1
    s_mov_b32 s{S_NL2E}, 0xbfb8aa3b
    v_lshrrev_b32 v20, 5, v0
    v_lshrrev_b32 v21, 4, v0
    v_and_b32 v21, 1, v21
    v_and_b32 v22, 15, v0
    v_lshrrev_b32 v23, 2, v22
    v_and_b32 v22, 3, v22
    v_lshrrev_b32 v24, 1, v22
    v_lshl_add_u32 v24, v21, 1, v24
    s_lshl_b32 s{S_T0}, s{S_NH}, 2
    v_add_u32 v24, s{S_T0}, v24
    v_and_b32 v25, 2, v23
    v_lshlrev_b32 v25, 1, v25
    v_xor_b32 v24, v24, v25
    v_lshlrev_b32 v24, 4, v24
    v_and_b32 v22, 1, v22
    v_lshl_add_u32 v24, v22, 3, v24
    v_lshl_add_u32 v24, v23, 7, v24
    v_add_u32 v24, {RING}, v24
    v_lshl_add_u32 v{V_T1}, v20, 10, v24
    v_lshl_add_u32 v{V_T2}, v20, 9, v24
    v_add_u32 v{V_T1B}, {8*UNIT}, v{V_T1}
    v_add_u32 v{V_T2B}, {8*UNIT}, v{V_T2}
    v_and_b32 v25, 31, v0
    v_lshrrev_b32 v26, 1, v25
    v_and_b32 v26, 7, v26
    v_xor_b32 v26, v20, v26
    v_lshlrev_b32 v26, 4, v26
    s_lshl_b32 s{S_T1}, s{S_MH}, 12
    v_lshl_add_u32 v26, v25, 7, v26
    v_add_u32 v{V_X}, s{S_T1}, v26
    v_xor_b32 v{V_X+1}, 32, v{V_X}
    v_xor_b32 v{V_X+2}, 64, v{V_X}
    v_xor_b32 v{V_X+3}, 96, v{V_X}
    """)
    for ks in range(4): e(f"v_add_u32 v{V_X8+ks}, {8*UNIT}, v{V_X+ks}")
    e(f"""
    v_lshlrev_b32 v27, 4, v0
    v_add_u32 v{V_H}, s{S_T1}, v27
    v_add_u32 v{V_H8}, {8*UNIT}, v{V_H}
    s_lshl_b32 s{S_T0}, s{S_NH}, 11
    v_add_u32 v{V_HG}, s{S_T0}, v{V_H}
    s_mul_i32 s{S_HST}, s{S_CU}, 24576
    s_add_u32 s{S_HST}, s{S_HST}, {WS_H}
    s_lshl_b32 s{S_T0}, s{S_CU}, 7
    s_lshl_b32 s{S_T1}, s{S_WAVE}, 3
    s_add_u32 s{S_T0}, s{S_T0}, s{S_T1}
    s_add_u32 s{S_T0}, s{S_T0}, {WS_HF}
    v_mov_b32 v{V_HF}, s{S_T0}
    s_mul_i32 s{S_T0}, s{S_MT}, 3
    s_add_u32 s{S_T0}, s{S_T0}, s{S_G}
    s_lshl_b32 s{S_T1}, s{S_MH}, 2
    s_mul_i32 s{S_T1}, s{S_T1}, 24
    s_add_u32 s{S_T0}, s{S_T0}, s{S_T1}
    s_mul_i32 s{S_PO}, s{S_T0}, 24576
    s_mul_i32 s{S_T1}, s{S_J}, 3072
    s_add_u32 s{S_PO}, s{S_PO}, s{S_T1}
    s_lshl_b32 s{S_T1}, s{S_NH}, 9
    s_add_u32 s{S_PO}, s{S_PO}, s{S_T1}
    s_add_u32 s{S_PO}, s{S_PO}, {WS_P}
    s_add_u32 s{S_PO+1}, s{S_PO}, {2*24*24576}
    s_mul_i32 s{S_T0}, s{S_T0}, 384
    s_lshl_b32 s{S_T1}, s{S_J}, 4
    s_add_u32 s{S_T0}, s{S_T0}, s{S_T1}
    s_lshl_b32 s{S_T1}, s{S_NH}, 3
    s_add_u32 s{S_T0}, s{S_T0}, s{S_T1}
    s_add_u32 s{S_PFB}, s{S_T0}, {WS_PF}
    v_mov_b32 v{V_FW}, {FASTW}
    s_waitcnt lgkmcnt(0)
    """)
    load_epoch(e)
    finish_tag(e)
    e(f"v_mov_b32 v{V_TAG}, s{S_TAG}\nv_mov_b32 v{V_TAG+1}, s{S_TAG+1}\ns_waitcnt vmcnt(0)")

    tasks = []
    def ringbase(n, vA, vB):
        slot = n % R
        return (vA, slot * UNIT) if slot < 8 else (vB, (slot - 8) * UNIT)
    for n in range(27):
        st = n // 3; s = n // 9; i = n % 9
        base, so = ringbase(n, V_T1, V_T1B)
        for ks in range(4):
            t = dict(step=st, first=(n % 3 == 0 and ks == 0), idx=len(tasks))
            t["wr"] = [(base, so + (16 * ks + 4 * b) * 128) for b in range(2)]
            xf = V_XF + (i * 4 + ks) * 4
            t["pre"] = []
            if s == 0:
                xb = (V_X8 + ks) if i == 8 else (V_X + ks)
                t["pre"] = [f"ds_read_b128 v[{xf}:{xf+3}], v{xb} offset:{0 if i == 8 else i*UNIT}"]
            acc = V_ACC1 + 16 * (s & 1)
            t["mf"] = lambda wf, acc=acc, xf=xf, z=(i == 0 and ks == 0): f"v_mfma_f32_32x32x16_bf16 v[{acc}:{acc+15}], v[{wf}:{wf+3}], v[{xf}:{xf+3}], " + ("0" if z else f"v[{acc}:{acc+15}]")
            tasks.append(t)
    seen_p, seen_u, last_u = set(), set(), {}
    ACCU = {0: V_ACC1 + 16, 1: V_ACC1 + 32, 2: V_ACC1}
    for q, (p, u) in enumerate(P2):
        n = 27 + q; st = n // 3
        base, so = ringbase(n, V_T2, V_T2B)
        for ks in range(4):
            t = dict(step=st, first=(n % 3 == 0 and ks == 0), idx=len(tasks))
            t["wr"] = [(base, so + (16 * ks + 8 * b) * 128) for b in range(2)]
            hf = V_XF + (p * 4 + ks) * 4
            t["pre"] = []
            if p not in seen_p:
                hb = V_H8 if p == 8 else V_H
                t["pre"] = [f"ds_read_b128 v[{hf}:{hf+3}], v{hb} offset:{(0 if p == 8 else p*UNIT) + ks*1024}"]
            acc = ACCU[u]
            t["mf"] = lambda wf, acc=acc, hf=hf, z=(u not in seen_u and ks == 0): f"v_mfma_f32_32x32x16_bf16 v[{acc}:{acc+15}], v[{hf}:{hf+3}], v[{wf}:{wf+3}], " + ("0" if z else f"v[{acc}:{acc+15}]")
            tasks.append(t); last_u[u] = t["idx"]
        seen_p.add(p); seen_u.add(u)
    global PUBACC
    n = len(tasks)
    S = Stream(e)
    NP = n // 2
    side = []; side_start = [0]; hold = [0]; cur = [0]
    last_of_step = {}
    for t in tasks: last_of_step[t["step"]] = t["idx"]
    def pubops(u):
        ops = []
        a = ACCU[u]
        for q in range(8): ops.append(("v", f"v_cvt_pk_bf16_f32 v{V_P+q}, v{a+2*q}, v{a+2*q+1}"))
        ops.append(("v", "s_nop 0"))
        for q in range(2):
            d = V_P + 4 * q
            ops.append(("v", f"v_permlane32_swap_b32 v{d}, v{d+2}"))
            ops.append(("v", f"v_permlane32_swap_b32 v{d+1}, v{d+3}"))
        if not o.x_nopub:
            for q in range(2):
                d = V_P + 4 * q
                ops.append(("st", f"buffer_store_dwordx4 v[{d}:{d+3}], v{V_PV}, s[{SRD_WS}:{SRD_WS+3}], s{S_PO+q} offen offset:{u*1024} sc1"))
            ops.append(("v", "s_nop 0"))
        return ops
    def cost(kind, txt):
        if kind == "lds": return 24
        if kind == "st": return 16
        if txt.startswith(("v_exp", "v_rcp")): return 8
        if txt.startswith("s_") and not txt.startswith(("s_waitcnt", "s_nop")): return 2
        return 4
    def pop_side(budget):
        used = 0
        while side and S.count >= side_start[0] and cur[0] >= hold[0]:
            kind, txt = side[0]
            if kind == "gap": side.pop(0); hold[0] = cur[0] + txt; continue
            if kind == "st" and "L_ds" in txt and not S.fast_ok: break
            if kind == "silu" and S.count < S.hold_silu: break
            c = cost(kind, txt)
            if used and used + c > budget: break
            side.pop(0)
            if kind == "lds": S.lds(txt)
            else: S.emit(txt)
            if kind.startswith("flag"): S.flags.add(int(kind[4:]))
            used += c
    NR = o.LP + 1
    def tr_reads(q):
        for h in range(2):
            t = tasks[2*q + h]
            wf = V_WF + 8 * (q % NR) + 4 * h
            t["wf"] = wf
            for b, (base, off) in enumerate(t["wr"]):
                t["last"] = S.lds(f"ds_read_b64_tr_b16 v[{wf+2*b}:{wf+2*b+1}], v{base} offset:{off}")
    def pre_reads(q):
        k = 0
        for h in range(2):
            t = tasks[2*q + h]
            for x in t["pre"]:
                t["last"] = S.lds(x); k += 1
        return k
    def barrier(step):
        for fs, fb in ((0, o.h0b), (1, o.h1b), (2, o.h2b)):
            if step == fb: assert fs in S.flags, f"flag {fs} must be sent before B_{fb} (the control wave waits for it there)"
        if o.astamp and o.astamp <= step < o.astamp + 6: S.emit(f"s_memtime s[{S_STAMP+16+2*(step-o.astamp)}:{S_STAMP+17+2*(step-o.astamp)}]")
        S.emit("s_waitcnt lgkmcnt(0)"); S.done = S.nlds
        S.emit("s_barrier")
    late_addr = [("v", f"v_and_b32 v{V_PV}, 31, v0"), ("v", f"v_lshrrev_b32 v{V_PF}, 5, v0"), ("v", f"v_lshlrev_b32 v{V_PV}, 4, v{V_PV}"),
                 ("v", f"v_mul_u32_u24 v{V_PF}, {24*24576}, v{V_PF}"), ("v", f"v_add_u32 v{V_PV}, v{V_PV}, v{V_PF}"),
                 ("v", f"v_mul_u32_u24 v{V_PF}, {24*384}, v0"), ("v", f"v_add_u32 v{V_PF}, s{S_PFB}, v{V_PF}")]
    budget = o.epb
    pubq = []
    fast_known = False
    barrier(0)
    for q0 in range(o.LP):
        tr_reads(q0); pre_reads(q0)
    for q in range(NP):
        cur[0] = q
        A, B = tasks[2*q], tasks[2*q+1]
        nq = q + o.LP
        deferred = False
        if nq < NP:
            if tasks[2*nq]["first"]:
                barrier(tasks[2*nq]["step"]); deferred = True
            else:
                tr_reads(nq)
        if A["first"] and A["step"] == 11:
            assert not any(x[0] == "silu" for x in side), "acc of sub-tile 2 still in use"
        S.wait_lds(max(A["last"], B["last"]))
        S.emit(A["mf"](A["wf"]))
        if deferred:
            if tasks[2*nq]["step"] == o.fastb: S.lds(f"ds_read_b32 v{V_FW}, v{V_FW}")
            tr_reads(nq); pre_reads(nq)
        else:
            k = pre_reads(nq) if nq < NP else 0
            pop_side(budget if k == 0 else max(budget - 24, 4))
            if o.wgap2 and q + 1 < NP and k == 0:
                S.wait_lds(max(tasks[2*q+2]["last"], tasks[2*q+3]["last"]))
        S.emit(B["mf"](B["wf"]))
        if A["first"] and A["step"] == o.fastb:
            S.emit(f"v_readfirstlane_b32 s{S_FAST}, v{V_FW}"); S.fast_ok = True
        im = B["idx"]
        if im == last_of_step.get(2):
            side += silu_ops(V_ACC1, 0, o.x_noep) + [("gap", o.gap0)] + hflag_ops(0, 0); side_start[0] = S.count + 12; budget = o.epb
        if im == last_of_step.get(5):
            assert not any(x[0] == "silu" or x[0] == "st" and "x4" in x[1] for x in side), len(side)
            side += silu_ops(V_ACC1 + 16, 1, o.x_noep); budget = o.epb
            S.hold_silu = S.count + 12
        if im == last_of_step.get(8):
            assert not side, len(side)
            ops2 = silu_ops(V_ACC1, 2, o.x_noep)
            k1 = min(o.f1pos, len(ops2) - 2)
            ops2 = ops2[:k1] + hflag_ops(1, 0) + ops2[k1:]
            side += ops2 + late_addr + [("gap", o.gap2)] + hflag_ops(2, 0); side_start[0] = S.count + 12; budget = o.epb2
        for u, at in ((0, o.pub0), (1, o.pub1)):
            if at and q >= NP - at and im >= last_u[u] + 4 and u not in pubq and not side:
                pubq.append(u); side += pubops(u); side_start[0] = S.count; budget = 24
    assert not side
    e("s_nop 7")
    if o.stamps: e(f"s_memtime s[{S_STAMP+4}:{S_STAMP+5}]")
    e("s_nop 3")
    rest = [u for u in (0, 1, 2) if u not in pubq]
    order = pubq + rest
    for u in rest:
        for k, x in pubops(u): e(x)
    for i, u in enumerate(order):
        younger = 2 * (len(order) - 1 - i) + i
        if o.x_nopub: younger = i
        if o.stamps and i == 2: e(f"s_memtime s[{S_STAMP+14}:{S_STAMP+15}]")
        pflag(e, u, younger)
    if o.stamps:
        e(f"s_memtime s[{S_STAMP+6}:{S_STAMP+7}]")
        e(f"s_cmp_lg_u32 s{S_WAVE}, 0\ns_cbranch_scc1 L_end\ns_waitcnt lgkmcnt(0)")
        e(f"s_lshl_b32 s3, s{S_CU}, 9\ns_add_u32 s3, s3, {WS_ST + 256}\ns_mov_b64 exec, 1\nv_mov_b32 v1, 0")
        for k in range(0, 16, 4):
            for q in range(4): e(f"v_mov_b32 v{4+q}, s{S_STAMP+k+q}")
            e(f"buffer_store_dwordx4 v[4:7], v1, s[{SRD_WS}:{SRD_WS+3}], s3 offen offset:{k*4}\ns_nop 1")
        if o.astamp:
            e(f"s_lshl_b32 s3, s{S_CU}, 9\ns_add_u32 s3, s3, {WS_ST + 192*512}")
            for k, r0 in enumerate((S_STAMP, S_STAMP+16, S_STAMP+20, S_STAMP+24)):
                for q in range(4): e(f"v_mov_b32 v{4+q}, s{r0+q}")
                e(f"buffer_store_dwordx4 v[4:7], v1, s[{SRD_WS}:{SRD_WS+3}], s3 offen offset:{k*16}\ns_nop 1")
        e("s_waitcnt vmcnt(0)")
    e("s_endpgm")

def gather(e, o):
    VT, VA, VL, VD, VS = 2, 4, 5, 8, 44
    S_U = 48
    e("L_gather:")
    e(f"""
    s_cmp_eq_u32 s{S_WAVE}, 7
    s_cbranch_scc1 L_end
    s_sub_u32 s{S_U}, s{S_WAVE}, 4
    s_mul_i32 s3, s{S_CU}, 384
    s_lshl_b32 s50, s{S_U}, 7
    s_add_u32 s3, s3, s50
    s_add_u32 s3, s3, {WS_PF}
    v_lshlrev_b32 v{VA}, 3, v0
    v_add_u32 v{VA}, s3, v{VA}
    v_lshlrev_b32 v{VL}, 4, v0
    v_mov_b32 v{VT}, s{S_TAG}
    v_mov_b32 v{VT+1}, s{S_TAG+1}
    s_mul_i32 s52, s{S_CU}, 24576
    s_lshl_b32 s53, s{S_U}, 10
    s_add_u32 s52, s52, s53
    s_add_u32 s52, s52, {WS_P}
    v_lshlrev_b32 v6, 1, v0
    s_lshl_b32 s50, s{S_MT}, 6
    s_lshl_b32 s51, s{S_J}, 3
    s_add_u32 s50, s50, s51
    s_mul_i32 s50, s50, 1152
    s_mul_i32 s51, s{S_G}, 384
    s_add_u32 s50, s50, s51
    s_lshl_b32 s51, s{S_U}, 7
    s_add_u32 s50, s50, s51
    s_add_u32 s53, s50, 4608
    s_mov_b32 s54, 0xffff0000
    """)
    if o.ppipe:
        e(f"""
        s_mov_b64 exec, 0xffff
        s_mov_b32 s{S_CNT}, {SPIN_MAX}
        buffer_load_dwordx2 v[40:41], v{VA}, s[{SRD_WS}:{SRD_WS+3}], 0 offen sc1
        L_pp:
        s_sleep {o.ppipe}
        buffer_load_dwordx2 v[42:43], v{VA}, s[{SRD_WS}:{SRD_WS+3}], 0 offen sc1
        s_waitcnt vmcnt(1)
        v_cmp_ne_u64 vcc, v[40:41], v[{VT}:{VT+1}]
        s_sub_u32 s{S_CNT}, s{S_CNT}, 1
        s_cmp_eq_u32 s{S_CNT}, 0
        s_cbranch_scc1 L_ppdone
        s_nop 1
        s_cbranch_vccz L_ppdone
        s_sleep {o.ppipe}
        buffer_load_dwordx2 v[40:41], v{VA}, s[{SRD_WS}:{SRD_WS+3}], 0 offen sc1
        s_waitcnt vmcnt(1)
        v_cmp_ne_u64 vcc, v[42:43], v[{VT}:{VT+1}]
        s_nop 4
        s_cbranch_vccnz L_pp
        L_ppdone:
        s_mov_b64 exec, -1
        """)
    else:
        _poll(e, o, "p", VA, 0, "0xffff", VT, 40, o.psleep)
    if o.stamps: e(f"s_memtime s[{S_STAMP+8}:{S_STAMP+9}]")
    for p in range(8):
        e(f"buffer_load_dwordx4 v[{VD+4*p}:{VD+4*p+3}], v{VL}, s[{SRD_WS}:{SRD_WS+3}], s52 offen sc1")
        if p < 7: e(f"s_add_u32 s52, s52, 3072")
    e(f"""
    s_or_b32 s51, s{S_J}, s{S_G}
    s_or_b32 s51, s51, s{S_U}
    s_cmp_lg_u32 s51, 0
    s_cbranch_scc1 L_noepoch
    s_lshl_b32 s51, s{S_MT}, 7
    v_mov_b32 v{VA}, s51
    s_mov_b64 exec, 1
    buffer_store_dwordx2 v[{VT}:{VT+1}], v{VA}, s[{SRD_WS}:{SRD_WS+3}], 0 offen sc1
    s_mov_b64 exec, -1
    s_waitcnt vmcnt(0)
    L_noepoch:
    """)
    for p in range(8):
        e(f"s_waitcnt vmcnt({7-p})")
        for d in range(4):
            src = VD + 4 * p + d
            if p == 0:
                e(f"v_lshlrev_b32 v{VS+2*d}, 16, v{src}\nv_and_b32 v{VS+2*d+1}, s54, v{src}")
            else:
                e(f"v_lshlrev_b32 v{VS+8}, 16, v{src}\nv_and_b32 v{VS+9}, s54, v{src}")
                e(f"v_add_f32 v{VS+2*d}, v{VS+2*d}, v{VS+8}\nv_add_f32 v{VS+2*d+1}, v{VS+2*d+1}, v{VS+9}")
    for d in range(4):
        e(f"v_cvt_pk_bf16_f32 v{VD+d}, v{VS+2*d}, v{VS+2*d+1}")
    if o.outx4:
        e(f"""
        s_lshl_b32 s51, s{S_U}, 10
        v_add_u32 v7, s51, v6
        v_lshl_add_u32 v{VA}, v0, 4, s51
        v_lshrrev_b32 v{VS+8}, 3, v0
        v_mul_u32_u24 v{VS+8}, 1152, v{VS+8}
        v_and_b32 v{VS+9}, 7, v0
        v_lshl_add_u32 v{VS+8}, v{VS+9}, 4, v{VS+8}
        """)
        for d in range(4):
            e(f"ds_write_b16 v7, v{VD+d} offset:{2*d*128}\nds_write_b16_d16_hi v7, v{VD+d} offset:{(2*d+1)*128}")
        e(f"""
        s_waitcnt lgkmcnt(0)
        ds_read_b128 v[{VD+4}:{VD+7}], v{VA}
        s_waitcnt lgkmcnt(0)
        buffer_store_dwordx4 v[{VD+4}:{VD+7}], v{VS+8}, s[{SRD_OUT}:{SRD_OUT+3}], s50 offen {"sc1" if o.outx4 == 2 else ""}
        """)
    else:
      for d in range(4):
        so = "s50" if d < 2 else "s53"
        e(f"buffer_store_short v{VD+d}, v6, s[{SRD_OUT}:{SRD_OUT+3}], {so} offen offset:{(2*d % 4)*1152}")
        e(f"buffer_store_short_d16_hi v{VD+d}, v6, s[{SRD_OUT}:{SRD_OUT+3}], {so} offen offset:{((2*d+1) % 4)*1152}")
    if o.stamps:
        e(f"""
        s_cmp_lg_u32 s{S_WAVE}, 6
        s_cbranch_scc1 L_end
        s_waitcnt vmcnt(0)
        s_memtime s[{S_STAMP+10}:{S_STAMP+11}]
        s_memrealtime s[{S_STAMP+12}:{S_STAMP+13}]
        s_waitcnt lgkmcnt(0)
        s_lshl_b32 s3, s{S_CU}, 9
        s_add_u32 s3, s3, {WS_ST + 384}
        s_mov_b64 exec, 1
        v_mov_b32 v1, 0
        """)
        for k in range(0, 16, 4):
            for q in range(4): e(f"v_mov_b32 v{4+q}, s{S_STAMP+k+q}")
            e(f"buffer_store_dwordx4 v[4:7], v1, s[{SRD_WS}:{SRD_WS+3}], s3 offen offset:{k*4}\ns_nop 1")
        e("s_waitcnt vmcnt(0)")
    e("s_endpgm")

def prefetch(e, o):
    e("L_prefetch:")
    e(f"""
    s_sub_u32 s3, s3, 24
    s_mov_b32 s52, s3
    s_mov_b32 s{S_T0}, 10923
    v_mul_u32_u24 v1, s{S_T0}, v0
    v_lshrrev_b32 v1, 16, v1
    v_mul_u32_u24 v2, 6, v1
    v_sub_u32 v2, v0, v2
    v_lshrrev_b32 v3, 1, v2
    v_and_b32 v2, 1, v2
    v_mul_u32_u24 v3, 384, v3
    v_lshl_add_u32 v3, v2, 7, v3
    v_mul_u32_u24 v1, 9216, v1
    v_add_u32 v1, v1, v3
    s_mul_i32 s{S_T0}, s3, {72*9216}
    s_mul_i32 s{S_T1}, s{S_J}, 1152
    s_add_u32 s{S_T0}, s{S_T0}, s{S_T1}
    s_add_u32 s{S_T0}, s{S_T0}, 128
    s_mul_i32 s{S_T1}, s{S_J}, {576*1152}
    s_mul_i32 s3, s3, {72*1152}
    s_add_u32 s{S_T1}, s{S_T1}, s3
    v_lshlrev_b32 v4, 7, v0
    v_add_u32 v5, 65536, v4
    v_min_u32 v5, {647*128}, v5
    v_cmp_gt_u32 vcc, 432, v0
    s_waitcnt lgkmcnt(0)
    """)
    srd(e, SRD_B, S_W1, 576*4608*2)
    srd(e, SRD_C, S_W2, 576*4608*2)
    e(f"""
    v_mov_b32 v6, 0
    v_cndmask_b32 v1, v6, v1, vcc
    buffer_load_dword v8, v1, s[{SRD_B}:{SRD_B+3}], s{S_T0} offen
    """)
    if o.ptouch:
        srd(e, SRD_WS, S_WS, WS_SIZE)
        e(f"""
        s_mul_i32 s50, s{S_J}, {24*24576}
        s_mul_i32 s51, s52, {576*128}
        s_add_u32 s50, s50, s51
        s_add_u32 s50, s50, {WS_H}
        v_min_u32 v11, 63, v0
        v_lshlrev_b32 v11, 7, v11
        v_add_u32 v11, 65536, v11
        """)
    if o.ptouch == 3:
        e(f"""
        v_lshrrev_b32 v12, 6, v0
        v_min_u32 v12, 2, v12
        v_mul_u32_u24 v12, 24576, v12
        v_and_b32 v13, 63, v0
        v_lshl_add_u32 v14, v13, 7, v12
        v_add_u32 v14, 16384, v14
        """)
    e("s_waitcnt vmcnt(0)")
    if o.ptouch == 2:
        e(f"buffer_load_dword v12, v4, s[{SRD_WS}:{SRD_WS+3}], s50 offen\nbuffer_load_dword v13, v11, s[{SRD_WS}:{SRD_WS+3}], s50 offen")
    e(f"""
    buffer_load_dword v9, v4, s[{SRD_C}:{SRD_C+3}], s{S_T1} offen
    buffer_load_dword v10, v5, s[{SRD_C}:{SRD_C+3}], s{S_T1} offen
    s_waitcnt vmcnt(0)
    """)
    if o.ptouch == 3:
        e(f"buffer_load_dword v12, v14, s[{SRD_WS}:{SRD_WS+3}], s50 offen\ns_waitcnt vmcnt(0)")
    if o.ptouch == 1:
        e(f"buffer_load_dword v12, v4, s[{SRD_WS}:{SRD_WS+3}], s50 offen\nbuffer_load_dword v13, v11, s[{SRD_WS}:{SRD_WS+3}], s50 offen\ns_waitcnt vmcnt(0)")
    e("s_endpgm")

def build(o):
    if o.order: P2[:] = P2B
    _uid[0] = 0; OUTLINE.clear(); NOST[0] = o.x_nost; NOST[1] = o.x_nodsw; NOST[2] = o.hsc1
    e = E(); prologue(e, o)
    parts = []
    ls = E(); loader_start(ls, o)
    for lw in range(3):
        x = E(); loader(x, o, lw); parts.append(("loader%d" % lw, x))
    x = E(); control(x, o); parts.append(("control", x))
    x = E(); prefetch(x, o); parts.append(("prefetch", x))
    x = E(); compute(x, o); parts.append(("compute", x))
    eg = E(); gather(eg, o)
    for k, v in parts:
        pre = e.text() + "\n" + (ls.text() + "\n" if k.startswith("loader") else "")
        pr = hazard.check(pre + v.text() + "\n" + eg.text())
        if pr: raise SystemExit(f"hazards in {k}")
    body = "\n".join([e.text(), ls.text()] + [v.text() for k, v in parts] + [eg.text(), "\n".join(OUTLINE), "L_end:", "s_endpgm"])
    nsgpr = 100 if o.stamps else 72
    hdr = f"""; Fused FFN: out = silu(x @ w1) @ w2   (M=512, D=576, F=4608), one launch.
; 192 compute workgroups = 8 F-slices (j) x 8 row tiles (mt) x 3 column groups (g): 4 MFMA waves, 3 LDS-DMA loader waves, 1 control wave;
; @launch grid=({NWG + o.npf},1,1) block=(512,1,1) lds={LDS_BYTES}
.amdgcn_target "amdgcn-amd-amdhsa--gfx950"
.text
.globl {KNAME}
.p2align 8
.type {KNAME},@function
{KNAME}:
"""
    tail = f"""
.section .rodata,"a"
.p2align 6
.amdhsa_kernel {KNAME}
  .amdhsa_next_free_vgpr 256
  .amdhsa_next_free_sgpr {nsgpr}
  .amdhsa_accum_offset 256
  .amdhsa_group_segment_fixed_size 0
  .amdhsa_kernarg_size 48
  .amdhsa_user_sgpr_count 2
  .amdhsa_user_sgpr_kernarg_segment_ptr 1
  .amdhsa_system_sgpr_workgroup_id_x 1
.end_amdhsa_kernel
"""
    return hdr + body + tail

if __name__ == "__main__":
    o = Opt()
    out = sys.argv[1]
    for a in sys.argv[2:]:
        k, v = a.split("=")
        setattr(o, k, bool(int(v)) if isinstance(getattr(Opt, k), bool) else int(v))
    open(out, "w").write(build(o))
    print("wrote", out)
```

```python
import sys, os
sys.path.insert(0, os.path.dirname(__file__))
import hazard

KNAME = "standalone__dense_activation_silu__sampling_kernel"
NWG = 192
NPF = 64
XH = 0
RING = 73728
R = 11
UNIT = 8192
LDS_BYTES = 163840
WS_E, WS_ID, WS_HF, WS_PF, WS_H, WS_P, WS_ST = 0, 4096, 32768, 65536, 262144, 5242880, 16777216
WS_SIZE = 0x10000000
TAGC_LO, TAGC_HI = 0x7F4A7C15, 0x9E3779B9
SPIN_MAX = 100000
FASTW = XH + 3 * UNIT

P2 = [(0,0),(1,0),(2,0), (0,1),(1,1),(2,1), (0,2),(1,2),(2,2), (3,0),(4,0),(5,0), (3,1),(4,1),(5,1),
      (6,0),(7,0),(8,0), (6,1),(7,1),(8,1), (3,2),(4,2),(5,2), (6,2),(7,2),(8,2)]
P2B = [(0,0),(1,0),(2,0), (0,1),(1,1),(2,1), (0,2),(1,2),(2,2), (3,0),(4,0),(5,0), (3,1),(4,1),(5,1),
       (3,2),(4,2),(5,2), (6,0),(7,0),(8,0), (6,1),(7,1),(8,1), (6,2),(7,2),(8,2)]
PCH = [(p % 3, p // 3) for p in range(9)]

class Opt:
    stamps = False
    LP = 3
    pairw = True
    pub0 = 17
    pub1 = 11
    DRAIN = 2
    epb = 52
    epb2 = 110
    f1pos = 8
    h0b = 8
    h1b = 11
    h2b = 13
    fastb = 4
    gap0 = 5
    gap2 = 4
    tlbw = False
    ctouch = False
    ptouch = 3
    t0b = 3
    t1b = 5
    t2b = 7
    order = 0
    touch = 2
    wgap2 = True
    ppipe = 0
    epb0 = 80
    x_pad = 0
    ep2first = False
    hnt = False
    pfdelay = 1
    pfsplit = True
    outx4 = 0
    tlbb = 0
    wbl2 = 0
    hsc1 = 2
    early = 1
    astamp = 0
    ep2_rate = 9
    prefetch_code = True
    prio = 0
    npf = 64
    force_slow = False
    sleep = 1
    w_nt = True
    x_noep = False
    x_nodma = False
    x_nopub = False
    x_nost = False
    x_hplain = False
    x_nodsw = False
    psleep = 1
    stampset = 0

class E:
    def __init__(self): self.L = []
    def __call__(self, s):
        for l in s.split("\n"):
            l = l.strip()
            if l: self.L.append(l)
    def text(self): return "\n".join(self.L)

S_X, S_W1, S_W2, S_OUT, S_WS = 4, 6, 8, 10, 12
S_J, S_MT, S_G, S_WAVE, S_CU = 14, 15, 16, 17, 18
S_FAST = 19
S_TAG = 20
S_T0, S_T1 = 22, 23
SRD_A, SRD_B, SRD_C = 24, 28, 32
SRD_WS, SRD_OUT = 36, 40
S_G1, S_G2 = 44, 45
S_CNT = 46
S_STAMP = 64

def srd(e, d, base, size):
    e(f"s_mov_b32 s{d}, s{base}\ns_and_b32 s{d+1}, s{base+1}, 0xffff\ns_mov_b32 s{d+2}, {size}\ns_mov_b32 s{d+3}, 0x20000")

def prologue(e, o):
    e(f"""
    s_cmp_ge_u32 s2, {NWG + o.npf}
    s_cbranch_scc1 L_end
    s_load_dwordx4 s[4:7], s[0:1], 0
    s_load_dwordx4 s[8:11], s[0:1], 16
    s_load_dwordx2 s[12:13], s[0:1], 40
    """)
    if o.prefetch_code:
        e(f"""
        s_getpc_b64 s[{S_T0}:{S_T0+1}]
        L_pf:
        v_lshlrev_b32 v1, 7, v0
        v_min_u32 v1, L_end-L_pf, v1
        global_load_dword v31, v1, s[{S_T0}:{S_T0+1}]
        """)
    if o.stamps:
        e(f"s_memrealtime s[{S_STAMP}:{S_STAMP+1}]\ns_memtime s[{S_STAMP+2}:{S_STAMP+3}]")
    e(f"""
    v_lshrrev_b32 v1, 6, v0
    s_and_b32 s{S_J}, s2, 7
    s_lshr_b32 s3, s2, 3
    v_readfirstlane_b32 s{S_WAVE}, v1
    s_cmp_ge_u32 s2, {NWG}
    s_cbranch_scc1 L_prefetch
    s_mul_i32 s{S_MT}, s3, 171
    s_lshr_b32 s{S_MT}, s{S_MT}, 9
    s_mul_i32 s{S_G}, s{S_MT}, 3
    s_sub_u32 s{S_G}, s3, s{S_G}
    v_and_b32 v0, 63, v0
    s_cmp_lt_u32 s{S_WAVE}, 4
    s_cbranch_scc1 L_compute
    s_cmp_eq_u32 s{S_WAVE}, 7
    s_cbranch_scc1 L_control
    """)

def common_ids(e):
    e(f"""
    s_add_u32 s{S_G1}, s{S_G}, 1
    s_cmp_eq_u32 s{S_G1}, 3
    s_cselect_b32 s{S_G1}, 0, s{S_G1}
    s_add_u32 s{S_G2}, s{S_G1}, 1
    s_cmp_eq_u32 s{S_G2}, 3
    s_cselect_b32 s{S_G2}, 0, s{S_G2}
    s_lshl_b32 s{S_CU}, s{S_J}, 3
    s_add_u32 s{S_CU}, s{S_CU}, s{S_MT}
    s_mul_i32 s{S_CU}, s{S_CU}, 3
    s_add_u32 s{S_CU}, s{S_CU}, s{S_G}
    s_lshl_b32 s3, s{S_MT}, 7
    """)

def load_epoch(e):
    e(f"s_load_dwordx2 s[{S_TAG}:{S_TAG+1}], s[{S_WS}:{S_WS+1}], s3")
    srd(e, SRD_WS, S_WS, WS_SIZE)
    srd(e, SRD_OUT, S_OUT, 512*576*2)

def finish_tag(e):
    e(f"""
    s_waitcnt lgkmcnt(0)
    s_add_u32 s{S_TAG}, s{S_TAG}, {TAGC_LO:#x}
    s_addc_u32 s{S_TAG+1}, s{S_TAG+1}, {TAGC_HI:#x}
    """)

def dma_unit(e, srd_r, vp, s_off, half_step, lds, flags="", s_tmp=61, s_lb=None):
    pats = vp if len(vp) == 4 else vp * 4
    m0 = (lambda c: f"s_mov_b32 m0, {c}") if s_lb is None else (lambda c: f"s_add_u32 m0, s{s_lb}, {c}")
    e(f"{m0(lds)}\ns_add_u32 s{s_tmp}, s{s_off}, {half_step}")
    for k in range(4):
        e(f"buffer_load_dwordx4 v{pats[k]}, s[{srd_r}:{srd_r+3}], s{s_off} offen offset:{1024*k} {flags} lds")
    e(f"{m0(lds + 4096)}\ns_nop 0")
    for k in range(4):
        e(f"buffer_load_dwordx4 v{pats[k]}, s[{srd_r}:{srd_r+3}], s{s_tmp} offen offset:{1024*k} {flags} lds")

def issue_barrier(n): return -1 if n < R else (n - R) // 3 + 1

V_LX, V_LW1, V_LW2 = 8, 12, 16
S_C = [48, 49, 50]; S_XO = [51, 52, 53]; S_WO = [54, 55, 56]; S_GB = [57, 58, 59]; S_OFF = 60
S_LW, S_LB = 62, 63
S_LH = 47
V_LIN = 20

def lstamp(e, o, k):
    if o.stamps and not o.astamp: e(f"s_memtime s[{S_STAMP+16+2*k}:{S_STAMP+17+2*k}]")

def loader_start(e, o):
    wf = "nt" if o.w_nt else ""
    e(f"""
    s_sub_u32 s{S_LW}, s{S_WAVE}, 4
    v_lshrrev_b32 v1, 3, v0
    v_and_b32 v2, 7, v0
    v_lshrrev_b32 v6, 1, v1
    v_mul_u32_u24 v5, 1152, v1
    v_xor_b32 v6, v2, v6
    v_lshlrev_b32 v7, 4, v6
    v_add_u32 v{V_LX}, v5, v7
    v_xor_b32 v7, 64, v7
    v_add_u32 v{V_LX+1}, v5, v7
    v_add_u32 v{V_LX+1}, {9216-1024}, v{V_LX+1}
    v_add_u32 v{V_LX+2}, {2*(9216-1024)}, v{V_LX}
    v_add_u32 v{V_LX+3}, {2*(9216-1024)}, v{V_LX+1}
    s_mul_i32 s{S_T0}, s{S_G}, 3
    s_add_u32 s{S_T0}, s{S_T0}, s{S_MT}
    s_add_u32 s{S_T0}, s{S_T0}, s{S_LW}
    s_cmp_ge_u32 s{S_T0}, 9
    s_cselect_b32 s{S_T1}, 9, 0
    s_sub_u32 s{S_C[0]}, s{S_T0}, s{S_T1}
    s_mul_i32 s{S_T0}, s{S_MT}, {64*1152}
    s_lshl_b32 s{S_XO[0]}, s{S_C[0]}, 7
    s_add_u32 s{S_XO[0]}, s{S_XO[0]}, s{S_T0}
    s_lshl_b32 s{S_LB}, s{S_LW}, 13
    v_and_b32 v3, 2, v1
    v_lshlrev_b32 v3, 1, v3
    v_xor_b32 v3, v2, v3
    v_lshlrev_b32 v3, 4, v3
    v_mul_u32_u24 v4, 9216, v1
    v_add_u32 v{V_LW1}, v4, v3
    v_add_u32 v{V_LW2}, v5, v3
    s_mul_i32 s{S_T1}, s{S_J}, 1152
    s_mul_i32 s3, s{S_G}, 384
    s_add_u32 s{S_T1}, s{S_T1}, s3
    s_mul_i32 s3, s{S_C[0]}, {64*9216}
    s_add_u32 s{S_WO[0]}, s{S_T1}, s3
    v_add_u32 v{V_LW1+1}, {1*(73728-1024)}, v{V_LW1}
    v_add_u32 v{V_LW1+2}, {2*(73728-1024)}, v{V_LW1}
    v_add_u32 v{V_LW1+3}, {3*(73728-1024)}, v{V_LW1}
    s_waitcnt lgkmcnt(0)
    """)
    lstamp(e, o, 0)
    srd(e, SRD_A, S_X, 512*576*2)
    XP = [V_LX, V_LX+1, V_LX+2, V_LX+3]; WP = [V_LW1, V_LW1+1, V_LW1+2, V_LW1+3]
    dma_unit(e, SRD_A, XP, S_XO[0], 4*9216, XH, s_lb=S_LB)
    srd(e, SRD_B, S_W1, 576*4608*2)
    dma_unit(e, SRD_B, WP, S_WO[0], 4*73728, RING, wf, s_lb=S_LB)
    lstamp(e, o, 1)
    for k in (1, 2):
        e(f"""
        s_add_u32 s3, s{S_C[k-1]}, 3
        s_cmp_ge_u32 s3, 9
        s_cselect_b32 s{S_C[k]}, 9, 0
        s_sub_u32 s{S_C[k]}, s3, s{S_C[k]}
        s_lshl_b32 s3, s{S_C[k]}, 7
        s_add_u32 s{S_XO[k]}, s{S_T0}, s3
        s_mul_i32 s3, s{S_C[k]}, {64*9216}
        s_add_u32 s{S_WO[k]}, s{S_T1}, s3
        """)
        if (k == 1 and o.early < 2) or not o.early:
            dma_unit(e, SRD_A, XP, S_XO[k], 4*9216, XH + 3*k*UNIT, s_lb=S_LB)
            dma_unit(e, SRD_B, WP, S_WO[k], 4*73728, RING + 3*k*UNIT, wf, s_lb=S_LB)
    if not o.early:
        e(f"s_cmp_eq_u32 s{S_LW}, 2\ns_cbranch_scc1 L_ld_no4")
        e(f"s_add_u32 s{S_OFF}, s{S_WO[0]}, 128")
        dma_unit(e, SRD_B, WP, S_OFF, 4*73728, RING + 9*UNIT, wf, s_lb=S_LB)
        e("L_ld_no4:")
    lstamp(e, o, 2)
    common_ids(e)
    srd(e, SRD_C, S_W2, 576*4608*2)
    for k in (1, 2, 3):
        e(f"v_add_u32 v{V_LW2+k}, {k*(9216-1024)}, v{V_LW2}")
    e(f"""
    s_mul_i32 s{S_T0}, s{S_J}, {576*1152}
    s_mul_i32 s{S_T1}, s{S_G}, 384
    s_add_u32 s{S_T0}, s{S_T0}, s{S_T1}
    """)
    for k, sg in enumerate((S_G, S_G1, S_G2)):
        e(f"s_mul_i32 s3, s{sg}, {192*1152}\ns_add_u32 s{S_GB[k]}, s{S_T0}, s3")
    e(f"""
    s_cmp_eq_u32 s{S_LW}, 1
    s_cselect_b32 s3, s{S_G1}, s{S_G}
    s_cmp_eq_u32 s{S_LW}, 2
    s_cselect_b32 s3, s{S_G2}, s3
    s_sub_u32 s{S_LH}, s{S_CU}, s{S_G}
    s_add_u32 s{S_LH}, s{S_LH}, s3
    s_mul_i32 s{S_LH}, s{S_LH}, 24576
    s_add_u32 s{S_LH}, s{S_LH}, {WS_H}
    v_lshlrev_b32 v{V_LIN}, 4, v0
    """)
    e(f"s_lshl_b32 s3, s{S_MT}, 7")
    load_epoch(e)
    finish_tag(e)
    e(f"""
    s_cmp_eq_u32 s{S_LW}, 1
    s_cbranch_scc1 L_loader1
    s_cmp_eq_u32 s{S_LW}, 2
    s_cbranch_scc1 L_loader2
    """)

def loader(e, o, lw):
    wf = "nt" if o.w_nt else ""
    WP = [V_LW1, V_LW1+1, V_LW1+2, V_LW1+3]; W2P = [V_LW2, V_LW2+1, V_LW2+2, V_LW2+3]
    e(f"L_loader{lw}:")
    XP = [V_LX, V_LX+1, V_LX+2, V_LX+3]
    if o.early == 2: seq = [("x", lw), ("w", lw)]
    elif o.early: seq = [("x", lw), ("w", lw), ("x", 3+lw), ("w", 3+lw)]
    else: seq = [("x", lw), ("w", lw), ("x", 3+lw), ("w", 3+lw), ("x", 6+lw), ("w", 6+lw)] + ([("w", 9+lw)] if 9 + lw < R else [])
    def issue_w(n):
        slot = n % R
        if n < 27:
            s, i = n // 9, n % 9
            t = i // 3
            e(f"s_add_u32 s{S_OFF}, s{S_WO[t]}, {128*s}")
            dma_unit(e, SRD_B, WP, S_OFF, 4*73728, RING + slot*UNIT, wf)
        else:
            p, u = P2[n - 27]
            k, s = PCH[p]
            e(f"s_add_u32 s{S_OFF}, s{S_GB[k]}, {73728*s + 128*u}")
            dma_unit(e, SRD_C, W2P, S_OFF, 4*9216, RING + slot*UNIT, wf)
        seq.append(("w", n))
    hb = {o.h0b: 0, o.h1b: 1, o.h2b: 2}
    hneed = {9: 0, 12: 1, (15 if o.order else 14): 2}
    for st in range(18):
        need = [("w", 3*st + lw)] + ([("x", 3*st + lw)] if st < 3 else []) + ([("h", hneed[st])] if st in hneed else [])
        last = max(seq.index(x) for x in need)
        n = 8 * (len(seq) - 1 - last)
        assert n <= 63
        e(f"s_waitcnt vmcnt({n})")
        if st == 0 and not o.astamp: lstamp(e, o, 3)
        if o.astamp and o.astamp <= st < o.astamp + 6: e(f"s_memtime s[{S_STAMP+16+2*(st-o.astamp)}:{S_STAMP+17+2*(st-o.astamp)}]")
        e("s_barrier")
        if st in hb:
            sg = hb[st]
            e(f"s_add_u32 s{S_OFF}, s{S_LH}, {sg*UNIT}")
            dma_unit(e, SRD_WS, [V_LIN], S_OFF, 4096, XH + (3*sg + lw)*UNIT, "" if o.x_hplain else "sc1"); seq.append(("h", sg))
        if o.early == 2 and st == 0:
            dma_unit(e, SRD_A, XP, S_XO[1], 4*9216, XH + (3 + lw)*UNIT); seq.append(("x", 3 + lw))
            issue_w(3 + lw)
        if o.early and st == 0:
            dma_unit(e, SRD_A, XP, S_XO[2], 4*9216, XH + (6 + lw)*UNIT); seq.append(("x", 6 + lw))
            issue_w(6 + lw)
        if o.early and st == 1 and 9 + lw < R: issue_w(9 + lw)
        for nn in range(R, 54):
            if nn % 3 == lw and issue_barrier(nn) == st:
                if o.x_nodma: seq.append(('w', nn))
                else: issue_w(nn)
    if o.stamps and (lw == 0 or o.astamp):
        base = WS_ST + 192 if not o.astamp else WS_ST + 192*512 + (1 + lw)*64
        e(f"s_waitcnt lgkmcnt(0)\ns_lshl_b32 s3, s{S_CU}, 9\ns_add_u32 s3, s3, {base}\ns_mov_b64 exec, 1\nv_mov_b32 v1, 0")
        for k, r0 in enumerate((S_STAMP, S_STAMP+16, S_STAMP+20, S_STAMP+24)):
            for q in range(4): e(f"v_mov_b32 v{4+q}, s{r0+q}")
            e(f"buffer_store_dwordx4 v[4:7], v1, s[{SRD_WS}:{SRD_WS+3}], s3 offen offset:{k*16}\ns_nop 1")
        e("s_mov_b64 exec, -1")
    e("s_branch L_gather")

def _poll(e, o, name, vaddr, imm, mask, vtag, vtmp, sleep=None):
    sleep = o.sleep if sleep is None else sleep
    e(f"""
    s_mov_b64 exec, {mask}
    s_mov_b32 s{S_CNT}, {SPIN_MAX}
    L_poll_{name}:
    buffer_load_dwordx2 v[{vtmp}:{vtmp+1}], v{vaddr}, s[{SRD_WS}:{SRD_WS+3}], 0 offen offset:{imm} sc1
    s_waitcnt vmcnt(0)
    v_cmp_ne_u64 vcc, v[{vtmp}:{vtmp+1}], v[{vtag}:{vtag+1}]
    s_sub_u32 s{S_CNT}, s{S_CNT}, 1
    s_cmp_eq_u32 s{S_CNT}, 0
    s_cbranch_scc1 L_polldone_{name}
    s_nop 1
    s_cbranch_vccz L_polldone_{name}
    """)
    if sleep: e(f"s_sleep {sleep}")
    e(f"""
    s_branch L_poll_{name}
    L_polldone_{name}:
    s_mov_b64 exec, -1
    """)

def control(e, o):
    V_LIN, V_POLL, V_TAG, V_TMP, V_ID = 8, 9, 10, 12, 14
    S_OFF, S_H1, S_H2, S_XCC, S_H0 = 60, 48, 49, 50, 51
    e("L_control:")
    common_ids(e)
    e("s_waitcnt lgkmcnt(0)")
    load_epoch(e)
    def tlb_warm():
        e(f"""
        v_min_u32 v26, 39, v0
        v_lshlrev_b32 v26, 18, v26
        buffer_load_dword v29, v26, s[{SRD_WS}:{SRD_WS+3}], 0 offen offset:2048 sc1
        v_min_u32 v27, 8, v0
        v_lshlrev_b32 v27, 16, v27
        buffer_load_dword v28, v27, s[{SRD_OUT}:{SRD_OUT+3}], 0 offen sc1
        """)
    if o.tlbw and not o.tlbb: tlb_warm()
    e(f"""
    s_getreg_b32 s{S_XCC}, hwreg(HW_REG_XCC_ID, 0, 4)
    v_lshlrev_b32 v{V_LIN}, 4, v0
    s_sub_u32 s{S_T0}, s{S_CU}, s{S_G}
    s_add_u32 s{S_H1}, s{S_T0}, s{S_G1}
    s_add_u32 s{S_H2}, s{S_T0}, s{S_G2}
    s_lshl_b32 s{S_T0}, s{S_H1}, 7
    s_lshl_b32 s{S_T1}, s{S_H2}, 7
    v_mov_b32 v1, s{S_T0}
    v_mov_b32 v2, s{S_T1}
    s_lshl_b32 s{S_OFF}, s{S_CU}, 7
    v_mov_b32 v7, s{S_OFF}
    v_lshrrev_b32 v3, 2, v0
    v_cmp_eq_u32 vcc, 1, v3
    v_and_b32 v6, 3, v0
    v_lshlrev_b32 v6, 3, v6
    v_cndmask_b32 v4, v7, v1, vcc
    v_cmp_eq_u32 vcc, 2, v3
    s_mul_i32 s{S_H1}, s{S_H1}, 24576
    s_mul_i32 s{S_H2}, s{S_H2}, 24576
    v_cndmask_b32 v4, v4, v2, vcc
    v_add_u32 v4, {WS_HF}, v4
    v_add_u32 v{V_POLL}, v4, v6
    v_cmp_eq_u32 vcc, 0, v0
    s_mul_i32 s{S_H0}, s{S_CU}, 24576
    s_add_u32 s{S_H0}, s{S_H0}, {WS_H}
    v_cndmask_b32 v4, v2, v1, vcc
    v_add_u32 v{V_ID}, {WS_ID}, v4
    s_add_u32 s{S_H1}, s{S_H1}, {WS_H}
    s_add_u32 s{S_H2}, s{S_H2}, {WS_H}
    """)
    finish_tag(e)
    e(f"""
    s_add_u32 s{S_T0}, s{S_XCC}, 16
    s_add_u32 s{S_T0}, s{S_TAG}, s{S_T0}
    s_addc_u32 s{S_T1}, s{S_TAG+1}, 0
    v_mov_b32 v4, s{S_T0}
    v_mov_b32 v5, s{S_T1}
    s_lshl_b32 s3, s{S_CU}, 7
    s_add_u32 s3, s3, {WS_ID}
    v_mov_b32 v6, s3
    v_mov_b32 v{V_TAG}, s{S_TAG}
    v_mov_b32 v{V_TAG+1}, s{S_TAG+1}
    s_mov_b64 exec, 1
    buffer_store_dwordx2 v[4:5], v6, s[{SRD_WS}:{SRD_WS+3}], 0 offen sc1
    s_mov_b64 exec, -1
    """)
    def hdma(s):
        for k, sh in enumerate((S_H0, S_H1, S_H2)):
            p = 3 * s + k
            e(f"s_add_u32 s{S_OFF}, s{sh}, {s*UNIT}")
            dma_unit(e, SRD_WS, [V_LIN], S_OFF, 4096, XH + p * UNIT, "sc1")
    def stamp(k):
        if o.stamps: e(f"s_memtime s[{S_STAMP+4+2*k}:{S_STAMP+5+2*k}]\ns_waitcnt lgkmcnt(0)")
    bl = [0,1,2,3,6,9,10,11,12,13,14,15,16,17] if o.stampset == 0 else [0,2,3,4,5,6,7,8,9,10,11,12,14,17]
    slots = {b: i for i, b in enumerate(bl)}
    for st in range(18):
        if st == o.fastb - 2:
            e(f"s_mov_b64 exec, 3\nbuffer_load_dwordx2 v[{V_TMP}:{V_TMP+1}], v{V_ID}, s[{SRD_WS}:{SRD_WS+3}], 0 offen sc1\ns_mov_b64 exec, -1")
        if o.touch and st == o.fastb - 2:
            e(f"""
            v_lshlrev_b32 v20, 7, v0
            s_mul_i32 s{S_OFF}, s{S_CU}, 384
            s_add_u32 s{S_OFF}, s{S_OFF}, {WS_PF}
            s_mov_b64 exec, 7
            buffer_load_dword v24, v20, s[{SRD_WS}:{SRD_WS+3}], s{S_OFF} offen sc1
            s_lshl_b32 s{S_OFF}, s{S_CU}, 7
            s_add_u32 s{S_OFF}, s{S_OFF}, {WS_HF}
            s_mov_b64 exec, 1
            buffer_load_dword v25, v20, s[{SRD_WS}:{SRD_WS+3}], s{S_OFF} offen
            s_mov_b64 exec, -1
            """)
        for sg, tb in enumerate((o.t0b, o.t1b, o.t2b)):
            if o.ctouch and st == tb:
                e(f"""
                s_mul_i32 s{S_OFF}, s{S_CU}, 24576
                s_add_u32 s{S_OFF}, s{S_OFF}, {WS_H + sg*UNIT}
                buffer_load_dword v{21+sg}, v20, s[{SRD_WS}:{SRD_WS+3}], s{S_OFF} offen
                """)
        if st == o.fastb: e("s_waitcnt lgkmcnt(0)")
        if st == o.fastb - 1:
            e(f"""
            s_mov_b64 exec, 3
            s_mov_b32 s{S_CNT}, {SPIN_MAX}
            s_waitcnt vmcnt({(2 + (o.ctouch and o.fastb - 2 <= o.t0b <= o.fastb - 1)) if o.touch else 0})
            s_branch L_check_id
            L_poll_id:
            buffer_load_dwordx2 v[{V_TMP}:{V_TMP+1}], v{V_ID}, s[{SRD_WS}:{SRD_WS+3}], 0 offen sc1
            s_waitcnt vmcnt(0)
            L_check_id:
            v_subrev_co_u32 v4, vcc, s{S_TAG}, v{V_TMP}
            v_mov_b32 v6, s{S_TAG+1}
            s_nop 0
            v_subb_co_u32 v5, vcc, v{V_TMP+1}, v6, vcc
            v_subrev_u32 v4, 16, v4
            v_lshrrev_b32 v6, 4, v4
            v_or_b32 v6, v6, v5
            v_cmp_ne_u32 vcc, 0, v6
            s_sub_u32 s{S_CNT}, s{S_CNT}, 1
            s_cmp_eq_u32 s{S_CNT}, 0
            s_cbranch_scc1 L_id_done
            s_nop 1
            s_cbranch_vccz L_id_done
            s_sleep 1
            s_branch L_poll_id
            L_id_done:
            v_cmp_ne_u32 vcc, s{S_XCC}, v4
            s_mov_b32 s{S_FAST}, {0 if o.force_slow else 1}
            s_nop 1
            s_cmp_eq_u64 vcc, 0
            s_cselect_b32 s{S_FAST}, s{S_FAST}, 0
            s_mov_b64 exec, 1
            v_mov_b32 v4, s{S_FAST}
            v_mov_b32 v5, {FASTW}
            ds_write_b32 v5, v4
            s_mov_b64 exec, -1
            """)
        if st == o.h0b: _poll(e, o, "h0", V_POLL, 0, "0xfff", V_TAG, V_TMP)
        if st == o.h1b: _poll(e, o, "h1", V_POLL, 32, "0xfff", V_TAG, V_TMP)
        if st == o.h2b: _poll(e, o, "h2", V_POLL, 64, "0xfff", V_TAG, V_TMP)
        e("s_barrier")
        if o.tlbw and o.tlbb and st == o.tlbb: tlb_warm()
        if o.wbl2 and st == o.wbl2:
            e(f"""
            s_or_b32 s3, s{S_MT}, s{S_G}
            s_cmp_lg_u32 s3, 0
            s_cbranch_scc1 L_nowb
            buffer_wbl2 sc1
            L_nowb:
            """)
        if st in slots: stamp(slots[st])
    if o.stamps:
        e(f"s_waitcnt lgkmcnt(0)")
        e(f"s_lshl_b32 s3, s{S_CU}, 9\ns_add_u32 s3, s3, {WS_ST}")
        e("s_mov_b64 exec, 1\nv_mov_b32 v1, 0")
        for k in range(0, 32, 4):
            for q in range(4): e(f"v_mov_b32 v{4+q}, s{S_STAMP+k+q}")
            e(f"buffer_store_dwordx4 v[4:7], v1, s[{SRD_WS}:{SRD_WS+3}], s3 offen offset:{k*4}\ns_nop 1")
        e(f"v_mov_b32 v4, s{S_FAST}\nbuffer_store_dword v4, v1, s[{SRD_WS}:{SRD_WS+3}], s3 offen offset:128")
        e("s_mov_b64 exec, -1")
    e("s_branch L_gather")

V_T1, V_T1B, V_T2, V_T2B = 2, 3, 4, 5
V_X = 6; V_X8 = 10
V_PF, V_PV = 6, 7
V_H, V_H8, V_FW, V_HG = 14, 15, 16, 17
V_HF = 1
V_TAG = 18
V_EP = 20
V_P = 24
V_WF = 32
V_ACC1 = 64
V_XF = 112
S_MH, S_NH, S_HST, S_NL2E = 48, 49, 50, 51
S_PO = 52
S_PFB = 54

class Stream:
    def __init__(self, e): self.e = e; self.nlds = 0; self.done = 0; self.count = 0; self.fast_ok = False; self.flags = set(); self.hold_silu = 0
    def emit(self, s):
        for l in s.split("\n"):
            l = l.strip()
            if l:
                self.e(l)
                if not l.endswith(":"): self.count += 1
    def lds(self, s):
        self.emit(s); self.nlds += 1; return self.nlds
    def wait_lds(self, opid):
        if opid <= self.done: return
        n = min(self.nlds - opid, 15)
        self.emit(f"s_waitcnt lgkmcnt({n})"); self.done = self.nlds - n

_uid = [0]
OUTLINE = []
NOST = [False, False, 0, False]
def dual(txt, force_sc1=False):
    if force_sc1: return txt + " sc1"
    _uid[0] += 1; k = _uid[0]
    OUTLINE.append(f"L_ds{k}:\n{txt} sc1\ns_branch L_dd{k}")
    nt = " nt" if (NOST[3] and "dwordx4" in txt) else ""
    return (f"s_cmp_eq_u32 s{S_FAST}, 0\ns_cbranch_scc1 L_ds{k}\n{txt}{nt}\nL_dd{k}:")

def silu_ops(acc, s, noep=False):
    ops = []
    for q in range(4):
        v = [acc + 4 * q + r for r in range(4)]
        t = [V_EP + r for r in range(4)]
        if not noep:
            for r in range(4): ops.append(("silu", f"v_mul_f32 v{t[r]}, s{S_NL2E}, v{v[r]}"))
            for r in range(4): ops.append(("v", f"v_exp_f32 v{t[r]}, v{t[r]}"))
            for r in range(4): ops.append(("v", f"v_add_f32 v{t[r]}, 1.0, v{t[r]}"))
            for r in range(4): ops.append(("v", f"v_rcp_f32 v{t[r]}, v{t[r]}"))
            for r in range(4): ops.append(("silu", f"v_mul_f32 v{v[r]}, v{v[r]}, v{t[r]}"))
        ops.append(("silu", f"v_cvt_pk_bf16_f32 v{V_P+2*q}, v{v[0]}, v{v[1]}"))
        ops.append(("silu", f"v_cvt_pk_bf16_f32 v{V_P+2*q+1}, v{v[2]}, v{v[3]}"))
    sts = [("st", "s_nop 0" if NOST[0] else dual(f"buffer_store_dwordx4 v[{V_P+4*tt}:{V_P+4*tt+3}], v{V_HG}, s[{SRD_WS}:{SRD_WS+3}], s{S_HST} offen offset:{tt*1024}", s < NOST[2])) for tt in range(2)]
    if s < NOST[2] or s == 2:
        k = [i for i, x in enumerate(ops) if x[1].startswith(f"v_cvt_pk_bf16_f32 v{V_P+3},")]
        if k: ops.insert(k[0] + 1, sts[0]); ops.append(sts[1])
        else: ops += sts
    else: ops += sts
    if s < 2: ops.append(("v", f"s_add_u32 s{S_HST}, s{S_HST}, {UNIT}"))
    return ops

def hflag_ops(s, n):
    return [("v", f"s_waitcnt vmcnt({n})\ns_mov_b64 exec, 1"),
            ("st", dual(f"buffer_store_dwordx2 v[{V_TAG}:{V_TAG+1}], v{V_HF}, s[{SRD_WS}:{SRD_WS+3}], 0 offen offset:{s*32}")),
            ("flag%d" % s, "s_mov_b64 exec, -1")]

def pflag(e, u, n):
    e(f"""
    s_waitcnt vmcnt({n})
    s_mov_b64 exec, 0xf
    buffer_store_dwordx2 v[{V_TAG}:{V_TAG+1}], v{V_PF}, s[{SRD_WS}:{SRD_WS+3}], 0 offen offset:{u*128} sc1
    s_mov_b64 exec, -1
    """)

def compute(e, o):
    e("L_compute:")
    if o.prio: e(f"s_setprio {o.prio}")
    common_ids(e)
    e(f"""
    s_lshr_b32 s{S_MH}, s{S_WAVE}, 1
    s_and_b32 s{S_NH}, s{S_WAVE}, 1
    s_mov_b32 s{S_NL2E}, 0xbfb8aa3b
    v_lshrrev_b32 v20, 5, v0
    v_lshrrev_b32 v21, 4, v0
    v_and_b32 v21, 1, v21
    v_and_b32 v22, 15, v0
    v_lshrrev_b32 v23, 2, v22
    v_and_b32 v22, 3, v22
    v_lshrrev_b32 v24, 1, v22
    v_lshl_add_u32 v24, v21, 1, v24
    s_lshl_b32 s{S_T0}, s{S_NH}, 2
    v_add_u32 v24, s{S_T0}, v24
    v_and_b32 v25, 2, v23
    v_lshlrev_b32 v25, 1, v25
    v_xor_b32 v24, v24, v25
    v_lshlrev_b32 v24, 4, v24
    v_and_b32 v22, 1, v22
    v_lshl_add_u32 v24, v22, 3, v24
    v_lshl_add_u32 v24, v23, 7, v24
    v_add_u32 v24, {RING}, v24
    v_lshl_add_u32 v{V_T1}, v20, 10, v24
    v_lshl_add_u32 v{V_T2}, v20, 9, v24
    v_add_u32 v{V_T1B}, {8*UNIT}, v{V_T1}
    v_add_u32 v{V_T2B}, {8*UNIT}, v{V_T2}
    v_and_b32 v25, 31, v0
    v_lshrrev_b32 v26, 1, v25
    v_and_b32 v26, 7, v26
    v_xor_b32 v26, v20, v26
    v_lshlrev_b32 v26, 4, v26
    s_lshl_b32 s{S_T1}, s{S_MH}, 12
    v_lshl_add_u32 v26, v25, 7, v26
    v_add_u32 v{V_X}, s{S_T1}, v26
    v_xor_b32 v{V_X+1}, 32, v{V_X}
    v_xor_b32 v{V_X+2}, 64, v{V_X}
    v_xor_b32 v{V_X+3}, 96, v{V_X}
    """)
    for ks in range(4): e(f"v_add_u32 v{V_X8+ks}, {8*UNIT}, v{V_X+ks}")
    e(f"""
    v_lshlrev_b32 v27, 4, v0
    v_add_u32 v{V_H}, s{S_T1}, v27
    v_add_u32 v{V_H8}, {8*UNIT}, v{V_H}
    s_lshl_b32 s{S_T0}, s{S_NH}, 11
    v_add_u32 v{V_HG}, s{S_T0}, v{V_H}
    s_mul_i32 s{S_HST}, s{S_CU}, 24576
    s_add_u32 s{S_HST}, s{S_HST}, {WS_H}
    s_lshl_b32 s{S_T0}, s{S_CU}, 7
    s_lshl_b32 s{S_T1}, s{S_WAVE}, 3
    s_add_u32 s{S_T0}, s{S_T0}, s{S_T1}
    s_add_u32 s{S_T0}, s{S_T0}, {WS_HF}
    v_mov_b32 v{V_HF}, s{S_T0}
    s_mul_i32 s{S_T0}, s{S_MT}, 3
    s_add_u32 s{S_T0}, s{S_T0}, s{S_G}
    s_lshl_b32 s{S_T1}, s{S_MH}, 2
    s_mul_i32 s{S_T1}, s{S_T1}, 24
    s_add_u32 s{S_T0}, s{S_T0}, s{S_T1}
    s_mul_i32 s{S_PO}, s{S_T0}, 24576
    s_mul_i32 s{S_T1}, s{S_J}, 3072
    s_add_u32 s{S_PO}, s{S_PO}, s{S_T1}
    s_lshl_b32 s{S_T1}, s{S_NH}, 9
    s_add_u32 s{S_PO}, s{S_PO}, s{S_T1}
    s_add_u32 s{S_PO}, s{S_PO}, {WS_P}
    s_add_u32 s{S_PO+1}, s{S_PO}, {2*24*24576}
    s_mul_i32 s{S_T0}, s{S_T0}, 384
    s_lshl_b32 s{S_T1}, s{S_J}, 4
    s_add_u32 s{S_T0}, s{S_T0}, s{S_T1}
    s_lshl_b32 s{S_T1}, s{S_NH}, 3
    s_add_u32 s{S_T0}, s{S_T0}, s{S_T1}
    s_add_u32 s{S_PFB}, s{S_T0}, {WS_PF}
    v_mov_b32 v{V_FW}, {FASTW}
    s_waitcnt lgkmcnt(0)
    """)
    load_epoch(e)
    finish_tag(e)
    e(f"v_mov_b32 v{V_TAG}, s{S_TAG}\nv_mov_b32 v{V_TAG+1}, s{S_TAG+1}\ns_waitcnt vmcnt(0)")

    tasks = []
    def ringbase(n, vA, vB):
        slot = n % R
        return (vA, slot * UNIT) if slot < 8 else (vB, (slot - 8) * UNIT)
    for n in range(27):
        st = n // 3; s = n // 9; i = n % 9
        base, so = ringbase(n, V_T1, V_T1B)
        for ks in range(4):
            t = dict(step=st, first=(n % 3 == 0 and ks == 0), idx=len(tasks))
            t["wr"] = [(base, so + (16 * ks + 4 * b) * 128) for b in range(2)]
            xf = V_XF + (i * 4 + ks) * 4
            t["pre"] = []
            if s == 0:
                xb = (V_X8 + ks) if i == 8 else (V_X + ks)
                t["pre"] = [f"ds_read_b128 v[{xf}:{xf+3}], v{xb} offset:{0 if i == 8 else i*UNIT}"]
            acc = V_ACC1 + 16 * (s & 1)
            t["mf"] = lambda wf, acc=acc, xf=xf, z=(i == 0 and ks == 0): f"v_mfma_f32_32x32x16_bf16 v[{acc}:{acc+15}], v[{wf}:{wf+3}], v[{xf}:{xf+3}], " + ("0" if z else f"v[{acc}:{acc+15}]")
            tasks.append(t)
    seen_p, seen_u, last_u = set(), set(), {}
    ACCU = {0: V_ACC1 + 16, 1: V_ACC1 + 32, 2: V_ACC1}
    for q, (p, u) in enumerate(P2):
        n = 27 + q; st = n // 3
        base, so = ringbase(n, V_T2, V_T2B)
        for ks in range(4):
            t = dict(step=st, first=(n % 3 == 0 and ks == 0), idx=len(tasks))
            t["wr"] = [(base, so + (16 * ks + 8 * b) * 128) for b in range(2)]
            hf = V_XF + (p * 4 + ks) * 4
            t["pre"] = []
            if p not in seen_p:
                hb = V_H8 if p == 8 else V_H
                t["pre"] = [f"ds_read_b128 v[{hf}:{hf+3}], v{hb} offset:{(0 if p == 8 else p*UNIT) + ks*1024}"]
            acc = ACCU[u]
            t["mf"] = lambda wf, acc=acc, hf=hf, z=(u not in seen_u and ks == 0): f"v_mfma_f32_32x32x16_bf16 v[{acc}:{acc+15}], v[{hf}:{hf+3}], v[{wf}:{wf+3}], " + ("0" if z else f"v[{acc}:{acc+15}]")
            tasks.append(t); last_u[u] = t["idx"]
        seen_p.add(p); seen_u.add(u)
    global PUBACC
    n = len(tasks)
    S = Stream(e)
    NP = n // 2
    side = []; side_start = [0]; hold = [0]; cur = [0]
    last_of_step = {}
    for t in tasks: last_of_step[t["step"]] = t["idx"]
    def pubops(u):
        ops = []
        a = ACCU[u]
        for q in range(8): ops.append(("v", f"v_cvt_pk_bf16_f32 v{V_P+q}, v{a+2*q}, v{a+2*q+1}"))
        ops.append(("v", "s_nop 0"))
        for q in range(2):
            d = V_P + 4 * q
            ops.append(("v", f"v_permlane32_swap_b32 v{d}, v{d+2}"))
            ops.append(("v", f"v_permlane32_swap_b32 v{d+1}, v{d+3}"))
        if not o.x_nopub:
            for q in range(2):
                d = V_P + 4 * q
                ops.append(("st", f"buffer_store_dwordx4 v[{d}:{d+3}], v{V_PV}, s[{SRD_WS}:{SRD_WS+3}], s{S_PO+q} offen offset:{u*1024} sc1"))
            ops.append(("v", "s_nop 0"))
        return ops
    def cost(kind, txt):
        if kind == "lds": return 24
        if kind == "st": return 16
        if txt.startswith(("v_exp", "v_rcp")): return 8
        if txt.startswith("s_") and not txt.startswith(("s_waitcnt", "s_nop")): return 2
        return 4
    def pop_side(budget):
        used = 0
        while side and S.count >= side_start[0] and cur[0] >= hold[0]:
            kind, txt = side[0]
            if kind == "gap": side.pop(0); hold[0] = cur[0] + txt; continue
            if kind == "st" and "L_ds" in txt and not S.fast_ok: break
            if kind == "silu" and S.count < S.hold_silu: break
            c = cost(kind, txt)
            if used and used + c > budget: break
            side.pop(0)
            if kind == "lds": S.lds(txt)
            else: S.emit(txt)
            if kind.startswith("flag"): S.flags.add(int(kind[4:]))
            used += c
    NR = o.LP + 1
    def tr_reads(q):
        for h in range(2):
            t = tasks[2*q + h]
            wf = V_WF + 8 * (q % NR) + 4 * h
            t["wf"] = wf
            for b, (base, off) in enumerate(t["wr"]):
                t["last"] = S.lds(f"ds_read_b64_tr_b16 v[{wf+2*b}:{wf+2*b+1}], v{base} offset:{off}")
    def pre_reads(q):
        k = 0
        for h in range(2):
            t = tasks[2*q + h]
            for x in t["pre"]:
                t["last"] = S.lds(x); k += 1
        return k
    def barrier(step):
        for fs, fb in ((0, o.h0b), (1, o.h1b), (2, o.h2b)):
            if step == fb: assert fs in S.flags, f"flag {fs} must be sent before B_{fb} (the control wave waits for it there)"
        if o.astamp and o.astamp <= step < o.astamp + 6: S.emit(f"s_memtime s[{S_STAMP+16+2*(step-o.astamp)}:{S_STAMP+17+2*(step-o.astamp)}]")
        S.emit("s_waitcnt lgkmcnt(0)"); S.done = S.nlds
        S.emit("s_barrier")
    late_addr = [("v", f"v_and_b32 v{V_PV}, 31, v0"), ("v", f"v_lshrrev_b32 v{V_PF}, 5, v0"), ("v", f"v_lshlrev_b32 v{V_PV}, 4, v{V_PV}"),
                 ("v", f"v_mul_u32_u24 v{V_PF}, {24*24576}, v{V_PF}"), ("v", f"v_add_u32 v{V_PV}, v{V_PV}, v{V_PF}"),
                 ("v", f"v_mul_u32_u24 v{V_PF}, {24*384}, v0"), ("v", f"v_add_u32 v{V_PF}, s{S_PFB}, v{V_PF}")]
    budget = o.epb
    pubq = []
    fast_known = False
    barrier(0)
    for q0 in range(o.LP):
        tr_reads(q0); pre_reads(q0)
    for q in range(NP):
        cur[0] = q
        A, B = tasks[2*q], tasks[2*q+1]
        nq = q + o.LP
        deferred = False
        f9 = 6 * 9
        if o.ep2first and q == f9:
            S.emit("s_nop 7\ns_nop 3")
            side_start[0] = 0; S.hold_silu = 0
            pop_side(10**6)
            barrier(9)
            for q0 in range(f9, f9 + o.LP): tr_reads(q0); pre_reads(q0)
        if nq < NP and not (o.ep2first and f9 <= nq < f9 + o.LP):
            if tasks[2*nq]["first"]:
                barrier(tasks[2*nq]["step"]); deferred = True
            else:
                tr_reads(nq)
        skip_pre = o.ep2first and f9 <= nq < f9 + o.LP
        if A["first"] and A["step"] == 11:
            assert not any(x[0] == "silu" for x in side), "acc of sub-tile 2 still in use"
        S.wait_lds(max(A["last"], B["last"]))
        S.emit(A["mf"](A["wf"]))
        if deferred:
            if tasks[2*nq]["step"] == o.fastb: S.lds(f"ds_read_b32 v{V_FW}, v{V_FW}")
            tr_reads(nq); pre_reads(nq)
        else:
            k = pre_reads(nq) if (nq < NP and not skip_pre) else 0
            if not (o.ep2first and q >= f9 - 0 and side and side[0][0] == 'silu' and False): pop_side(budget if k == 0 else max(budget - 24, 4))
            if o.wgap2 and q + 1 < NP and k == 0 and "last" in tasks[2*q+2] and "last" in tasks[2*q+3]:
                S.wait_lds(max(tasks[2*q+2]["last"], tasks[2*q+3]["last"]))
        S.emit(B["mf"](B["wf"]))
        if A["first"] and A["step"] == o.fastb:
            S.emit(f"v_readfirstlane_b32 s{S_FAST}, v{V_FW}"); S.fast_ok = True
        im = B["idx"]
        if im == last_of_step.get(2):
            side += silu_ops(V_ACC1, 0, o.x_noep) + [("gap", o.gap0)] + hflag_ops(0, 0); side_start[0] = S.count + 12; budget = o.epb0
        if im == last_of_step.get(5):
            assert not any(x[0] == "silu" or x[0] == "st" and "x4" in x[1] for x in side), len(side)
            side += silu_ops(V_ACC1 + 16, 1, o.x_noep); budget = o.epb
            S.hold_silu = S.count + 12
        if im == last_of_step.get(8):
            assert not side, len(side)
            ops2 = silu_ops(V_ACC1, 2, o.x_noep)
            k1 = min(o.f1pos, len(ops2) - 2)
            ops2 = ops2[:k1] + hflag_ops(1, 0) + ops2[k1:]
            side += ops2 + late_addr + [("gap", o.gap2)] + hflag_ops(2, 0); side_start[0] = S.count + 12; budget = o.epb2
        for u, at in ((0, o.pub0), (1, o.pub1)):
            if at and q >= NP - at and im >= last_u[u] + 4 and u not in pubq and not side:
                pubq.append(u); side += pubops(u); side_start[0] = S.count; budget = 24
    assert not side
    if o.x_pad:
        e(f"s_mov_b32 s60, {o.x_pad}\nL_xpad:\nv_mov_b32 v20, v21\nv_mov_b32 v22, v21\nv_mov_b32 v20, v21\nv_mov_b32 v22, v21\ns_sub_u32 s60, s60, 1\ns_cmp_lg_u32 s60, 0\ns_cbranch_scc1 L_xpad")
    e("s_nop 7")
    if o.stamps: e(f"s_memtime s[{S_STAMP+4}:{S_STAMP+5}]")
    e("s_nop 3")
    rest = [u for u in (0, 1, 2) if u not in pubq]
    order = pubq + rest
    for u in rest:
        for k, x in pubops(u): e(x)
    for i, u in enumerate(order):
        younger = 2 * (len(order) - 1 - i) + i
        if o.x_nopub: younger = i
        if o.stamps and i == 2: e(f"s_memtime s[{S_STAMP+14}:{S_STAMP+15}]")
        pflag(e, u, younger)
    if o.stamps:
        e(f"s_memtime s[{S_STAMP+6}:{S_STAMP+7}]")
        e(f"s_cmp_lg_u32 s{S_WAVE}, 0\ns_cbranch_scc1 L_end\ns_waitcnt lgkmcnt(0)")
        e(f"s_lshl_b32 s3, s{S_CU}, 9\ns_add_u32 s3, s3, {WS_ST + 256}\ns_mov_b64 exec, 1\nv_mov_b32 v1, 0")
        for k in range(0, 16, 4):
            for q in range(4): e(f"v_mov_b32 v{4+q}, s{S_STAMP+k+q}")
            e(f"buffer_store_dwordx4 v[4:7], v1, s[{SRD_WS}:{SRD_WS+3}], s3 offen offset:{k*4}\ns_nop 1")
        if o.astamp:
            e(f"s_lshl_b32 s3, s{S_CU}, 9\ns_add_u32 s3, s3, {WS_ST + 192*512}")
            for k, r0 in enumerate((S_STAMP, S_STAMP+16, S_STAMP+20, S_STAMP+24)):
                for q in range(4): e(f"v_mov_b32 v{4+q}, s{r0+q}")
                e(f"buffer_store_dwordx4 v[4:7], v1, s[{SRD_WS}:{SRD_WS+3}], s3 offen offset:{k*16}\ns_nop 1")
        e("s_waitcnt vmcnt(0)")
    e("s_endpgm")

def gather(e, o):
    VT, VA, VL, VD, VS = 2, 4, 5, 8, 44
    S_U = 48
    e("L_gather:")
    e(f"""
    s_cmp_eq_u32 s{S_WAVE}, 7
    s_cbranch_scc1 L_end
    s_sub_u32 s{S_U}, s{S_WAVE}, 4
    s_mul_i32 s3, s{S_CU}, 384
    s_lshl_b32 s50, s{S_U}, 7
    s_add_u32 s3, s3, s50
    s_add_u32 s3, s3, {WS_PF}
    v_lshlrev_b32 v{VA}, 3, v0
    v_add_u32 v{VA}, s3, v{VA}
    v_lshlrev_b32 v{VL}, 4, v0
    v_mov_b32 v{VT}, s{S_TAG}
    v_mov_b32 v{VT+1}, s{S_TAG+1}
    s_mul_i32 s52, s{S_CU}, 24576
    s_lshl_b32 s53, s{S_U}, 10
    s_add_u32 s52, s52, s53
    s_add_u32 s52, s52, {WS_P}
    v_lshlrev_b32 v6, 1, v0
    s_lshl_b32 s50, s{S_MT}, 6
    s_lshl_b32 s51, s{S_J}, 3
    s_add_u32 s50, s50, s51
    s_mul_i32 s50, s50, 1152
    s_mul_i32 s51, s{S_G}, 384
    s_add_u32 s50, s50, s51
    s_lshl_b32 s51, s{S_U}, 7
    s_add_u32 s50, s50, s51
    s_add_u32 s53, s50, 4608
    s_mov_b32 s54, 0xffff0000
    """)
    if o.ppipe:
        e(f"""
        s_mov_b64 exec, 0xffff
        s_mov_b32 s{S_CNT}, {SPIN_MAX}
        buffer_load_dwordx2 v[40:41], v{VA}, s[{SRD_WS}:{SRD_WS+3}], 0 offen sc1
        L_pp:
        s_sleep {o.ppipe}
        buffer_load_dwordx2 v[42:43], v{VA}, s[{SRD_WS}:{SRD_WS+3}], 0 offen sc1
        s_waitcnt vmcnt(1)
        v_cmp_ne_u64 vcc, v[40:41], v[{VT}:{VT+1}]
        s_sub_u32 s{S_CNT}, s{S_CNT}, 1
        s_cmp_eq_u32 s{S_CNT}, 0
        s_cbranch_scc1 L_ppdone
        s_nop 1
        s_cbranch_vccz L_ppdone
        s_sleep {o.ppipe}
        buffer_load_dwordx2 v[40:41], v{VA}, s[{SRD_WS}:{SRD_WS+3}], 0 offen sc1
        s_waitcnt vmcnt(1)
        v_cmp_ne_u64 vcc, v[42:43], v[{VT}:{VT+1}]
        s_nop 4
        s_cbranch_vccnz L_pp
        L_ppdone:
        s_mov_b64 exec, -1
        """)
    else:
        _poll(e, o, "p", VA, 0, "0xffff", VT, 40, o.psleep)
    if o.stamps: e(f"s_memtime s[{S_STAMP+8}:{S_STAMP+9}]")
    for p in range(8):
        e(f"buffer_load_dwordx4 v[{VD+4*p}:{VD+4*p+3}], v{VL}, s[{SRD_WS}:{SRD_WS+3}], s52 offen sc1")
        if p < 7: e(f"s_add_u32 s52, s52, 3072")
    e(f"""
    s_or_b32 s51, s{S_J}, s{S_G}
    s_or_b32 s51, s51, s{S_U}
    s_cmp_lg_u32 s51, 0
    s_cbranch_scc1 L_noepoch
    s_lshl_b32 s51, s{S_MT}, 7
    v_mov_b32 v{VA}, s51
    s_mov_b64 exec, 1
    buffer_store_dwordx2 v[{VT}:{VT+1}], v{VA}, s[{SRD_WS}:{SRD_WS+3}], 0 offen sc1
    s_mov_b64 exec, -1
    s_waitcnt vmcnt(0)
    L_noepoch:
    """)
    for p in range(8):
        e(f"s_waitcnt vmcnt({7-p})")
        for d in range(4):
            src = VD + 4 * p + d
            if p == 0:
                e(f"v_lshlrev_b32 v{VS+2*d}, 16, v{src}\nv_and_b32 v{VS+2*d+1}, s54, v{src}")
            else:
                e(f"v_lshlrev_b32 v{VS+8}, 16, v{src}\nv_and_b32 v{VS+9}, s54, v{src}")
                e(f"v_add_f32 v{VS+2*d}, v{VS+2*d}, v{VS+8}\nv_add_f32 v{VS+2*d+1}, v{VS+2*d+1}, v{VS+9}")
    for d in range(4):
        e(f"v_cvt_pk_bf16_f32 v{VD+d}, v{VS+2*d}, v{VS+2*d+1}")
    if o.outx4:
        e(f"""
        s_lshl_b32 s51, s{S_U}, 10
        v_add_u32 v7, s51, v6
        v_lshl_add_u32 v{VA}, v0, 4, s51
        v_lshrrev_b32 v{VS+8}, 3, v0
        v_mul_u32_u24 v{VS+8}, 1152, v{VS+8}
        v_and_b32 v{VS+9}, 7, v0
        v_lshl_add_u32 v{VS+8}, v{VS+9}, 4, v{VS+8}
        """)
        for d in range(4):
            e(f"ds_write_b16 v7, v{VD+d} offset:{2*d*128}\nds_write_b16_d16_hi v7, v{VD+d} offset:{(2*d+1)*128}")
        e(f"""
        s_waitcnt lgkmcnt(0)
        ds_read_b128 v[{VD+4}:{VD+7}], v{VA}
        s_waitcnt lgkmcnt(0)
        buffer_store_dwordx4 v[{VD+4}:{VD+7}], v{VS+8}, s[{SRD_OUT}:{SRD_OUT+3}], s50 offen {"sc1" if o.outx4 == 2 else ""}
        """)
    else:
      for d in range(4):
        so = "s50" if d < 2 else "s53"
        e(f"buffer_store_short v{VD+d}, v6, s[{SRD_OUT}:{SRD_OUT+3}], {so} offen offset:{(2*d % 4)*1152}")
        e(f"buffer_store_short_d16_hi v{VD+d}, v6, s[{SRD_OUT}:{SRD_OUT+3}], {so} offen offset:{((2*d+1) % 4)*1152}")
    if o.stamps:
        e(f"""
        s_cmp_lg_u32 s{S_WAVE}, 6
        s_cbranch_scc1 L_end
        s_waitcnt vmcnt(0)
        s_memtime s[{S_STAMP+10}:{S_STAMP+11}]
        s_memrealtime s[{S_STAMP+12}:{S_STAMP+13}]
        s_waitcnt lgkmcnt(0)
        s_lshl_b32 s3, s{S_CU}, 9
        s_add_u32 s3, s3, {WS_ST + 384}
        s_mov_b64 exec, 1
        v_mov_b32 v1, 0
        """)
        for k in range(0, 16, 4):
            for q in range(4): e(f"v_mov_b32 v{4+q}, s{S_STAMP+k+q}")
            e(f"buffer_store_dwordx4 v[4:7], v1, s[{SRD_WS}:{SRD_WS+3}], s3 offen offset:{k*4}\ns_nop 1")
        e("s_waitcnt vmcnt(0)")
    e("s_endpgm")

def prefetch(e, o):
    e("L_prefetch:")
    e(f"""
    s_sub_u32 s3, s3, 24
    s_mov_b32 s52, s3
    s_mov_b32 s{S_T0}, 10923
    v_mul_u32_u24 v1, s{S_T0}, v0
    v_lshrrev_b32 v1, 16, v1
    v_mul_u32_u24 v2, 6, v1
    v_sub_u32 v2, v0, v2
    v_lshrrev_b32 v3, 1, v2
    v_and_b32 v2, 1, v2
    v_mul_u32_u24 v3, 384, v3
    v_lshl_add_u32 v3, v2, 7, v3
    v_mul_u32_u24 v1, 9216, v1
    v_add_u32 v1, v1, v3
    s_mul_i32 s{S_T0}, s3, {72*9216}
    s_mul_i32 s{S_T1}, s{S_J}, 1152
    s_add_u32 s{S_T0}, s{S_T0}, s{S_T1}
    s_add_u32 s{S_T0}, s{S_T0}, 128
    s_mul_i32 s{S_T1}, s{S_J}, {576*1152}
    s_mul_i32 s3, s3, {72*1152}
    s_add_u32 s{S_T1}, s{S_T1}, s3
    v_lshlrev_b32 v4, 7, v0
    v_add_u32 v5, 65536, v4
    v_min_u32 v5, {647*128}, v5
    v_cmp_gt_u32 vcc, 432, v0
    s_waitcnt lgkmcnt(0)
    """)
    srd(e, SRD_B, S_W1, 576*4608*2)
    srd(e, SRD_C, S_W2, 576*4608*2)
    e(f"""
    v_mov_b32 v6, 0
    v_cndmask_b32 v1, v6, v1, vcc
    """)
    if o.pfdelay:
        e(f"""
        v_min_u32 v15, {o.pfdelay * 8 - 1}, v0
        v_mul_u32_u24 v15, 9216, v15
        s_sub_u32 s53, s{S_T0}, 128
        buffer_load_dword v16, v15, s[{SRD_B}:{SRD_B+3}], s53 offen
        s_waitcnt vmcnt(0)
        """)
    if o.pfsplit:
        e(f"""
        v_cmp_eq_u32 vcc, 0, v2
        s_nop 1
        s_and_saveexec_b64 s[54:55], vcc
        buffer_load_dword v8, v1, s[{SRD_B}:{SRD_B+3}], s{S_T0} offen
        s_waitcnt vmcnt(0)
        s_andn2_b64 exec, s[54:55], exec
        buffer_load_dword v8, v1, s[{SRD_B}:{SRD_B+3}], s{S_T0} offen
        s_mov_b64 exec, s[54:55]
        """)
    else:
        e(f"buffer_load_dword v8, v1, s[{SRD_B}:{SRD_B+3}], s{S_T0} offen")
    if o.ptouch:
        srd(e, SRD_WS, S_WS, WS_SIZE)
        e(f"""
        s_mul_i32 s50, s{S_J}, {24*24576}
        s_mul_i32 s51, s52, {576*128}
        s_add_u32 s50, s50, s51
        s_add_u32 s50, s50, {WS_H}
        v_min_u32 v11, 63, v0
        v_lshlrev_b32 v11, 7, v11
        v_add_u32 v11, 65536, v11
        """)
    if o.ptouch == 3:
        e(f"""
        v_lshrrev_b32 v12, 6, v0
        v_min_u32 v12, 2, v12
        v_mul_u32_u24 v12, 24576, v12
        v_and_b32 v13, 63, v0
        v_lshl_add_u32 v14, v13, 7, v12
        v_add_u32 v14, 16384, v14
        """)
    e("s_waitcnt vmcnt(0)")
    if o.ptouch == 2:
        e(f"buffer_load_dword v12, v4, s[{SRD_WS}:{SRD_WS+3}], s50 offen\nbuffer_load_dword v13, v11, s[{SRD_WS}:{SRD_WS+3}], s50 offen")
    e(f"""
    buffer_load_dword v9, v4, s[{SRD_C}:{SRD_C+3}], s{S_T1} offen
    buffer_load_dword v10, v5, s[{SRD_C}:{SRD_C+3}], s{S_T1} offen
    s_waitcnt vmcnt(0)
    """)
    if o.ptouch == 3:
        e(f"buffer_load_dword v12, v14, s[{SRD_WS}:{SRD_WS+3}], s50 offen\ns_waitcnt vmcnt(0)")
    if o.ptouch == 1:
        e(f"buffer_load_dword v12, v4, s[{SRD_WS}:{SRD_WS+3}], s50 offen\nbuffer_load_dword v13, v11, s[{SRD_WS}:{SRD_WS+3}], s50 offen\ns_waitcnt vmcnt(0)")
    e("s_endpgm")

def build(o):
    if o.order: P2[:] = P2B
    _uid[0] = 0; OUTLINE.clear(); NOST[0] = o.x_nost; NOST[1] = o.x_nodsw; NOST[2] = o.hsc1; NOST[3] = o.hnt
    e = E(); prologue(e, o)
    parts = []
    ls = E(); loader_start(ls, o)
    for lw in range(3):
        x = E(); loader(x, o, lw); parts.append(("loader%d" % lw, x))
    x = E(); control(x, o); parts.append(("control", x))
    x = E(); prefetch(x, o); parts.append(("prefetch", x))
    x = E(); compute(x, o); parts.append(("compute", x))
    eg = E(); gather(eg, o)
    for k, v in parts:
        pre = e.text() + "\n" + (ls.text() + "\n" if k.startswith("loader") else "")
        pr = hazard.check(pre + v.text() + "\n" + eg.text())
        if pr: raise SystemExit(f"hazards in {k}")
    body = "\n".join([e.text(), ls.text()] + [v.text() for k, v in parts] + [eg.text(), "\n".join(OUTLINE), "L_end:", "s_endpgm"])
    nsgpr = 100 if o.stamps else 72
    hdr = f"""; Fused FFN: out = silu(x @ w1) @ w2   (M=512, D=576, F=4608), one launch.
; 192 compute workgroups = 8 F-slices (j) x 8 row tiles (mt) x 3 column groups (g): 4 MFMA waves, 3 LDS-DMA loader waves, 1 control wave;
; @launch grid=({NWG + o.npf},1,1) block=(512,1,1) lds={LDS_BYTES}
.amdgcn_target "amdgcn-amd-amdhsa--gfx950"
.text
.globl {KNAME}
.p2align 8
.type {KNAME},@function
{KNAME}:
"""
    tail = f"""
.section .rodata,"a"
.p2align 6
.amdhsa_kernel {KNAME}
  .amdhsa_next_free_vgpr 256
  .amdhsa_next_free_sgpr {nsgpr}
  .amdhsa_accum_offset 256
  .amdhsa_group_segment_fixed_size 0
  .amdhsa_kernarg_size 48
  .amdhsa_user_sgpr_count 2
  .amdhsa_user_sgpr_kernarg_segment_ptr 1
  .amdhsa_system_sgpr_workgroup_id_x 1
.end_amdhsa_kernel
"""
    return hdr + body + tail

if __name__ == "__main__":
    o = Opt()
    out = sys.argv[1]
    for a in sys.argv[2:]:
        k, v = a.split("=")
        setattr(o, k, bool(int(v)) if isinstance(getattr(Opt, k), bool) else int(v))
    open(out, "w").write(build(o))
    print("wrote", out)
```

```python
import sys, os
sys.path.insert(0, os.path.dirname(__file__))
import hazard

KNAME = "standalone__dense_activation_silu__sampling_kernel"
NWG = 192
NPF = 64
XH = 0
RING = 73728
R = 11
UNIT = 8192
LDS_BYTES = 163840
WS_E, WS_ID, WS_HF, WS_PF, WS_H, WS_P, WS_ST = 0, 4096, 32768, 65536, 262144, 5242880, 16777216
WS_CF = 163840
SENT = 0x7F817F81
WS_SIZE = 0x10000000
TAGC_LO, TAGC_HI = 0x7F4A7C15, 0x9E3779B9
SPIN_MAX = 100000
FASTW = XH + 3 * UNIT

P2 = [(0,0),(1,0),(2,0), (0,1),(1,1),(2,1), (0,2),(1,2),(2,2), (3,0),(4,0),(5,0), (3,1),(4,1),(5,1),
      (6,0),(7,0),(8,0), (6,1),(7,1),(8,1), (3,2),(4,2),(5,2), (6,2),(7,2),(8,2)]
P2B = [(0,0),(1,0),(2,0), (0,1),(1,1),(2,1), (0,2),(1,2),(2,2), (3,0),(4,0),(5,0), (3,1),(4,1),(5,1),
       (3,2),(4,2),(5,2), (6,0),(7,0),(8,0), (6,1),(7,1),(8,1), (6,2),(7,2),(8,2)]
PCH = [(p % 3, p // 3) for p in range(9)]

class Opt:
    stamps = False
    LP = 3
    pairw = True
    pub0 = 17
    pub1 = 11
    DRAIN = 2
    epb = 52
    epb2 = 110
    f1pos = 8
    h0b = 8
    h1b = 11
    h2b = 13
    fastb = 4
    gap0 = 5
    gap2 = 4
    tlbw = False
    ctouch = False
    ptouch = 1
    t0b = 3
    t1b = 5
    t2b = 7
    order = 0
    touch = 2
    wgap2 = True
    ppipe = 0
    epb0 = 80
    sent = False
    gsleep = 1
    pfv = 1
    hdelay = 1
    clrpos = 1
    clrb = 4
    cfb = 7
    chkb = 15
    span = False
    x_pad = 0
    ep2first = False
    hnt = True
    pfdelay = 1
    pfsplit = True
    outx4 = 0
    tlbb = 0
    wbl2 = 0
    hsc1 = 0
    early = 1
    astamp = 0
    ep2_rate = 9
    prefetch_code = True
    prio = 0
    npf = 64
    force_slow = False
    sleep = 1
    w_nt = True
    x_noep = False
    x_nodma = False
    x_nopub = False
    x_nost = False
    x_hplain = False
    x_nodsw = False
    psleep = 1
    stampset = 0

class E:
    def __init__(self): self.L = []
    def __call__(self, s):
        for l in s.split("\n"):
            l = l.strip()
            if l: self.L.append(l)
    def text(self): return "\n".join(self.L)

S_X, S_W1, S_W2, S_OUT, S_WS = 4, 6, 8, 10, 12
S_J, S_MT, S_G, S_WAVE, S_CU = 14, 15, 16, 17, 18
S_FAST = 19
S_TAG = 20
S_T0, S_T1 = 22, 23
SRD_A, SRD_B, SRD_C = 24, 28, 32
SRD_WS, SRD_OUT = 36, 40
S_G1, S_G2 = 44, 45
S_CNT = 46
S_STAMP = 64

def srd(e, d, base, size):
    e(f"s_mov_b32 s{d}, s{base}\ns_and_b32 s{d+1}, s{base+1}, 0xffff\ns_mov_b32 s{d+2}, {size}\ns_mov_b32 s{d+3}, 0x20000")

def prologue(e, o):
    e(f"""
    s_cmp_ge_u32 s2, {NWG + o.npf}
    s_cbranch_scc1 L_end
    s_load_dwordx4 s[4:7], s[0:1], 0
    s_load_dwordx4 s[8:11], s[0:1], 16
    s_load_dwordx2 s[12:13], s[0:1], 40
    """)
    if o.prefetch_code:
        e(f"""
        s_getpc_b64 s[{S_T0}:{S_T0+1}]
        L_pf:
        v_lshlrev_b32 v1, 7, v0
        v_min_u32 v1, L_end-L_pf, v1
        global_load_dword v31, v1, s[{S_T0}:{S_T0+1}]
        """)
    if o.stamps:
        e(f"s_memrealtime s[{S_STAMP}:{S_STAMP+1}]\ns_memtime s[{S_STAMP+2}:{S_STAMP+3}]")
    if o.span:
        e(f"s_memrealtime s[{S_STAMP}:{S_STAMP+1}]")
    e(f"""
    v_lshrrev_b32 v1, 6, v0
    s_and_b32 s{S_J}, s2, 7
    s_lshr_b32 s3, s2, 3
    v_readfirstlane_b32 s{S_WAVE}, v1
    s_cmp_ge_u32 s2, {NWG}
    s_cbranch_scc1 L_prefetch
    s_mul_i32 s{S_MT}, s3, 171
    s_lshr_b32 s{S_MT}, s{S_MT}, 9
    s_mul_i32 s{S_G}, s{S_MT}, 3
    s_sub_u32 s{S_G}, s3, s{S_G}
    v_and_b32 v0, 63, v0
    s_cmp_lt_u32 s{S_WAVE}, 4
    s_cbranch_scc1 L_compute
    s_cmp_eq_u32 s{S_WAVE}, 7
    s_cbranch_scc1 L_control
    """)

def common_ids(e):
    e(f"""
    s_add_u32 s{S_G1}, s{S_G}, 1
    s_cmp_eq_u32 s{S_G1}, 3
    s_cselect_b32 s{S_G1}, 0, s{S_G1}
    s_add_u32 s{S_G2}, s{S_G1}, 1
    s_cmp_eq_u32 s{S_G2}, 3
    s_cselect_b32 s{S_G2}, 0, s{S_G2}
    s_lshl_b32 s{S_CU}, s{S_J}, 3
    s_add_u32 s{S_CU}, s{S_CU}, s{S_MT}
    s_mul_i32 s{S_CU}, s{S_CU}, 3
    s_add_u32 s{S_CU}, s{S_CU}, s{S_G}
    s_lshl_b32 s3, s{S_MT}, 7
    """)

def load_epoch(e):
    e(f"s_load_dwordx2 s[{S_TAG}:{S_TAG+1}], s[{S_WS}:{S_WS+1}], s3")
    srd(e, SRD_WS, S_WS, WS_SIZE)
    srd(e, SRD_OUT, S_OUT, 512*576*2)

def finish_tag(e):
    e(f"""
    s_waitcnt lgkmcnt(0)
    s_add_u32 s{S_TAG}, s{S_TAG}, {TAGC_LO:#x}
    s_addc_u32 s{S_TAG+1}, s{S_TAG+1}, {TAGC_HI:#x}
    """)

def dma_unit(e, srd_r, vp, s_off, half_step, lds, flags="", s_tmp=61, s_lb=None):
    pats = vp if len(vp) == 4 else vp * 4
    m0 = (lambda c: f"s_mov_b32 m0, {c}") if s_lb is None else (lambda c: f"s_add_u32 m0, s{s_lb}, {c}")
    e(f"{m0(lds)}\ns_add_u32 s{s_tmp}, s{s_off}, {half_step}")
    for k in range(4):
        e(f"buffer_load_dwordx4 v{pats[k]}, s[{srd_r}:{srd_r+3}], s{s_off} offen offset:{1024*k} {flags} lds")
    e(f"{m0(lds + 4096)}\ns_nop 0")
    for k in range(4):
        e(f"buffer_load_dwordx4 v{pats[k]}, s[{srd_r}:{srd_r+3}], s{s_tmp} offen offset:{1024*k} {flags} lds")

def issue_barrier(n): return -1 if n < R else (n - R) // 3 + 1

V_LX, V_LW1, V_LW2 = 8, 12, 16
S_C = [48, 49, 50]; S_XO = [51, 52, 53]; S_WO = [54, 55, 56]; S_GB = [57, 58, 59]; S_OFF = 60
S_LW, S_LB = 62, 63
S_LH = 47
V_LIN = 20

def lstamp(e, o, k):
    if o.stamps and not o.astamp: e(f"s_memtime s[{S_STAMP+16+2*k}:{S_STAMP+17+2*k}]")

def loader_start(e, o):
    wf = "nt" if o.w_nt else ""
    e(f"""
    s_sub_u32 s{S_LW}, s{S_WAVE}, 4
    v_lshrrev_b32 v1, 3, v0
    v_and_b32 v2, 7, v0
    v_lshrrev_b32 v6, 1, v1
    v_mul_u32_u24 v5, 1152, v1
    v_xor_b32 v6, v2, v6
    v_lshlrev_b32 v7, 4, v6
    v_add_u32 v{V_LX}, v5, v7
    v_xor_b32 v7, 64, v7
    v_add_u32 v{V_LX+1}, v5, v7
    v_add_u32 v{V_LX+1}, {9216-1024}, v{V_LX+1}
    v_add_u32 v{V_LX+2}, {2*(9216-1024)}, v{V_LX}
    v_add_u32 v{V_LX+3}, {2*(9216-1024)}, v{V_LX+1}
    s_mul_i32 s{S_T0}, s{S_G}, 3
    s_add_u32 s{S_T0}, s{S_T0}, s{S_MT}
    s_add_u32 s{S_T0}, s{S_T0}, s{S_LW}
    s_cmp_ge_u32 s{S_T0}, 9
    s_cselect_b32 s{S_T1}, 9, 0
    s_sub_u32 s{S_C[0]}, s{S_T0}, s{S_T1}
    s_mul_i32 s{S_T0}, s{S_MT}, {64*1152}
    s_lshl_b32 s{S_XO[0]}, s{S_C[0]}, 7
    s_add_u32 s{S_XO[0]}, s{S_XO[0]}, s{S_T0}
    s_lshl_b32 s{S_LB}, s{S_LW}, 13
    v_and_b32 v3, 2, v1
    v_lshlrev_b32 v3, 1, v3
    v_xor_b32 v3, v2, v3
    v_lshlrev_b32 v3, 4, v3
    v_mul_u32_u24 v4, 9216, v1
    v_add_u32 v{V_LW1}, v4, v3
    v_add_u32 v{V_LW2}, v5, v3
    s_mul_i32 s{S_T1}, s{S_J}, 1152
    s_mul_i32 s3, s{S_G}, 384
    s_add_u32 s{S_T1}, s{S_T1}, s3
    s_mul_i32 s3, s{S_C[0]}, {64*9216}
    s_add_u32 s{S_WO[0]}, s{S_T1}, s3
    v_add_u32 v{V_LW1+1}, {1*(73728-1024)}, v{V_LW1}
    v_add_u32 v{V_LW1+2}, {2*(73728-1024)}, v{V_LW1}
    v_add_u32 v{V_LW1+3}, {3*(73728-1024)}, v{V_LW1}
    s_waitcnt lgkmcnt(0)
    """)
    lstamp(e, o, 0)
    srd(e, SRD_A, S_X, 512*576*2)
    XP = [V_LX, V_LX+1, V_LX+2, V_LX+3]; WP = [V_LW1, V_LW1+1, V_LW1+2, V_LW1+3]
    dma_unit(e, SRD_A, XP, S_XO[0], 4*9216, XH, s_lb=S_LB)
    srd(e, SRD_B, S_W1, 576*4608*2)
    dma_unit(e, SRD_B, WP, S_WO[0], 4*73728, RING, wf, s_lb=S_LB)
    lstamp(e, o, 1)
    for k in (1, 2):
        e(f"""
        s_add_u32 s3, s{S_C[k-1]}, 3
        s_cmp_ge_u32 s3, 9
        s_cselect_b32 s{S_C[k]}, 9, 0
        s_sub_u32 s{S_C[k]}, s3, s{S_C[k]}
        s_lshl_b32 s3, s{S_C[k]}, 7
        s_add_u32 s{S_XO[k]}, s{S_T0}, s3
        s_mul_i32 s3, s{S_C[k]}, {64*9216}
        s_add_u32 s{S_WO[k]}, s{S_T1}, s3
        """)
        if (k == 1 and o.early < 2) or not o.early:
            dma_unit(e, SRD_A, XP, S_XO[k], 4*9216, XH + 3*k*UNIT, s_lb=S_LB)
            dma_unit(e, SRD_B, WP, S_WO[k], 4*73728, RING + 3*k*UNIT, wf, s_lb=S_LB)
    if not o.early:
        e(f"s_cmp_eq_u32 s{S_LW}, 2\ns_cbranch_scc1 L_ld_no4")
        e(f"s_add_u32 s{S_OFF}, s{S_WO[0]}, 128")
        dma_unit(e, SRD_B, WP, S_OFF, 4*73728, RING + 9*UNIT, wf, s_lb=S_LB)
        e("L_ld_no4:")
    lstamp(e, o, 2)
    common_ids(e)
    srd(e, SRD_C, S_W2, 576*4608*2)
    for k in (1, 2, 3):
        e(f"v_add_u32 v{V_LW2+k}, {k*(9216-1024)}, v{V_LW2}")
    e(f"""
    s_mul_i32 s{S_T0}, s{S_J}, {576*1152}
    s_mul_i32 s{S_T1}, s{S_G}, 384
    s_add_u32 s{S_T0}, s{S_T0}, s{S_T1}
    """)
    for k, sg in enumerate((S_G, S_G1, S_G2)):
        e(f"s_mul_i32 s3, s{sg}, {192*1152}\ns_add_u32 s{S_GB[k]}, s{S_T0}, s3")
    e(f"""
    s_cmp_eq_u32 s{S_LW}, 1
    s_cselect_b32 s3, s{S_G1}, s{S_G}
    s_cmp_eq_u32 s{S_LW}, 2
    s_cselect_b32 s3, s{S_G2}, s3
    s_sub_u32 s{S_LH}, s{S_CU}, s{S_G}
    s_add_u32 s{S_LH}, s{S_LH}, s3
    s_mul_i32 s{S_LH}, s{S_LH}, 24576
    s_add_u32 s{S_LH}, s{S_LH}, {WS_H}
    v_lshlrev_b32 v{V_LIN}, 4, v0
    """)
    e(f"s_lshl_b32 s3, s{S_MT}, 7")
    load_epoch(e)
    finish_tag(e)
    e(f"""
    s_cmp_eq_u32 s{S_LW}, 1
    s_cbranch_scc1 L_loader1
    s_cmp_eq_u32 s{S_LW}, 2
    s_cbranch_scc1 L_loader2
    """)

def loader(e, o, lw):
    wf = "nt" if o.w_nt else ""
    WP = [V_LW1, V_LW1+1, V_LW1+2, V_LW1+3]; W2P = [V_LW2, V_LW2+1, V_LW2+2, V_LW2+3]
    e(f"L_loader{lw}:")
    XP = [V_LX, V_LX+1, V_LX+2, V_LX+3]
    if o.early == 2: seq = [("x", lw), ("w", lw)]
    elif o.early: seq = [("x", lw), ("w", lw), ("x", 3+lw), ("w", 3+lw)]
    else: seq = [("x", lw), ("w", lw), ("x", 3+lw), ("w", 3+lw), ("x", 6+lw), ("w", 6+lw)] + ([("w", 9+lw)] if 9 + lw < R else [])
    def issue_w(n):
        slot = n % R
        if n < 27:
            s, i = n // 9, n % 9
            t = i // 3
            e(f"s_add_u32 s{S_OFF}, s{S_WO[t]}, {128*s}")
            dma_unit(e, SRD_B, WP, S_OFF, 4*73728, RING + slot*UNIT, wf)
        else:
            p, u = P2[n - 27]
            k, s = PCH[p]
            e(f"s_add_u32 s{S_OFF}, s{S_GB[k]}, {73728*s + 128*u}")
            dma_unit(e, SRD_C, W2P, S_OFF, 4*9216, RING + slot*UNIT, wf)
        seq.append(("w", n))
    hb = {o.h0b: 0, o.h1b: 1, o.h2b: 2}
    hneed = {9: 0, 12: 1, (15 if o.order else 14): 2}
    for st in range(18):
        need = [("w", 3*st + lw)] + ([("x", 3*st + lw)] if st < 3 else []) + ([("h", hneed[st])] if st in hneed else [])
        last = max(seq.index(x) for x in need)
        n = 8 * (len(seq) - 1 - last)
        assert n <= 63
        e(f"s_waitcnt vmcnt({n})")
        if st == 0 and not o.astamp: lstamp(e, o, 3)
        if o.astamp and o.astamp <= st < o.astamp + 6: e(f"s_memtime s[{S_STAMP+16+2*(st-o.astamp)}:{S_STAMP+17+2*(st-o.astamp)}]")
        e("s_barrier")
        if st in hb:
            sg = hb[st]
            e(f"s_add_u32 s{S_OFF}, s{S_LH}, {sg*UNIT}")
            dma_unit(e, SRD_WS, [V_LIN], S_OFF, 4096, XH + (3*sg + lw)*UNIT, "" if o.x_hplain else "sc1"); seq.append(("h", sg))
        if o.early == 2 and st == 0:
            dma_unit(e, SRD_A, XP, S_XO[1], 4*9216, XH + (3 + lw)*UNIT); seq.append(("x", 3 + lw))
            issue_w(3 + lw)
        if o.early and st == 0:
            dma_unit(e, SRD_A, XP, S_XO[2], 4*9216, XH + (6 + lw)*UNIT); seq.append(("x", 6 + lw))
            issue_w(6 + lw)
        if o.early and st == 1 and 9 + lw < R: issue_w(9 + lw)
        for nn in range(R, 54):
            if nn % 3 == lw and issue_barrier(nn) == st:
                if o.x_nodma: seq.append(('w', nn))
                else: issue_w(nn)
    if o.stamps and (lw == 0 or o.astamp):
        base = WS_ST + 192 if not o.astamp else WS_ST + 192*512 + (1 + lw)*64
        e(f"s_waitcnt lgkmcnt(0)\ns_lshl_b32 s3, s{S_CU}, 9\ns_add_u32 s3, s3, {base}\ns_mov_b64 exec, 1\nv_mov_b32 v1, 0")
        for k, r0 in enumerate((S_STAMP, S_STAMP+16, S_STAMP+20, S_STAMP+24)):
            for q in range(4): e(f"v_mov_b32 v{4+q}, s{r0+q}")
            e(f"buffer_store_dwordx4 v[4:7], v1, s[{SRD_WS}:{SRD_WS+3}], s3 offen offset:{k*16}\ns_nop 1")
        e("s_mov_b64 exec, -1")
    e("s_branch L_gather")

def _poll(e, o, name, vaddr, imm, mask, vtag, vtmp, sleep=None):
    sleep = o.sleep if sleep is None else sleep
    e(f"""
    s_mov_b64 exec, {mask}
    s_mov_b32 s{S_CNT}, {SPIN_MAX}
    L_poll_{name}:
    buffer_load_dwordx2 v[{vtmp}:{vtmp+1}], v{vaddr}, s[{SRD_WS}:{SRD_WS+3}], 0 offen offset:{imm} sc1
    s_waitcnt vmcnt(0)
    v_cmp_ne_u64 vcc, v[{vtmp}:{vtmp+1}], v[{vtag}:{vtag+1}]
    s_sub_u32 s{S_CNT}, s{S_CNT}, 1
    s_cmp_eq_u32 s{S_CNT}, 0
    s_cbranch_scc1 L_polldone_{name}
    s_nop 1
    s_cbranch_vccz L_polldone_{name}
    """)
    if sleep: e(f"s_sleep {sleep}")
    e(f"""
    s_branch L_poll_{name}
    L_polldone_{name}:
    s_mov_b64 exec, -1
    """)

def control(e, o):
    V_LIN, V_POLL, V_TAG, V_TMP, V_ID = 8, 9, 10, 12, 14
    S_OFF, S_H1, S_H2, S_XCC, S_H0 = 60, 48, 49, 50, 51
    e("L_control:")
    common_ids(e)
    e("s_waitcnt lgkmcnt(0)")
    load_epoch(e)
    def tlb_warm():
        e(f"""
        v_min_u32 v26, 39, v0
        v_lshlrev_b32 v26, 18, v26
        buffer_load_dword v29, v26, s[{SRD_WS}:{SRD_WS+3}], 0 offen offset:2048 sc1
        v_min_u32 v27, 8, v0
        v_lshlrev_b32 v27, 16, v27
        buffer_load_dword v28, v27, s[{SRD_OUT}:{SRD_OUT+3}], 0 offen sc1
        """)
    if o.tlbw and not o.tlbb: tlb_warm()
    e(f"""
    s_getreg_b32 s{S_XCC}, hwreg(HW_REG_XCC_ID, 0, 4)
    v_lshlrev_b32 v{V_LIN}, 4, v0
    s_sub_u32 s{S_T0}, s{S_CU}, s{S_G}
    s_add_u32 s{S_H1}, s{S_T0}, s{S_G1}
    s_add_u32 s{S_H2}, s{S_T0}, s{S_G2}
    s_lshl_b32 s{S_T0}, s{S_H1}, 7
    s_lshl_b32 s{S_T1}, s{S_H2}, 7
    v_mov_b32 v1, s{S_T0}
    v_mov_b32 v2, s{S_T1}
    s_lshl_b32 s{S_OFF}, s{S_CU}, 7
    v_mov_b32 v7, s{S_OFF}
    v_lshrrev_b32 v3, 2, v0
    v_cmp_eq_u32 vcc, 1, v3
    v_and_b32 v6, 3, v0
    v_lshlrev_b32 v6, 3, v6
    v_cndmask_b32 v4, v7, v1, vcc
    v_cmp_eq_u32 vcc, 2, v3
    s_mul_i32 s{S_H1}, s{S_H1}, 24576
    s_mul_i32 s{S_H2}, s{S_H2}, 24576
    v_cndmask_b32 v4, v4, v2, vcc
    v_add_u32 v4, {WS_HF}, v4
    v_add_u32 v{V_POLL}, v4, v6
    v_cmp_eq_u32 vcc, 0, v0
    s_mul_i32 s{S_H0}, s{S_CU}, 24576
    s_add_u32 s{S_H0}, s{S_H0}, {WS_H}
    v_cndmask_b32 v4, v2, v1, vcc
    v_add_u32 v{V_ID}, {WS_ID}, v4
    s_add_u32 s{S_H1}, s{S_H1}, {WS_H}
    s_add_u32 s{S_H2}, s{S_H2}, {WS_H}
    """)
    finish_tag(e)
    e(f"""
    s_add_u32 s{S_T0}, s{S_XCC}, 16
    s_add_u32 s{S_T0}, s{S_TAG}, s{S_T0}
    s_addc_u32 s{S_T1}, s{S_TAG+1}, 0
    v_mov_b32 v4, s{S_T0}
    v_mov_b32 v5, s{S_T1}
    s_lshl_b32 s3, s{S_CU}, 7
    s_add_u32 s3, s3, {WS_ID}
    v_mov_b32 v6, s3
    v_mov_b32 v{V_TAG}, s{S_TAG}
    v_mov_b32 v{V_TAG+1}, s{S_TAG+1}
    s_mov_b64 exec, 1
    buffer_store_dwordx2 v[4:5], v6, s[{SRD_WS}:{SRD_WS+3}], 0 offen sc1
    s_mov_b64 exec, -1
    """)
    def hdma(s):
        for k, sh in enumerate((S_H0, S_H1, S_H2)):
            p = 3 * s + k
            e(f"s_add_u32 s{S_OFF}, s{sh}, {s*UNIT}")
            dma_unit(e, SRD_WS, [V_LIN], S_OFF, 4096, XH + p * UNIT, "sc1")
    def stamp(k):
        if o.stamps: e(f"s_memtime s[{S_STAMP+4+2*k}:{S_STAMP+5+2*k}]\ns_waitcnt lgkmcnt(0)")
    bl = [0,1,2,3,6,9,10,11,12,13,14,15,16,17] if o.stampset == 0 else [0,2,3,4,5,6,7,8,9,10,11,12,14,17]
    slots = {b: i for i, b in enumerate(bl)}
    for st in range(18):
        if st == o.fastb - 2:
            e(f"s_mov_b64 exec, 3\nbuffer_load_dwordx2 v[{V_TMP}:{V_TMP+1}], v{V_ID}, s[{SRD_WS}:{SRD_WS+3}], 0 offen sc1\ns_mov_b64 exec, -1")
        if o.touch and st == o.fastb - 2:
            e(f"""
            v_lshlrev_b32 v20, 7, v0
            s_mul_i32 s{S_OFF}, s{S_CU}, 384
            s_add_u32 s{S_OFF}, s{S_OFF}, {WS_PF}
            s_mov_b64 exec, 7
            buffer_load_dword v24, v20, s[{SRD_WS}:{SRD_WS+3}], s{S_OFF} offen sc1
            s_lshl_b32 s{S_OFF}, s{S_CU}, 7
            s_add_u32 s{S_OFF}, s{S_OFF}, {WS_HF}
            s_mov_b64 exec, 1
            buffer_load_dword v25, v20, s[{SRD_WS}:{SRD_WS+3}], s{S_OFF} offen
            s_mov_b64 exec, -1
            """)
        for sg, tb in enumerate((o.t0b, o.t1b, o.t2b)):
            if o.ctouch and st == tb:
                e(f"""
                s_mul_i32 s{S_OFF}, s{S_CU}, 24576
                s_add_u32 s{S_OFF}, s{S_OFF}, {WS_H + sg*UNIT}
                buffer_load_dword v{21+sg}, v20, s[{SRD_WS}:{SRD_WS+3}], s{S_OFF} offen
                """)
        if st == o.fastb: e("s_waitcnt lgkmcnt(0)")
        if st == o.fastb - 1:
            e(f"""
            s_mov_b64 exec, 3
            s_mov_b32 s{S_CNT}, {SPIN_MAX}
            s_waitcnt vmcnt({(2 + (o.ctouch and o.fastb - 2 <= o.t0b <= o.fastb - 1)) if o.touch else 0})
            s_branch L_check_id
            L_poll_id:
            buffer_load_dwordx2 v[{V_TMP}:{V_TMP+1}], v{V_ID}, s[{SRD_WS}:{SRD_WS+3}], 0 offen sc1
            s_waitcnt vmcnt(0)
            L_check_id:
            v_subrev_co_u32 v4, vcc, s{S_TAG}, v{V_TMP}
            v_mov_b32 v6, s{S_TAG+1}
            s_nop 0
            v_subb_co_u32 v5, vcc, v{V_TMP+1}, v6, vcc
            v_subrev_u32 v4, 16, v4
            v_lshrrev_b32 v6, 4, v4
            v_or_b32 v6, v6, v5
            v_cmp_ne_u32 vcc, 0, v6
            s_sub_u32 s{S_CNT}, s{S_CNT}, 1
            s_cmp_eq_u32 s{S_CNT}, 0
            s_cbranch_scc1 L_id_done
            s_nop 1
            s_cbranch_vccz L_id_done
            s_sleep 1
            s_branch L_poll_id
            L_id_done:
            v_cmp_ne_u32 vcc, s{S_XCC}, v4
            s_mov_b32 s{S_FAST}, {0 if o.force_slow else 1}
            s_nop 1
            s_cmp_eq_u64 vcc, 0
            s_cselect_b32 s{S_FAST}, s{S_FAST}, 0
            s_mov_b64 exec, 1
            v_mov_b32 v4, s{S_FAST}
            v_mov_b32 v5, {FASTW}
            ds_write_b32 v5, v4
            s_mov_b64 exec, -1
            """)
        if o.sent and st == o.h0b - 1:
            e(f"""
            s_mul_i32 s3, s{S_MT}, 3
            s_add_u32 s3, s3, s{S_G}
            s_lshl_b32 s3, s3, 7
            s_add_u32 s3, s3, {WS_CF}
            v_mul_u32_u24 v37, {24*128}, v0
            v_add_u32 v37, s3, v37
            """)
        if st == o.h0b: _poll(e, o, "h0", V_POLL, 0, "0xfff", V_TAG, V_TMP)
        if o.sent and st == o.h0b:
            e(f"s_mov_b64 exec, 0xff\nbuffer_load_dwordx2 v[38:39], v37, s[{SRD_WS}:{SRD_WS+3}], 0 offen sc1\ns_mov_b64 exec, -1")
        if st == o.h1b: _poll(e, o, "h1", V_POLL, 32, "0xfff", V_TAG, V_TMP)
        if o.sent and st == o.h1b:
            e(f"""
            s_mov_b64 exec, 0xff
            v_cmp_ne_u64 vcc, v[38:39], v[{V_TAG}:{V_TAG+1}]
            s_nop 4
            s_mov_b64 exec, -1
            s_cbranch_vccz L_cf_ok
            """)
            _poll(e, o, "cf", 37, 0, "0xff", V_TAG, V_TMP)
            e("L_cf_ok:")
        if st == o.h2b: _poll(e, o, "h2", V_POLL, 64, "0xfff", V_TAG, V_TMP)
        e("s_barrier")
        if o.tlbw and o.tlbb and st == o.tlbb: tlb_warm()
        if o.wbl2 and st == o.wbl2:
            e(f"""
            s_or_b32 s3, s{S_MT}, s{S_G}
            s_cmp_lg_u32 s3, 0
            s_cbranch_scc1 L_nowb
            buffer_wbl2 sc1
            L_nowb:
            """)
        if st in slots: stamp(slots[st])
    if o.stamps:
        e(f"s_waitcnt lgkmcnt(0)")
        e(f"s_lshl_b32 s3, s{S_CU}, 9\ns_add_u32 s3, s3, {WS_ST}")
        e("s_mov_b64 exec, 1\nv_mov_b32 v1, 0")
        for k in range(0, 32, 4):
            for q in range(4): e(f"v_mov_b32 v{4+q}, s{S_STAMP+k+q}")
            e(f"buffer_store_dwordx4 v[4:7], v1, s[{SRD_WS}:{SRD_WS+3}], s3 offen offset:{k*4}\ns_nop 1")
        e(f"v_mov_b32 v4, s{S_FAST}\nbuffer_store_dword v4, v1, s[{SRD_WS}:{SRD_WS+3}], s3 offen offset:128")
        e("s_mov_b64 exec, -1")
    e("s_branch L_gather")

V_T1, V_T1B, V_T2, V_T2B = 2, 3, 4, 5
V_X = 6; V_X8 = 10
V_PF, V_PV = 6, 7
V_H, V_H8, V_FW, V_HG = 14, 15, 16, 17
V_HF = 1
V_TAG = 18
V_EP = 20
V_P = 24
V_WF = 32
V_ACC1 = 64
V_XF = 112
S_MH, S_NH, S_HST, S_NL2E = 48, 49, 50, 51
S_PO = 52
S_PFB = 54

class Stream:
    def __init__(self, e): self.e = e; self.nlds = 0; self.done = 0; self.count = 0; self.fast_ok = False; self.flags = set(); self.hold_silu = 0
    def emit(self, s):
        for l in s.split("\n"):
            l = l.strip()
            if l:
                self.e(l)
                if not l.endswith(":"): self.count += 1
    def lds(self, s):
        self.emit(s); self.nlds += 1; return self.nlds
    def wait_lds(self, opid):
        if opid <= self.done: return
        n = min(self.nlds - opid, 15)
        self.emit(f"s_waitcnt lgkmcnt({n})"); self.done = self.nlds - n

_uid = [0]
OUTLINE = []
NOST = [False, False, 0, False]
def dual(txt, force_sc1=False):
    if force_sc1: return txt + " sc1"
    _uid[0] += 1; k = _uid[0]
    OUTLINE.append(f"L_ds{k}:\n{txt} sc1\ns_branch L_dd{k}")
    nt = " nt" if (NOST[3] and "dwordx4" in txt) else ""
    return (f"s_cmp_eq_u32 s{S_FAST}, 0\ns_cbranch_scc1 L_ds{k}\n{txt}{nt}\nL_dd{k}:")

def silu_ops(acc, s, noep=False):
    ops = []
    for q in range(4):
        v = [acc + 4 * q + r for r in range(4)]
        t = [V_EP + r for r in range(4)]
        if not noep:
            for r in range(4): ops.append(("silu", f"v_mul_f32 v{t[r]}, s{S_NL2E}, v{v[r]}"))
            for r in range(4): ops.append(("v", f"v_exp_f32 v{t[r]}, v{t[r]}"))
            for r in range(4): ops.append(("v", f"v_add_f32 v{t[r]}, 1.0, v{t[r]}"))
            for r in range(4): ops.append(("v", f"v_rcp_f32 v{t[r]}, v{t[r]}"))
            for r in range(4): ops.append(("silu", f"v_mul_f32 v{v[r]}, v{v[r]}, v{t[r]}"))
        ops.append(("silu", f"v_cvt_pk_bf16_f32 v{V_P+2*q}, v{v[0]}, v{v[1]}"))
        ops.append(("silu", f"v_cvt_pk_bf16_f32 v{V_P+2*q+1}, v{v[2]}, v{v[3]}"))
    sts = [("st", "s_nop 0" if NOST[0] else dual(f"buffer_store_dwordx4 v[{V_P+4*tt}:{V_P+4*tt+3}], v{V_HG}, s[{SRD_WS}:{SRD_WS+3}], s{S_HST} offen offset:{tt*1024}", s < NOST[2])) for tt in range(2)]
    if s < NOST[2] or s == 2:
        k = [i for i, x in enumerate(ops) if x[1].startswith(f"v_cvt_pk_bf16_f32 v{V_P+3},")]
        if k: ops.insert(k[0] + 1, sts[0]); ops.append(sts[1])
        else: ops += sts
    else: ops += sts
    if s < 2: ops.append(("v", f"s_add_u32 s{S_HST}, s{S_HST}, {UNIT}"))
    return ops

def hflag_ops(s, n):
    return [("v", f"s_waitcnt vmcnt({n})\ns_mov_b64 exec, 1"),
            ("st", dual(f"buffer_store_dwordx2 v[{V_TAG}:{V_TAG+1}], v{V_HF}, s[{SRD_WS}:{SRD_WS+3}], 0 offen offset:{s*32}")),
            ("flag%d" % s, "s_mov_b64 exec, -1")]

def pflag(e, u, n):
    e(f"""
    s_waitcnt vmcnt({n})
    s_mov_b64 exec, 0xf
    buffer_store_dwordx2 v[{V_TAG}:{V_TAG+1}], v{V_PF}, s[{SRD_WS}:{SRD_WS+3}], 0 offen offset:{u*128} sc1
    s_mov_b64 exec, -1
    """)

def compute(e, o):
    e("L_compute:")
    if o.prio: e(f"s_setprio {o.prio}")
    common_ids(e)
    e(f"""
    s_lshr_b32 s{S_MH}, s{S_WAVE}, 1
    s_and_b32 s{S_NH}, s{S_WAVE}, 1
    s_mov_b32 s{S_NL2E}, 0xbfb8aa3b
    v_lshrrev_b32 v20, 5, v0
    v_lshrrev_b32 v21, 4, v0
    v_and_b32 v21, 1, v21
    v_and_b32 v22, 15, v0
    v_lshrrev_b32 v23, 2, v22
    v_and_b32 v22, 3, v22
    v_lshrrev_b32 v24, 1, v22
    v_lshl_add_u32 v24, v21, 1, v24
    s_lshl_b32 s{S_T0}, s{S_NH}, 2
    v_add_u32 v24, s{S_T0}, v24
    v_and_b32 v25, 2, v23
    v_lshlrev_b32 v25, 1, v25
    v_xor_b32 v24, v24, v25
    v_lshlrev_b32 v24, 4, v24
    v_and_b32 v22, 1, v22
    v_lshl_add_u32 v24, v22, 3, v24
    v_lshl_add_u32 v24, v23, 7, v24
    v_add_u32 v24, {RING}, v24
    v_lshl_add_u32 v{V_T1}, v20, 10, v24
    v_lshl_add_u32 v{V_T2}, v20, 9, v24
    v_add_u32 v{V_T1B}, {8*UNIT}, v{V_T1}
    v_add_u32 v{V_T2B}, {8*UNIT}, v{V_T2}
    v_and_b32 v25, 31, v0
    v_lshrrev_b32 v26, 1, v25
    v_and_b32 v26, 7, v26
    v_xor_b32 v26, v20, v26
    v_lshlrev_b32 v26, 4, v26
    s_lshl_b32 s{S_T1}, s{S_MH}, 12
    v_lshl_add_u32 v26, v25, 7, v26
    v_add_u32 v{V_X}, s{S_T1}, v26
    v_xor_b32 v{V_X+1}, 32, v{V_X}
    v_xor_b32 v{V_X+2}, 64, v{V_X}
    v_xor_b32 v{V_X+3}, 96, v{V_X}
    """)
    for ks in range(4): e(f"v_add_u32 v{V_X8+ks}, {8*UNIT}, v{V_X+ks}")
    e(f"""
    v_lshlrev_b32 v27, 4, v0
    v_add_u32 v{V_H}, s{S_T1}, v27
    v_add_u32 v{V_H8}, {8*UNIT}, v{V_H}
    s_lshl_b32 s{S_T0}, s{S_NH}, 11
    v_add_u32 v{V_HG}, s{S_T0}, v{V_H}
    s_mul_i32 s{S_HST}, s{S_CU}, 24576
    s_add_u32 s{S_HST}, s{S_HST}, {WS_H}
    s_lshl_b32 s{S_T0}, s{S_CU}, 7
    s_lshl_b32 s{S_T1}, s{S_WAVE}, 3
    s_add_u32 s{S_T0}, s{S_T0}, s{S_T1}
    s_add_u32 s{S_T0}, s{S_T0}, {WS_HF}
    v_mov_b32 v{V_HF}, s{S_T0}
    s_mul_i32 s{S_T0}, s{S_MT}, 3
    s_add_u32 s{S_T0}, s{S_T0}, s{S_G}
    s_lshl_b32 s{S_T1}, s{S_MH}, 2
    s_mul_i32 s{S_T1}, s{S_T1}, 24
    s_add_u32 s{S_T0}, s{S_T0}, s{S_T1}
    s_mul_i32 s{S_PO}, s{S_T0}, 24576
    s_mul_i32 s{S_T1}, s{S_J}, 3072
    s_add_u32 s{S_PO}, s{S_PO}, s{S_T1}
    s_lshl_b32 s{S_T1}, s{S_NH}, 9
    s_add_u32 s{S_PO}, s{S_PO}, s{S_T1}
    s_add_u32 s{S_PO}, s{S_PO}, {WS_P}
    s_add_u32 s{S_PO+1}, s{S_PO}, {2*24*24576}
    s_mul_i32 s{S_T0}, s{S_T0}, 384
    s_lshl_b32 s{S_T1}, s{S_J}, 4
    s_add_u32 s{S_T0}, s{S_T0}, s{S_T1}
    s_lshl_b32 s{S_T1}, s{S_NH}, 3
    s_add_u32 s{S_T0}, s{S_T0}, s{S_T1}
    s_add_u32 s{S_PFB}, s{S_T0}, {WS_PF}
    v_mov_b32 v{V_FW}, {FASTW}
    s_waitcnt lgkmcnt(0)
    """)
    load_epoch(e)
    finish_tag(e)
    e(f"v_mov_b32 v{V_TAG}, s{S_TAG}\nv_mov_b32 v{V_TAG+1}, s{S_TAG+1}\ns_waitcnt vmcnt(0)")

    tasks = []
    def ringbase(n, vA, vB):
        slot = n % R
        return (vA, slot * UNIT) if slot < 8 else (vB, (slot - 8) * UNIT)
    for n in range(27):
        st = n // 3; s = n // 9; i = n % 9
        base, so = ringbase(n, V_T1, V_T1B)
        for ks in range(4):
            t = dict(step=st, first=(n % 3 == 0 and ks == 0), idx=len(tasks))
            t["wr"] = [(base, so + (16 * ks + 4 * b) * 128) for b in range(2)]
            xf = V_XF + (i * 4 + ks) * 4
            t["pre"] = []
            if s == 0:
                xb = (V_X8 + ks) if i == 8 else (V_X + ks)
                t["pre"] = [f"ds_read_b128 v[{xf}:{xf+3}], v{xb} offset:{0 if i == 8 else i*UNIT}"]
            acc = V_ACC1 + 16 * (s & 1)
            t["mf"] = lambda wf, acc=acc, xf=xf, z=(i == 0 and ks == 0): f"v_mfma_f32_32x32x16_bf16 v[{acc}:{acc+15}], v[{wf}:{wf+3}], v[{xf}:{xf+3}], " + ("0" if z else f"v[{acc}:{acc+15}]")
            tasks.append(t)
    seen_p, seen_u, last_u = set(), set(), {}
    ACCU = {0: V_ACC1 + 16, 1: V_ACC1 + 32, 2: V_ACC1}
    for q, (p, u) in enumerate(P2):
        n = 27 + q; st = n // 3
        base, so = ringbase(n, V_T2, V_T2B)
        for ks in range(4):
            t = dict(step=st, first=(n % 3 == 0 and ks == 0), idx=len(tasks))
            t["wr"] = [(base, so + (16 * ks + 8 * b) * 128) for b in range(2)]
            hf = V_XF + (p * 4 + ks) * 4
            t["pre"] = []
            if p not in seen_p:
                hb = V_H8 if p == 8 else V_H
                t["pre"] = [f"ds_read_b128 v[{hf}:{hf+3}], v{hb} offset:{(0 if p == 8 else p*UNIT) + ks*1024}"]
            acc = ACCU[u]
            t["mf"] = lambda wf, acc=acc, hf=hf, z=(u not in seen_u and ks == 0): f"v_mfma_f32_32x32x16_bf16 v[{acc}:{acc+15}], v[{hf}:{hf+3}], v[{wf}:{wf+3}], " + ("0" if z else f"v[{acc}:{acc+15}]")
            tasks.append(t); last_u[u] = t["idx"]
        seen_p.add(p); seen_u.add(u)
    global PUBACC
    n = len(tasks)
    S = Stream(e)
    NP = n // 2
    side = []; side_start = [0]; hold = [0]; cur = [0]
    last_of_step = {}
    for t in tasks: last_of_step[t["step"]] = t["idx"]
    def pubops(u):
        ops = []
        a = ACCU[u]
        for q in range(8): ops.append(("v", f"v_cvt_pk_bf16_f32 v{V_P+q}, v{a+2*q}, v{a+2*q+1}"))
        ops.append(("v", "s_nop 0"))
        for q in range(2):
            d = V_P + 4 * q
            ops.append(("v", f"v_permlane32_swap_b32 v{d}, v{d+2}"))
            ops.append(("v", f"v_permlane32_swap_b32 v{d+1}, v{d+3}"))
        if not o.x_nopub:
            for q in range(2):
                d = V_P + 4 * q
                ops.append(("st", f"buffer_store_dwordx4 v[{d}:{d+3}], v{V_PV}, s[{SRD_WS}:{SRD_WS+3}], s{S_PO+q} offen offset:{u*1024} sc1"))
            ops.append(("v", "s_nop 0"))
        return ops
    def cost(kind, txt):
        if kind == "lds": return 24
        if kind == "st": return 16
        if txt.startswith(("v_exp", "v_rcp")): return 8
        if txt.startswith("s_") and not txt.startswith(("s_waitcnt", "s_nop")): return 2
        return 4
    def pop_side(budget):
        used = 0
        while side and S.count >= side_start[0] and cur[0] >= hold[0]:
            kind, txt = side[0]
            if kind == "gap": side.pop(0); hold[0] = cur[0] + txt; continue
            if kind == "st" and "L_ds" in txt and not S.fast_ok: break
            if kind == "silu" and S.count < S.hold_silu: break
            c = cost(kind, txt)
            if used and used + c > budget: break
            side.pop(0)
            if kind == "lds": S.lds(txt)
            else: S.emit(txt)
            if kind.startswith("flag"): S.flags.add(int(kind[4:]))
            used += c
    NR = o.LP + 1
    def tr_reads(q):
        for h in range(2):
            t = tasks[2*q + h]
            wf = V_WF + 8 * (q % NR) + 4 * h
            t["wf"] = wf
            for b, (base, off) in enumerate(t["wr"]):
                t["last"] = S.lds(f"ds_read_b64_tr_b16 v[{wf+2*b}:{wf+2*b+1}], v{base} offset:{off}")
    def pre_reads(q):
        k = 0
        for h in range(2):
            t = tasks[2*q + h]
            for x in t["pre"]:
                t["last"] = S.lds(x); k += 1
        return k
    def barrier(step):
        for fs, fb in ((0, o.h0b), (1, o.h1b), (2, o.h2b)):
            if step == fb: assert fs in S.flags, f"flag {fs} must be sent before B_{fb} (the control wave waits for it there)"
        if o.astamp and o.astamp <= step < o.astamp + 6: S.emit(f"s_memtime s[{S_STAMP+16+2*(step-o.astamp)}:{S_STAMP+17+2*(step-o.astamp)}]")
        S.emit("s_waitcnt lgkmcnt(0)"); S.done = S.nlds
        S.emit("s_barrier")
    late_addr = [("v", f"v_and_b32 v{V_PV}, 31, v0"), ("v", f"v_lshrrev_b32 v{V_PF}, 5, v0"), ("v", f"v_lshlrev_b32 v{V_PV}, 4, v{V_PV}"),
                 ("v", f"v_mul_u32_u24 v{V_PF}, {24*24576}, v{V_PF}"), ("v", f"v_add_u32 v{V_PV}, v{V_PV}, v{V_PF}"),
                 ("v", f"v_mul_u32_u24 v{V_PF}, {24*384}, v0"), ("v", f"v_add_u32 v{V_PF}, s{S_PFB}, v{V_PF}")]
    budget = o.epb
    pubq = []
    fast_known = False
    barrier(0)
    for q0 in range(o.LP):
        tr_reads(q0); pre_reads(q0)
    for q in range(NP):
        cur[0] = q
        A, B = tasks[2*q], tasks[2*q+1]
        nq = q + o.LP
        deferred = False
        f9 = 6 * 9
        if o.ep2first and q == f9:
            S.emit("s_nop 7\ns_nop 3")
            side_start[0] = 0; S.hold_silu = 0
            pop_side(10**6)
            barrier(9)
            for q0 in range(f9, f9 + o.LP): tr_reads(q0); pre_reads(q0)
        if nq < NP and not (o.ep2first and f9 <= nq < f9 + o.LP):
            if tasks[2*nq]["first"]:
                barrier(tasks[2*nq]["step"]); deferred = True
            else:
                tr_reads(nq)
        skip_pre = o.ep2first and f9 <= nq < f9 + o.LP
        if A["first"] and A["step"] == 11:
            assert not any(x[0] == "silu" for x in side), "acc of sub-tile 2 still in use"
        S.wait_lds(max(A["last"], B["last"]))
        S.emit(A["mf"](A["wf"]))
        if deferred:
            if tasks[2*nq]["step"] == o.fastb: S.lds(f"ds_read_b32 v{V_FW}, v{V_FW}")
            tr_reads(nq); pre_reads(nq)
        else:
            k = pre_reads(nq) if (nq < NP and not skip_pre) else 0
            if not (o.ep2first and q >= f9 - 0 and side and side[0][0] == 'silu' and False): pop_side(budget if k == 0 else max(budget - 24, 4))
            if o.wgap2 and q + 1 < NP and k == 0 and "last" in tasks[2*q+2] and "last" in tasks[2*q+3]:
                S.wait_lds(max(tasks[2*q+2]["last"], tasks[2*q+3]["last"]))
        S.emit(B["mf"](B["wf"]))
        if A["first"] and A["step"] == o.fastb:
            S.emit(f"v_readfirstlane_b32 s{S_FAST}, v{V_FW}"); S.fast_ok = True
        im = B["idx"]
        if im == last_of_step.get(2):
            side += silu_ops(V_ACC1, 0, o.x_noep) + [("gap", o.gap0)] + hflag_ops(0, 0); side_start[0] = S.count + 12; budget = o.epb0
        if im == last_of_step.get(5):
            assert not any(x[0] == "silu" or x[0] == "st" and "x4" in x[1] for x in side), len(side)
            side += silu_ops(V_ACC1 + 16, 1, o.x_noep); budget = o.epb
            S.hold_silu = S.count + 12
        if im == last_of_step.get(8):
            assert not side, len(side)
            ops2 = silu_ops(V_ACC1, 2, o.x_noep)
            k1 = min(o.f1pos, len(ops2) - 2)
            ops2 = ops2[:k1] + hflag_ops(1, 0) + ops2[k1:]
            side += ops2 + late_addr + [("gap", o.gap2)] + hflag_ops(2, 0); side_start[0] = S.count + 12; budget = o.epb2
        for u, at in ((0, o.pub0), (1, o.pub1)):
            if at and q >= NP - at and im >= last_u[u] + 4 and u not in pubq and not side:
                pubq.append(u); side += pubops(u); side_start[0] = S.count; budget = 24
    assert not side
    if o.x_pad:
        e(f"s_mov_b32 s60, {o.x_pad}\nL_xpad:\nv_mov_b32 v20, v21\nv_mov_b32 v22, v21\nv_mov_b32 v20, v21\nv_mov_b32 v22, v21\ns_sub_u32 s60, s60, 1\ns_cmp_lg_u32 s60, 0\ns_cbranch_scc1 L_xpad")
    e("s_nop 7")
    if o.stamps: e(f"s_memtime s[{S_STAMP+4}:{S_STAMP+5}]")
    e("s_nop 3")
    rest = [u for u in (0, 1, 2) if u not in pubq]
    order = pubq + rest
    for u in rest:
        for k, x in pubops(u): e(x)
    for i, u in enumerate(order):
        younger = 2 * (len(order) - 1 - i) + i
        if o.x_nopub: younger = i
        if o.stamps and i == 2: e(f"s_memtime s[{S_STAMP+14}:{S_STAMP+15}]")
        if o.sent and u == 2: continue
        pflag(e, u, younger)
    if o.stamps:
        e(f"s_memtime s[{S_STAMP+6}:{S_STAMP+7}]")
        e(f"s_cmp_lg_u32 s{S_WAVE}, 0\ns_cbranch_scc1 L_end\ns_waitcnt lgkmcnt(0)")
        e(f"s_lshl_b32 s3, s{S_CU}, 9\ns_add_u32 s3, s3, {WS_ST + 256}\ns_mov_b64 exec, 1\nv_mov_b32 v1, 0")
        for k in range(0, 16, 4):
            for q in range(4): e(f"v_mov_b32 v{4+q}, s{S_STAMP+k+q}")
            e(f"buffer_store_dwordx4 v[4:7], v1, s[{SRD_WS}:{SRD_WS+3}], s3 offen offset:{k*4}\ns_nop 1")
        if o.astamp:
            e(f"s_lshl_b32 s3, s{S_CU}, 9\ns_add_u32 s3, s3, {WS_ST + 192*512}")
            for k, r0 in enumerate((S_STAMP, S_STAMP+16, S_STAMP+20, S_STAMP+24)):
                for q in range(4): e(f"v_mov_b32 v{4+q}, s{r0+q}")
                e(f"buffer_store_dwordx4 v[4:7], v1, s[{SRD_WS}:{SRD_WS+3}], s3 offen offset:{k*16}\ns_nop 1")
        e("s_waitcnt vmcnt(0)")
    e("s_endpgm")

def gather(e, o):
    VT, VA, VL, VD, VS = 2, 4, 5, 8, 44
    S_U = 48
    e("L_gather:")
    e(f"""
    s_cmp_eq_u32 s{S_WAVE}, 7
    s_cbranch_scc1 L_end
    s_sub_u32 s{S_U}, s{S_WAVE}, 4
    s_mul_i32 s3, s{S_CU}, 384
    s_min_u32 s50, s{S_U}, {1 if o.sent else 2}
    s_lshl_b32 s50, s50, 7
    s_add_u32 s3, s3, s50
    s_add_u32 s3, s3, {WS_PF}
    v_lshlrev_b32 v{VA}, 3, v0
    v_add_u32 v{VA}, s3, v{VA}
    v_lshlrev_b32 v{VL}, 4, v0
    v_mov_b32 v{VT}, s{S_TAG}
    v_mov_b32 v{VT+1}, s{S_TAG+1}
    s_mul_i32 s52, s{S_CU}, 24576
    s_lshl_b32 s53, s{S_U}, 10
    s_add_u32 s52, s52, s53
    s_add_u32 s52, s52, {WS_P}
    v_lshlrev_b32 v6, 1, v0
    s_lshl_b32 s50, s{S_MT}, 6
    s_lshl_b32 s51, s{S_J}, 3
    s_add_u32 s50, s50, s51
    s_mul_i32 s50, s50, 1152
    s_mul_i32 s51, s{S_G}, 384
    s_add_u32 s50, s50, s51
    s_lshl_b32 s51, s{S_U}, 7
    s_add_u32 s50, s50, s51
    s_add_u32 s53, s50, 4608
    s_mov_b32 s54, 0xffff0000
    """)
    if o.ppipe:
        e(f"""
        s_mov_b64 exec, 0xffff
        s_mov_b32 s{S_CNT}, {SPIN_MAX}
        buffer_load_dwordx2 v[40:41], v{VA}, s[{SRD_WS}:{SRD_WS+3}], 0 offen sc1
        L_pp:
        s_sleep {o.ppipe}
        buffer_load_dwordx2 v[42:43], v{VA}, s[{SRD_WS}:{SRD_WS+3}], 0 offen sc1
        s_waitcnt vmcnt(1)
        v_cmp_ne_u64 vcc, v[40:41], v[{VT}:{VT+1}]
        s_sub_u32 s{S_CNT}, s{S_CNT}, 1
        s_cmp_eq_u32 s{S_CNT}, 0
        s_cbranch_scc1 L_ppdone
        s_nop 1
        s_cbranch_vccz L_ppdone
        s_sleep {o.ppipe}
        buffer_load_dwordx2 v[40:41], v{VA}, s[{SRD_WS}:{SRD_WS+3}], 0 offen sc1
        s_waitcnt vmcnt(1)
        v_cmp_ne_u64 vcc, v[42:43], v[{VT}:{VT+1}]
        s_nop 4
        s_cbranch_vccnz L_pp
        L_ppdone:
        s_mov_b64 exec, -1
        """)
    else:
        _poll(e, o, "p", VA, 0, "0xffff", VT, 40, o.psleep)
    if o.stamps: e(f"s_memtime s[{S_STAMP+8}:{S_STAMP+9}]")
    if o.sent:
        e(f"s_cmp_eq_u32 s{S_U}, 2\ns_cbranch_scc1 L_gsent")
    for p in range(8):
        e(f"buffer_load_dwordx4 v[{VD+4*p}:{VD+4*p+3}], v{VL}, s[{SRD_WS}:{SRD_WS+3}], s52 offen sc1")
        if p < 7: e(f"s_add_u32 s52, s52, 3072")
    if o.sent:
        e(f"""
        s_branch L_gloaded
        L_gsent:
        s_mov_b32 s{S_CNT}, {SPIN_MAX}
        s_mov_b32 s55, {SENT:#x}
        L_gretry:
        s_mov_b32 s56, s52
        """)
        for p in range(8):
            e(f"buffer_load_dwordx4 v[{VD+4*p}:{VD+4*p+3}], v{VL}, s[{SRD_WS}:{SRD_WS+3}], s56 offen sc1")
            if p < 7: e(f"s_add_u32 s56, s56, 3072")
        e("s_mov_b64 s[58:59], 0")
        for p in range(8):
            e(f"s_waitcnt vmcnt({7-p})")
            e(f"v_cmp_eq_u32 vcc, s55, v{VD+4*p}\nv_cmp_eq_u32 s[60:61], s55, v{VD+4*p+3}")
            e(f"s_nop 0\ns_or_b64 s[58:59], s[58:59], vcc\ns_or_b64 s[58:59], s[58:59], s[60:61]")
        e(f"""
        s_sub_u32 s{S_CNT}, s{S_CNT}, 1
        s_cmp_eq_u32 s{S_CNT}, 0
        s_cbranch_scc1 L_gloaded
        s_cmp_eq_u64 s[58:59], 0
        s_cbranch_scc1 L_gloaded
        s_sleep {o.gsleep}
        s_branch L_gretry
        L_gloaded:
        """)
    e(f"""
    s_or_b32 s51, s{S_J}, s{S_G}
    s_or_b32 s51, s51, s{S_U}
    s_cmp_lg_u32 s51, 0
    s_cbranch_scc1 L_noepoch
    s_lshl_b32 s51, s{S_MT}, 7
    v_mov_b32 v{VA}, s51
    s_mov_b64 exec, 1
    buffer_store_dwordx2 v[{VT}:{VT+1}], v{VA}, s[{SRD_WS}:{SRD_WS+3}], 0 offen sc1
    s_mov_b64 exec, -1
    s_waitcnt vmcnt(0)
    L_noepoch:
    """)
    for p in range(8):
        e(f"s_waitcnt vmcnt({7-p})")
        for d in range(4):
            src = VD + 4 * p + d
            if p == 0:
                e(f"v_lshlrev_b32 v{VS+2*d}, 16, v{src}\nv_and_b32 v{VS+2*d+1}, s54, v{src}")
            else:
                e(f"v_lshlrev_b32 v{VS+8}, 16, v{src}\nv_and_b32 v{VS+9}, s54, v{src}")
                e(f"v_add_f32 v{VS+2*d}, v{VS+2*d}, v{VS+8}\nv_add_f32 v{VS+2*d+1}, v{VS+2*d+1}, v{VS+9}")
    for d in range(4):
        e(f"v_cvt_pk_bf16_f32 v{VD+d}, v{VS+2*d}, v{VS+2*d+1}")
    if o.outx4:
        e(f"""
        s_lshl_b32 s51, s{S_U}, 10
        v_add_u32 v7, s51, v6
        v_lshl_add_u32 v{VA}, v0, 4, s51
        v_lshrrev_b32 v{VS+8}, 3, v0
        v_mul_u32_u24 v{VS+8}, 1152, v{VS+8}
        v_and_b32 v{VS+9}, 7, v0
        v_lshl_add_u32 v{VS+8}, v{VS+9}, 4, v{VS+8}
        """)
        for d in range(4):
            e(f"ds_write_b16 v7, v{VD+d} offset:{2*d*128}\nds_write_b16_d16_hi v7, v{VD+d} offset:{(2*d+1)*128}")
        e(f"""
        s_waitcnt lgkmcnt(0)
        ds_read_b128 v[{VD+4}:{VD+7}], v{VA}
        s_waitcnt lgkmcnt(0)
        buffer_store_dwordx4 v[{VD+4}:{VD+7}], v{VS+8}, s[{SRD_OUT}:{SRD_OUT+3}], s50 offen {"sc1" if o.outx4 == 2 else ""}
        """)
    else:
      for d in range(4):
        so = "s50" if d < 2 else "s53"
        e(f"buffer_store_short v{VD+d}, v6, s[{SRD_OUT}:{SRD_OUT+3}], {so} offen offset:{(2*d % 4)*1152}")
        e(f"buffer_store_short_d16_hi v{VD+d}, v6, s[{SRD_OUT}:{SRD_OUT+3}], {so} offen offset:{((2*d+1) % 4)*1152}")
    if o.span:
        e(f"""
        s_waitcnt vmcnt(0)
        s_memrealtime s[{S_STAMP+2}:{S_STAMP+3}]
        s_waitcnt lgkmcnt(0)
        s_lshl_b32 s3, s{S_CU}, 6
        s_lshl_b32 s51, s{S_U}, 4
        s_add_u32 s3, s3, s51
        s_add_u32 s3, s3, {WS_ST}
        s_mov_b64 exec, 1
        v_mov_b32 v1, 0
        v_mov_b32 v4, s{S_STAMP}
        v_mov_b32 v5, s{S_STAMP+1}
        v_mov_b32 v6, s{S_STAMP+2}
        v_mov_b32 v7, s{S_STAMP+3}
        buffer_store_dwordx4 v[4:7], v1, s[{SRD_WS}:{SRD_WS+3}], s3 offen sc1
        """)
    if o.stamps:
        e(f"""
        s_cmp_lg_u32 s{S_WAVE}, 6
        s_cbranch_scc1 L_end
        s_waitcnt vmcnt(0)
        s_memtime s[{S_STAMP+10}:{S_STAMP+11}]
        s_memrealtime s[{S_STAMP+12}:{S_STAMP+13}]
        s_waitcnt lgkmcnt(0)
        s_lshl_b32 s3, s{S_CU}, 9
        s_add_u32 s3, s3, {WS_ST + 384}
        s_mov_b64 exec, 1
        v_mov_b32 v1, 0
        """)
        for k in range(0, 16, 4):
            for q in range(4): e(f"v_mov_b32 v{4+q}, s{S_STAMP+k+q}")
            e(f"buffer_store_dwordx4 v[4:7], v1, s[{SRD_WS}:{SRD_WS+3}], s3 offen offset:{k*4}\ns_nop 1")
        e("s_waitcnt vmcnt(0)")
    e("s_endpgm")

def prefetch2(e, o):
    e("L_prefetch:")
    e(f"""
    s_sub_u32 s52, s3, 24
    s_cmp_ge_u32 s{S_WAVE}, 4
    s_cbranch_scc1 L_pf_h
    v_min_u32 v1, 215, v0
    s_mov_b32 s{S_T0}, 21846
    v_mul_u32_u24 v2, s{S_T0}, v1
    v_lshrrev_b32 v2, 16, v2
    v_mul_u32_u24 v3, 3, v2
    v_sub_u32 v3, v1, v3
    v_mul_u32_u24 v4, 9216, v2
    v_mul_u32_u24 v3, 384, v3
    v_add_u32 v4, v4, v3
    s_mul_i32 s53, s52, {72*9216}
    s_mul_i32 s{S_T1}, s{S_J}, 1152
    s_add_u32 s53, s53, s{S_T1}
    s_add_u32 s53, s53, 128
    s_mov_b32 s{S_T0}, 7282
    v_mul_u32_u24 v5, s{S_T0}, v1
    v_lshrrev_b32 v5, 16, v5
    v_mul_u32_u24 v6, 9, v5
    v_sub_u32 v6, v1, v6
    s_mul_i32 s54, s52, 24
    v_add_u32 v5, s54, v5
    v_lshrrev_b32 v7, 6, v5
    v_and_b32 v5, 63, v5
    v_mul_u32_u24 v7, 192, v7
    v_add_u32 v5, v5, v7
    v_mul_u32_u24 v5, 1152, v5
    v_lshl_add_u32 v5, v6, 7, v5
    s_mul_i32 s55, s{S_J}, {576*1152}
    s_waitcnt lgkmcnt(0)
    """)
    srd(e, SRD_B, S_W1, 576*4608*2)
    srd(e, SRD_C, S_W2, 576*4608*2)
    if o.pfdelay:
        e(f"s_sub_u32 s56, s53, 128\nbuffer_load_dword v8, v4, s[{SRD_B}:{SRD_B+3}], s56 offen\ns_waitcnt vmcnt(0)")
    e(f"""
    buffer_load_dword v8, v4, s[{SRD_B}:{SRD_B+3}], s53 offen
    s_waitcnt vmcnt(0)
    s_add_u32 s53, s53, 128
    buffer_load_dword v8, v4, s[{SRD_B}:{SRD_B+3}], s53 offen
    s_waitcnt vmcnt(0)
    buffer_load_dword v8, v5, s[{SRD_C}:{SRD_C+3}], s55 offen
    s_waitcnt vmcnt(0)
    s_add_u32 s55, s55, {64*1152}
    buffer_load_dword v8, v5, s[{SRD_C}:{SRD_C+3}], s55 offen
    s_waitcnt vmcnt(0)
    s_add_u32 s55, s55, {64*1152}
    buffer_load_dword v8, v5, s[{SRD_C}:{SRD_C+3}], s55 offen
    s_waitcnt vmcnt(0)
    s_endpgm
    L_pf_h:
    v_subrev_u32 v1, 256, v0
    v_min_u32 v1, 191, v1
    v_lshrrev_b32 v2, 6, v1
    v_and_b32 v3, 63, v1
    v_mul_u32_u24 v2, 24576, v2
    v_lshl_add_u32 v2, v3, 7, v2
    s_mul_i32 s53, s{S_J}, {24*24576}
    s_mul_i32 s54, s52, {3*24576}
    s_add_u32 s53, s53, s54
    s_add_u32 s53, s53, {WS_H}
    v_mul_u32_u24 v4, 9216, v3
    s_mul_i32 s54, s52, {72*9216}
    s_mul_i32 s55, s{S_J}, 1152
    s_add_u32 s54, s54, s55
    s_waitcnt lgkmcnt(0)
    """)
    srd(e, SRD_B, S_W1, 576*4608*2)
    srd(e, SRD_WS, S_WS, WS_SIZE)
    for k in range(o.hdelay):
        e(f"buffer_load_dword v8, v4, s[{SRD_B}:{SRD_B+3}], s54 offen\ns_waitcnt vmcnt(0)\ns_add_u32 s54, s54, 384")
    for st in range(3):
        e(f"buffer_load_dword v8, v2, s[{SRD_WS}:{SRD_WS+3}], s53 offen\ns_waitcnt vmcnt(0)")
        if st < 2: e(f"s_add_u32 s53, s53, {UNIT}")
    e("s_endpgm")

def prefetch(e, o):
    if o.pfv == 2: return prefetch2(e, o)
    e("L_prefetch:")
    e(f"""
    s_sub_u32 s3, s3, 24
    s_mov_b32 s52, s3
    s_mov_b32 s{S_T0}, 10923
    v_mul_u32_u24 v1, s{S_T0}, v0
    v_lshrrev_b32 v1, 16, v1
    v_mul_u32_u24 v2, 6, v1
    v_sub_u32 v2, v0, v2
    v_lshrrev_b32 v3, 1, v2
    v_and_b32 v2, 1, v2
    v_mul_u32_u24 v3, 384, v3
    v_lshl_add_u32 v3, v2, 7, v3
    v_mul_u32_u24 v1, 9216, v1
    v_add_u32 v1, v1, v3
    s_mul_i32 s{S_T0}, s3, {72*9216}
    s_mul_i32 s{S_T1}, s{S_J}, 1152
    s_add_u32 s{S_T0}, s{S_T0}, s{S_T1}
    s_add_u32 s{S_T0}, s{S_T0}, 128
    s_mul_i32 s{S_T1}, s{S_J}, {576*1152}
    s_mul_i32 s3, s3, {72*1152}
    s_add_u32 s{S_T1}, s{S_T1}, s3
    v_lshlrev_b32 v4, 7, v0
    v_add_u32 v5, 65536, v4
    v_min_u32 v5, {647*128}, v5
    v_cmp_gt_u32 vcc, 432, v0
    s_waitcnt lgkmcnt(0)
    """)
    srd(e, SRD_B, S_W1, 576*4608*2)
    srd(e, SRD_C, S_W2, 576*4608*2)
    e(f"""
    v_mov_b32 v6, 0
    v_cndmask_b32 v1, v6, v1, vcc
    """)
    if o.sent and o.clrpos == 0:
        srd(e, SRD_WS, S_WS, WS_SIZE)
        clear_inboxes(e, o)
    if o.pfdelay:
        e(f"""
        v_min_u32 v15, {o.pfdelay * 8 - 1}, v0
        v_mul_u32_u24 v15, 9216, v15
        s_sub_u32 s53, s{S_T0}, 128
        buffer_load_dword v16, v15, s[{SRD_B}:{SRD_B+3}], s53 offen
        s_waitcnt vmcnt(0)
        """)
    if o.pfsplit:
        e(f"""
        v_cmp_eq_u32 vcc, 0, v2
        s_nop 1
        s_and_saveexec_b64 s[54:55], vcc
        buffer_load_dword v8, v1, s[{SRD_B}:{SRD_B+3}], s{S_T0} offen
        s_waitcnt vmcnt(0)
        s_andn2_b64 exec, s[54:55], exec
        buffer_load_dword v8, v1, s[{SRD_B}:{SRD_B+3}], s{S_T0} offen
        s_mov_b64 exec, s[54:55]
        """)
    else:
        e(f"buffer_load_dword v8, v1, s[{SRD_B}:{SRD_B+3}], s{S_T0} offen")
    if o.ptouch:
        srd(e, SRD_WS, S_WS, WS_SIZE)
        e(f"""
        s_mul_i32 s50, s{S_J}, {24*24576}
        s_mul_i32 s51, s52, {576*128}
        s_add_u32 s50, s50, s51
        s_add_u32 s50, s50, {WS_H}
        v_min_u32 v11, 63, v0
        v_lshlrev_b32 v11, 7, v11
        v_add_u32 v11, 65536, v11
        """)
    if o.ptouch == 3:
        e(f"""
        v_lshrrev_b32 v12, 6, v0
        v_min_u32 v12, 2, v12
        v_mul_u32_u24 v12, 24576, v12
        v_and_b32 v13, 63, v0
        v_lshl_add_u32 v14, v13, 7, v12
        v_add_u32 v14, 16384, v14
        """)
    e("s_waitcnt vmcnt(0)")
    if o.ptouch == 2:
        e(f"buffer_load_dword v12, v4, s[{SRD_WS}:{SRD_WS+3}], s50 offen\nbuffer_load_dword v13, v11, s[{SRD_WS}:{SRD_WS+3}], s50 offen")
    e(f"""
    buffer_load_dword v9, v4, s[{SRD_C}:{SRD_C+3}], s{S_T1} offen
    buffer_load_dword v10, v5, s[{SRD_C}:{SRD_C+3}], s{S_T1} offen
    s_waitcnt vmcnt(0)
    """)
    if o.ptouch == 3:
        e(f"buffer_load_dword v12, v14, s[{SRD_WS}:{SRD_WS+3}], s50 offen\ns_waitcnt vmcnt(0)")
    if o.ptouch == 1:
        e(f"buffer_load_dword v12, v4, s[{SRD_WS}:{SRD_WS+3}], s50 offen\nbuffer_load_dword v13, v11, s[{SRD_WS}:{SRD_WS+3}], s50 offen\ns_waitcnt vmcnt(0)")
    if o.sent and o.clrpos == 1: clear_inboxes(e, o)
    e("s_endpgm")

def clear_inboxes(e, o):
    e(f"""
    s_lshl_b32 s3, s52, 7
    s_load_dwordx2 s[{S_TAG}:{S_TAG+1}], s[{S_WS}:{S_WS+1}], s3
    s_mul_i32 s56, s{S_J}, 24
    s_mul_i32 s57, s52, 3
    s_add_u32 s56, s56, s57
    v_lshrrev_b32 v20, 6, v0
    v_and_b32 v21, 63, v0
    v_mul_u32_u24 v20, 3072, v20
    v_lshl_add_u32 v20, v21, 4, v20
    s_mul_i32 s57, s56, 24576
    s_add_u32 s57, s57, {WS_P + 2048}
    v_mov_b32 v24, {SENT:#x}
    v_mov_b32 v25, {SENT:#x}
    v_mov_b32 v26, {SENT:#x}
    v_mov_b32 v27, {SENT:#x}
    buffer_store_dwordx4 v[24:27], v20, s[{SRD_WS}:{SRD_WS+3}], s57 offen sc1
    s_add_u32 s57, s57, 24576
    buffer_store_dwordx4 v[24:27], v20, s[{SRD_WS}:{SRD_WS+3}], s57 offen sc1
    s_add_u32 s57, s57, 24576
    buffer_store_dwordx4 v[24:27], v20, s[{SRD_WS}:{SRD_WS+3}], s57 offen sc1
    s_waitcnt vmcnt(0) lgkmcnt(0)
    s_barrier
    s_add_u32 s{S_TAG}, s{S_TAG}, {TAGC_LO:#x}
    s_addc_u32 s{S_TAG+1}, s{S_TAG+1}, {TAGC_HI:#x}
    s_lshl_b32 s56, s56, 7
    s_add_u32 s56, s56, {WS_CF}
    v_mov_b32 v22, s{S_TAG}
    v_mov_b32 v23, s{S_TAG+1}
    v_lshlrev_b32 v21, 7, v0
    v_cmp_gt_u32 vcc, 3, v0
    s_nop 1
    s_and_saveexec_b64 s[54:55], vcc
    s_cbranch_execz L_clr_done
    buffer_store_dwordx2 v[22:23], v21, s[{SRD_WS}:{SRD_WS+3}], s56 offen sc1
    L_clr_done:
    s_mov_b64 exec, s[54:55]
    """)

def build(o):
    if o.order: P2[:] = P2B
    _uid[0] = 0; OUTLINE.clear(); NOST[0] = o.x_nost; NOST[1] = o.x_nodsw; NOST[2] = o.hsc1; NOST[3] = o.hnt
    e = E(); prologue(e, o)
    parts = []
    ls = E(); loader_start(ls, o)
    for lw in range(3):
        x = E(); loader(x, o, lw); parts.append(("loader%d" % lw, x))
    x = E(); control(x, o); parts.append(("control", x))
    x = E(); prefetch(x, o); parts.append(("prefetch", x))
    x = E(); compute(x, o); parts.append(("compute", x))
    eg = E(); gather(eg, o)
    for k, v in parts:
        pre = e.text() + "\n" + (ls.text() + "\n" if k.startswith("loader") else "")
        pr = hazard.check(pre + v.text() + "\n" + eg.text())
        if pr: raise SystemExit(f"hazards in {k}")
    body = "\n".join([e.text(), ls.text()] + [v.text() for k, v in parts] + [eg.text(), "\n".join(OUTLINE), "L_end:", "s_endpgm"])
    nsgpr = 100 if o.stamps else 72
    hdr = f"""; Fused FFN: out = silu(x @ w1) @ w2   (M=512, D=576, F=4608), one launch.
; 192 compute workgroups = 8 F-slices (j) x 8 row tiles (mt) x 3 column groups (g): 4 MFMA waves, 3 LDS-DMA loader waves, 1 control wave;
; @launch grid=({NWG + o.npf},1,1) block=(512,1,1) lds={LDS_BYTES}
.amdgcn_target "amdgcn-amd-amdhsa--gfx950"
.text
.globl {KNAME}
.p2align 8
.type {KNAME},@function
{KNAME}:
"""
    tail = f"""
.section .rodata,"a"
.p2align 6
.amdhsa_kernel {KNAME}
  .amdhsa_next_free_vgpr 256
  .amdhsa_next_free_sgpr {nsgpr}
  .amdhsa_accum_offset 256
  .amdhsa_group_segment_fixed_size 0
  .amdhsa_kernarg_size 48
  .amdhsa_user_sgpr_count 2
  .amdhsa_user_sgpr_kernarg_segment_ptr 1
  .amdhsa_system_sgpr_workgroup_id_x 1
.end_amdhsa_kernel
"""
    return hdr + body + tail

if __name__ == "__main__":
    o = Opt()
    out = sys.argv[1]
    for a in sys.argv[2:]:
        k, v = a.split("=")
        setattr(o, k, bool(int(v)) if isinstance(getattr(Opt, k), bool) else int(v))
    open(out, "w").write(build(o))
    print("wrote", out)
```

```python
import sys, os
sys.path.insert(0, os.path.dirname(__file__))
import hazard

KNAME = "standalone__dense_activation_silu__sampling_kernel"
NWG = 192
NPF = 64
XH = 0
RING = 73728
R = 11
UNIT = 8192
LDS_BYTES = 163840
WS_E, WS_ID, WS_HF, WS_PF, WS_H, WS_P, WS_ST = 0, 4096, 32768, 65536, 262144, 5242880, 16777216
WS_PFX = 12582912
FS = [8]
WS_CF = 163840
SENT = 0x7F817F81
WS_SIZE = 0x10000000
TAGC_LO, TAGC_HI = 0x7F4A7C15, 0x9E3779B9
SPIN_MAX = 100000
FASTW = XH + 3 * UNIT

P2 = [(0,0),(1,0),(2,0), (0,1),(1,1),(2,1), (0,2),(1,2),(2,2), (3,0),(4,0),(5,0), (3,1),(4,1),(5,1),
      (6,0),(7,0),(8,0), (6,1),(7,1),(8,1), (3,2),(4,2),(5,2), (6,2),(7,2),(8,2)]
P2B = [(0,0),(1,0),(2,0), (0,1),(1,1),(2,1), (0,2),(1,2),(2,2), (3,0),(4,0),(5,0), (3,1),(4,1),(5,1),
       (3,2),(4,2),(5,2), (6,0),(7,0),(8,0), (6,1),(7,1),(8,1), (6,2),(7,2),(8,2)]
PCH = [(p % 3, p // 3) for p in range(9)]

class Opt:
    stamps = False
    LP = 3
    pairw = True
    pub0 = 17
    pub1 = 11
    DRAIN = 2
    epb = 52
    epb2 = 110
    f1pos = 8
    h0b = 8
    h1b = 11
    h2b = 13
    fastb = 4
    gap0 = 5
    gap2 = 4
    tlbw = False
    ctouch = False
    ptouch = 1
    t0b = 3
    t1b = 5
    t2b = 7
    order = 0
    touch = 2
    wgap2 = True
    ppipe = 0
    epb0 = 80
    sent = False
    gsleep = 1
    probe1 = False
    latew = False
    lprio = 0
    cprio = 0
    gsplit = False
    x_perm = 0
    pfs = 8
    pfv = 2
    hdelay = 3
    clrpos = 1
    clrb = 4
    cfb = 7
    chkb = 15
    span = False
    x_pad = 0
    ep2first = False
    hnt = True
    pfdelay = 1
    pfsplit = True
    outx4 = 0
    tlbb = 0
    wbl2 = 0
    hsc1 = 0
    early = 1
    astamp = 0
    ep2_rate = 9
    prefetch_code = True
    prio = 0
    npf = 64
    force_slow = False
    sleep = 1
    w_nt = True
    x_noep = False
    x_nodma = False
    x_nopub = False
    x_nost = False
    x_hplain = False
    x_nodsw = False
    psleep = 1
    stampset = 0

class E:
    def __init__(self): self.L = []
    def __call__(self, s):
        for l in s.split("\n"):
            l = l.strip()
            if l: self.L.append(l)
    def text(self): return "\n".join(self.L)

S_X, S_W1, S_W2, S_OUT, S_WS = 4, 6, 8, 10, 12
S_J, S_MT, S_G, S_WAVE, S_CU = 14, 15, 16, 17, 18
S_FAST = 19
S_TAG = 20
S_T0, S_T1 = 22, 23
SRD_A, SRD_B, SRD_C = 24, 28, 32
SRD_WS, SRD_OUT = 36, 40
S_G1, S_G2 = 44, 45
S_CNT = 46
S_STAMP = 64

def srd(e, d, base, size):
    e(f"s_mov_b32 s{d}, s{base}\ns_and_b32 s{d+1}, s{base+1}, 0xffff\ns_mov_b32 s{d+2}, {size}\ns_mov_b32 s{d+3}, 0x20000")

def prologue(e, o):
    e(f"""
    s_cmp_ge_u32 s2, {NWG + o.npf}
    s_cbranch_scc1 L_end
    s_load_dwordx4 s[4:7], s[0:1], 0
    s_load_dwordx4 s[8:11], s[0:1], 16
    s_load_dwordx2 s[12:13], s[0:1], 40
    """)
    if o.x_perm == 1:
        e("s_lshr_b32 s3, s2, 3\ns_and_b32 s3, s3, 7\ns_xor_b32 s2, s2, s3")
    if o.x_perm == 2:
        e("s_lshr_b32 s3, s2, 5\ns_and_b32 s3, s3, 1\ns_lshr_b32 s22, s2, 3\ns_and_b32 s3, s3, s22\ns_xor_b32 s2, s2, s3")
    if o.prefetch_code:
        e(f"""
        s_getpc_b64 s[{S_T0}:{S_T0+1}]
        L_pf:
        v_lshlrev_b32 v1, 7, v0
        v_min_u32 v1, L_end-L_pf, v1
        global_load_dword v31, v1, s[{S_T0}:{S_T0+1}]
        """)
    if o.stamps:
        e(f"s_memrealtime s[{S_STAMP}:{S_STAMP+1}]\ns_memtime s[{S_STAMP+2}:{S_STAMP+3}]")
    if o.span:
        e(f"s_memrealtime s[{S_STAMP}:{S_STAMP+1}]")
    e(f"""
    v_lshrrev_b32 v1, 6, v0
    s_and_b32 s{S_J}, s2, 7
    s_lshr_b32 s3, s2, 3
    v_readfirstlane_b32 s{S_WAVE}, v1
    s_cmp_ge_u32 s2, {NWG}
    s_cbranch_scc1 L_prefetch
    s_mul_i32 s{S_MT}, s3, 171
    s_lshr_b32 s{S_MT}, s{S_MT}, 9
    s_mul_i32 s{S_G}, s{S_MT}, 3
    s_sub_u32 s{S_G}, s3, s{S_G}
    v_and_b32 v0, 63, v0
    s_cmp_lt_u32 s{S_WAVE}, 4
    s_cbranch_scc1 L_compute
    s_cmp_eq_u32 s{S_WAVE}, 7
    s_cbranch_scc1 L_control
    """)

def common_ids(e):
    e(f"""
    s_add_u32 s{S_G1}, s{S_G}, 1
    s_cmp_eq_u32 s{S_G1}, 3
    s_cselect_b32 s{S_G1}, 0, s{S_G1}
    s_add_u32 s{S_G2}, s{S_G1}, 1
    s_cmp_eq_u32 s{S_G2}, 3
    s_cselect_b32 s{S_G2}, 0, s{S_G2}
    s_lshl_b32 s{S_CU}, s{S_J}, 3
    s_add_u32 s{S_CU}, s{S_CU}, s{S_MT}
    s_mul_i32 s{S_CU}, s{S_CU}, 3
    s_add_u32 s{S_CU}, s{S_CU}, s{S_G}
    s_lshl_b32 s3, s{S_MT}, 7
    """)

def load_epoch(e):
    e(f"s_load_dwordx2 s[{S_TAG}:{S_TAG+1}], s[{S_WS}:{S_WS+1}], s3")
    srd(e, SRD_WS, S_WS, WS_SIZE)
    srd(e, SRD_OUT, S_OUT, 512*576*2)

def finish_tag(e):
    e(f"""
    s_waitcnt lgkmcnt(0)
    s_add_u32 s{S_TAG}, s{S_TAG}, {TAGC_LO:#x}
    s_addc_u32 s{S_TAG+1}, s{S_TAG+1}, {TAGC_HI:#x}
    """)

def dma_unit(e, srd_r, vp, s_off, half_step, lds, flags="", s_tmp=61, s_lb=None):
    pats = vp if len(vp) == 4 else vp * 4
    m0 = (lambda c: f"s_mov_b32 m0, {c}") if s_lb is None else (lambda c: f"s_add_u32 m0, s{s_lb}, {c}")
    e(f"{m0(lds)}\ns_add_u32 s{s_tmp}, s{s_off}, {half_step}")
    for k in range(4):
        e(f"buffer_load_dwordx4 v{pats[k]}, s[{srd_r}:{srd_r+3}], s{s_off} offen offset:{1024*k} {flags} lds")
    e(f"{m0(lds + 4096)}\ns_nop 0")
    for k in range(4):
        e(f"buffer_load_dwordx4 v{pats[k]}, s[{srd_r}:{srd_r+3}], s{s_tmp} offen offset:{1024*k} {flags} lds")

def issue_barrier(n): return -1 if n < R else (n - R) // 3 + 1

V_LX, V_LW1, V_LW2 = 8, 12, 16
S_C = [48, 49, 50]; S_XO = [51, 52, 53]; S_WO = [54, 55, 56]; S_GB = [57, 58, 59]; S_OFF = 60
S_LW, S_LB = 62, 63
S_LH = 47
V_LIN = 20

def lstamp(e, o, k):
    if o.stamps and not o.astamp: e(f"s_memtime s[{S_STAMP+16+2*k}:{S_STAMP+17+2*k}]")

def loader_start(e, o):
    wf = "nt" if o.w_nt else ""
    if o.lprio: e(f"s_setprio {o.lprio}")
    e(f"""
    s_sub_u32 s{S_LW}, s{S_WAVE}, 4
    v_lshrrev_b32 v1, 3, v0
    v_and_b32 v2, 7, v0
    v_lshrrev_b32 v6, 1, v1
    v_mul_u32_u24 v5, 1152, v1
    v_xor_b32 v6, v2, v6
    v_lshlrev_b32 v7, 4, v6
    v_add_u32 v{V_LX}, v5, v7
    v_xor_b32 v7, 64, v7
    v_add_u32 v{V_LX+1}, v5, v7
    v_add_u32 v{V_LX+1}, {9216-1024}, v{V_LX+1}
    v_add_u32 v{V_LX+2}, {2*(9216-1024)}, v{V_LX}
    v_add_u32 v{V_LX+3}, {2*(9216-1024)}, v{V_LX+1}
    s_mul_i32 s{S_T0}, s{S_G}, 3
    s_add_u32 s{S_T0}, s{S_T0}, s{S_MT}
    s_add_u32 s{S_T0}, s{S_T0}, s{S_LW}
    s_cmp_ge_u32 s{S_T0}, 9
    s_cselect_b32 s{S_T1}, 9, 0
    s_sub_u32 s{S_C[0]}, s{S_T0}, s{S_T1}
    s_mul_i32 s{S_T0}, s{S_MT}, {64*1152}
    s_lshl_b32 s{S_XO[0]}, s{S_C[0]}, 7
    s_add_u32 s{S_XO[0]}, s{S_XO[0]}, s{S_T0}
    s_lshl_b32 s{S_LB}, s{S_LW}, 13
    v_and_b32 v3, 2, v1
    v_lshlrev_b32 v3, 1, v3
    v_xor_b32 v3, v2, v3
    v_lshlrev_b32 v3, 4, v3
    v_mul_u32_u24 v4, 9216, v1
    v_add_u32 v{V_LW1}, v4, v3
    v_add_u32 v{V_LW2}, v5, v3
    s_mul_i32 s{S_T1}, s{S_J}, 1152
    s_mul_i32 s3, s{S_G}, 384
    s_add_u32 s{S_T1}, s{S_T1}, s3
    s_mul_i32 s3, s{S_C[0]}, {64*9216}
    s_add_u32 s{S_WO[0]}, s{S_T1}, s3
    v_add_u32 v{V_LW1+1}, {1*(73728-1024)}, v{V_LW1}
    v_add_u32 v{V_LW1+2}, {2*(73728-1024)}, v{V_LW1}
    v_add_u32 v{V_LW1+3}, {3*(73728-1024)}, v{V_LW1}
    s_waitcnt lgkmcnt(0)
    """)
    lstamp(e, o, 0)
    srd(e, SRD_A, S_X, 512*576*2)
    XP = [V_LX, V_LX+1, V_LX+2, V_LX+3]; WP = [V_LW1, V_LW1+1, V_LW1+2, V_LW1+3]
    dma_unit(e, SRD_A, XP, S_XO[0], 4*9216, XH, s_lb=S_LB)
    srd(e, SRD_B, S_W1, 576*4608*2)
    dma_unit(e, SRD_B, WP, S_WO[0], 4*73728, RING, wf, s_lb=S_LB)
    lstamp(e, o, 1)
    for k in (1, 2):
        e(f"""
        s_add_u32 s3, s{S_C[k-1]}, 3
        s_cmp_ge_u32 s3, 9
        s_cselect_b32 s{S_C[k]}, 9, 0
        s_sub_u32 s{S_C[k]}, s3, s{S_C[k]}
        s_lshl_b32 s3, s{S_C[k]}, 7
        s_add_u32 s{S_XO[k]}, s{S_T0}, s3
        s_mul_i32 s3, s{S_C[k]}, {64*9216}
        s_add_u32 s{S_WO[k]}, s{S_T1}, s3
        """)
        if (k == 1 and o.early < 2) or not o.early:
            dma_unit(e, SRD_A, XP, S_XO[k], 4*9216, XH + 3*k*UNIT, s_lb=S_LB)
            dma_unit(e, SRD_B, WP, S_WO[k], 4*73728, RING + 3*k*UNIT, wf, s_lb=S_LB)
    if not o.early:
        e(f"s_cmp_eq_u32 s{S_LW}, 2\ns_cbranch_scc1 L_ld_no4")
        e(f"s_add_u32 s{S_OFF}, s{S_WO[0]}, 128")
        dma_unit(e, SRD_B, WP, S_OFF, 4*73728, RING + 9*UNIT, wf, s_lb=S_LB)
        e("L_ld_no4:")
    lstamp(e, o, 2)
    common_ids(e)
    srd(e, SRD_C, S_W2, 576*4608*2)
    for k in (1, 2, 3):
        e(f"v_add_u32 v{V_LW2+k}, {k*(9216-1024)}, v{V_LW2}")
    e(f"""
    s_mul_i32 s{S_T0}, s{S_J}, {576*1152}
    s_mul_i32 s{S_T1}, s{S_G}, 384
    s_add_u32 s{S_T0}, s{S_T0}, s{S_T1}
    """)
    for k, sg in enumerate((S_G, S_G1, S_G2)):
        e(f"s_mul_i32 s3, s{sg}, {192*1152}\ns_add_u32 s{S_GB[k]}, s{S_T0}, s3")
    e(f"""
    s_cmp_eq_u32 s{S_LW}, 1
    s_cselect_b32 s3, s{S_G1}, s{S_G}
    s_cmp_eq_u32 s{S_LW}, 2
    s_cselect_b32 s3, s{S_G2}, s3
    s_sub_u32 s{S_LH}, s{S_CU}, s{S_G}
    s_add_u32 s{S_LH}, s{S_LH}, s3
    s_mul_i32 s{S_LH}, s{S_LH}, 24576
    s_add_u32 s{S_LH}, s{S_LH}, {WS_H}
    v_lshlrev_b32 v{V_LIN}, 4, v0
    """)
    e(f"s_lshl_b32 s3, s{S_MT}, 7")
    load_epoch(e)
    finish_tag(e)
    e(f"""
    s_cmp_eq_u32 s{S_LW}, 1
    s_cbranch_scc1 L_loader1
    s_cmp_eq_u32 s{S_LW}, 2
    s_cbranch_scc1 L_loader2
    """)

def loader(e, o, lw):
    wf = "nt" if o.w_nt else ""
    WP = [V_LW1, V_LW1+1, V_LW1+2, V_LW1+3]; W2P = [V_LW2, V_LW2+1, V_LW2+2, V_LW2+3]
    e(f"L_loader{lw}:")
    XP = [V_LX, V_LX+1, V_LX+2, V_LX+3]
    if o.early == 2: seq = [("x", lw), ("w", lw)]
    elif o.early: seq = [("x", lw), ("w", lw), ("x", 3+lw), ("w", 3+lw)]
    else: seq = [("x", lw), ("w", lw), ("x", 3+lw), ("w", 3+lw), ("x", 6+lw), ("w", 6+lw)] + ([("w", 9+lw)] if 9 + lw < R else [])
    def issue_w(n):
        slot = n % R
        if n < 27:
            s, i = n // 9, n % 9
            t = i // 3
            e(f"s_add_u32 s{S_OFF}, s{S_WO[t]}, {128*s}")
            dma_unit(e, SRD_B, WP, S_OFF, 4*73728, RING + slot*UNIT, wf)
        else:
            p, u = P2[n - 27]
            k, s = PCH[p]
            e(f"s_add_u32 s{S_OFF}, s{S_GB[k]}, {73728*s + 128*u}")
            dma_unit(e, SRD_C, W2P, S_OFF, 4*9216, RING + slot*UNIT, wf)
        seq.append(("w", n))
    hb = {o.h0b: 0, o.h1b: 1, o.h2b: 2}
    hneed = {9: 0, 12: 1, (15 if o.order else 14): 2}
    for st in range(18):
        need = [("w", 3*st + lw)] + ([("x", 3*st + lw)] if st < 3 else []) + ([("h", hneed[st])] if st in hneed else [])
        last = max(seq.index(x) for x in need)
        n = 8 * (len(seq) - 1 - last)
        assert n <= 63
        e(f"s_waitcnt vmcnt({n})")
        if st == 0 and not o.astamp: lstamp(e, o, 3)
        if o.astamp and o.astamp <= st < o.astamp + 6: e(f"s_memtime s[{S_STAMP+16+2*(st-o.astamp)}:{S_STAMP+17+2*(st-o.astamp)}]")
        e("s_barrier")
        if st in hb:
            sg = hb[st]
            e(f"s_add_u32 s{S_OFF}, s{S_LH}, {sg*UNIT}")
            dma_unit(e, SRD_WS, [V_LIN], S_OFF, 4096, XH + (3*sg + lw)*UNIT, "" if o.x_hplain else "sc1"); seq.append(("h", sg))
        if o.early == 2 and st == 0:
            dma_unit(e, SRD_A, XP, S_XO[1], 4*9216, XH + (3 + lw)*UNIT); seq.append(("x", 3 + lw))
            issue_w(3 + lw)
        if o.early and st == 0:
            dma_unit(e, SRD_A, XP, S_XO[2], 4*9216, XH + (6 + lw)*UNIT); seq.append(("x", 6 + lw))
            issue_w(6 + lw)
        if o.early and st == 1 and 9 + lw < R: issue_w(9 + lw)
        for nn in range(R, 54):
            if nn % 3 == lw and issue_barrier(nn) == st:
                if o.x_nodma: seq.append(('w', nn))
                else: issue_w(nn)
    if o.stamps and (lw == 0 or o.astamp):
        base = WS_ST + 192 if not o.astamp else WS_ST + 192*512 + (1 + lw)*64
        e(f"s_waitcnt lgkmcnt(0)\ns_lshl_b32 s3, s{S_CU}, 9\ns_add_u32 s3, s3, {base}\ns_mov_b64 exec, 1\nv_mov_b32 v1, 0")
        for k, r0 in enumerate((S_STAMP, S_STAMP+16, S_STAMP+20, S_STAMP+24)):
            for q in range(4): e(f"v_mov_b32 v{4+q}, s{r0+q}")
            e(f"buffer_store_dwordx4 v[4:7], v1, s[{SRD_WS}:{SRD_WS+3}], s3 offen offset:{k*16}\ns_nop 1")
        e("s_mov_b64 exec, -1")
    e("s_branch L_gather")

def _poll(e, o, name, vaddr, imm, mask, vtag, vtmp, sleep=None):
    sleep = o.sleep if sleep is None else sleep
    e(f"""
    s_mov_b64 exec, {mask}
    s_mov_b32 s{S_CNT}, {SPIN_MAX}
    L_poll_{name}:
    buffer_load_dwordx2 v[{vtmp}:{vtmp+1}], v{vaddr}, s[{SRD_WS}:{SRD_WS+3}], 0 offen offset:{imm} sc1
    s_waitcnt vmcnt(0)
    v_cmp_ne_u64 vcc, v[{vtmp}:{vtmp+1}], v[{vtag}:{vtag+1}]
    s_sub_u32 s{S_CNT}, s{S_CNT}, 1
    s_cmp_eq_u32 s{S_CNT}, 0
    s_cbranch_scc1 L_polldone_{name}
    s_nop 1
    s_cbranch_vccz L_polldone_{name}
    """)
    if sleep: e(f"s_sleep {sleep}")
    e(f"""
    s_branch L_poll_{name}
    L_polldone_{name}:
    s_mov_b64 exec, -1
    """)

def control(e, o):
    V_LIN, V_POLL, V_TAG, V_TMP, V_ID = 8, 9, 10, 12, 14
    S_OFF, S_H1, S_H2, S_XCC, S_H0 = 60, 48, 49, 50, 51
    e("L_control:")
    if o.cprio: e(f"s_setprio {o.cprio}")
    common_ids(e)
    e("s_waitcnt lgkmcnt(0)")
    load_epoch(e)
    def tlb_warm():
        e(f"""
        v_min_u32 v26, 39, v0
        v_lshlrev_b32 v26, 18, v26
        buffer_load_dword v29, v26, s[{SRD_WS}:{SRD_WS+3}], 0 offen offset:2048 sc1
        v_min_u32 v27, 8, v0
        v_lshlrev_b32 v27, 16, v27
        buffer_load_dword v28, v27, s[{SRD_OUT}:{SRD_OUT+3}], 0 offen sc1
        """)
    if o.tlbw and not o.tlbb: tlb_warm()
    e(f"""
    s_getreg_b32 s{S_XCC}, hwreg(HW_REG_XCC_ID, 0, 4)
    v_lshlrev_b32 v{V_LIN}, 4, v0
    s_sub_u32 s{S_T0}, s{S_CU}, s{S_G}
    s_add_u32 s{S_H1}, s{S_T0}, s{S_G1}
    s_add_u32 s{S_H2}, s{S_T0}, s{S_G2}
    s_lshl_b32 s{S_T0}, s{S_H1}, 7
    s_lshl_b32 s{S_T1}, s{S_H2}, 7
    v_mov_b32 v1, s{S_T0}
    v_mov_b32 v2, s{S_T1}
    s_lshl_b32 s{S_OFF}, s{S_CU}, 7
    v_mov_b32 v7, s{S_OFF}
    v_lshrrev_b32 v3, 2, v0
    v_cmp_eq_u32 vcc, 1, v3
    v_and_b32 v6, 3, v0
    v_lshlrev_b32 v6, 3, v6
    v_cndmask_b32 v4, v7, v1, vcc
    v_cmp_eq_u32 vcc, 2, v3
    s_mul_i32 s{S_H1}, s{S_H1}, 24576
    s_mul_i32 s{S_H2}, s{S_H2}, 24576
    v_cndmask_b32 v4, v4, v2, vcc
    v_add_u32 v4, {WS_HF}, v4
    v_add_u32 v{V_POLL}, v4, v6
    v_cmp_eq_u32 vcc, 0, v0
    s_mul_i32 s{S_H0}, s{S_CU}, 24576
    s_add_u32 s{S_H0}, s{S_H0}, {WS_H}
    v_cndmask_b32 v4, v2, v1, vcc
    v_add_u32 v{V_ID}, {WS_ID}, v4
    s_add_u32 s{S_H1}, s{S_H1}, {WS_H}
    s_add_u32 s{S_H2}, s{S_H2}, {WS_H}
    """)
    finish_tag(e)
    e(f"""
    s_add_u32 s{S_T0}, s{S_XCC}, 16
    s_add_u32 s{S_T0}, s{S_TAG}, s{S_T0}
    s_addc_u32 s{S_T1}, s{S_TAG+1}, 0
    v_mov_b32 v4, s{S_T0}
    v_mov_b32 v5, s{S_T1}
    s_lshl_b32 s3, s{S_CU}, 7
    s_add_u32 s3, s3, {WS_ID}
    v_mov_b32 v6, s3
    v_mov_b32 v{V_TAG}, s{S_TAG}
    v_mov_b32 v{V_TAG+1}, s{S_TAG+1}
    s_mov_b64 exec, 1
    buffer_store_dwordx2 v[4:5], v6, s[{SRD_WS}:{SRD_WS+3}], 0 offen sc1
    s_mov_b64 exec, -1
    """)
    def hdma(s):
        for k, sh in enumerate((S_H0, S_H1, S_H2)):
            p = 3 * s + k
            e(f"s_add_u32 s{S_OFF}, s{sh}, {s*UNIT}")
            dma_unit(e, SRD_WS, [V_LIN], S_OFF, 4096, XH + p * UNIT, "sc1")
    def stamp(k):
        if o.stamps: e(f"s_memtime s[{S_STAMP+4+2*k}:{S_STAMP+5+2*k}]\ns_waitcnt lgkmcnt(0)")
    bl = [0,1,2,3,6,9,10,11,12,13,14,15,16,17] if o.stampset == 0 else [0,2,3,4,5,6,7,8,9,10,11,12,14,17]
    slots = {b: i for i, b in enumerate(bl)}
    for st in range(18):
        if st == o.fastb - 2:
            e(f"s_mov_b64 exec, 3\nbuffer_load_dwordx2 v[{V_TMP}:{V_TMP+1}], v{V_ID}, s[{SRD_WS}:{SRD_WS+3}], 0 offen sc1\ns_mov_b64 exec, -1")
        if o.touch and st == o.fastb - 2:
            e(f"""
            v_lshlrev_b32 v20, 7, v0
            s_mul_i32 s{S_OFF}, s{S_CU}, {48*FS[0]}
            s_add_u32 s{S_OFF}, s{S_OFF}, {WS_PF if FS[0] == 8 else WS_PFX}
            s_mov_b64 exec, {"7" if FS[0] == 8 else "-1"}
            buffer_load_dword v24, v20, s[{SRD_WS}:{SRD_WS+3}], s{S_OFF} offen sc1
            s_lshl_b32 s{S_OFF}, s{S_CU}, 7
            s_add_u32 s{S_OFF}, s{S_OFF}, {WS_HF}
            s_mov_b64 exec, 1
            buffer_load_dword v25, v20, s[{SRD_WS}:{SRD_WS+3}], s{S_OFF} offen
            s_mov_b64 exec, -1
            """)
        for sg, tb in enumerate((o.t0b, o.t1b, o.t2b)):
            if o.ctouch and st == tb:
                e(f"""
                s_mul_i32 s{S_OFF}, s{S_CU}, 24576
                s_add_u32 s{S_OFF}, s{S_OFF}, {WS_H + sg*UNIT}
                buffer_load_dword v{21+sg}, v20, s[{SRD_WS}:{SRD_WS+3}], s{S_OFF} offen
                """)
        if st == o.fastb: e("s_waitcnt lgkmcnt(0)")
        if st == o.fastb - 1:
            e(f"""
            s_mov_b64 exec, 3
            s_mov_b32 s{S_CNT}, {SPIN_MAX}
            s_waitcnt vmcnt({(2 + (o.ctouch and o.fastb - 2 <= o.t0b <= o.fastb - 1)) if o.touch else 0})
            s_branch L_check_id
            L_poll_id:
            buffer_load_dwordx2 v[{V_TMP}:{V_TMP+1}], v{V_ID}, s[{SRD_WS}:{SRD_WS+3}], 0 offen sc1
            s_waitcnt vmcnt(0)
            L_check_id:
            v_subrev_co_u32 v4, vcc, s{S_TAG}, v{V_TMP}
            v_mov_b32 v6, s{S_TAG+1}
            s_nop 0
            v_subb_co_u32 v5, vcc, v{V_TMP+1}, v6, vcc
            v_subrev_u32 v4, 16, v4
            v_lshrrev_b32 v6, 4, v4
            v_or_b32 v6, v6, v5
            v_cmp_ne_u32 vcc, 0, v6
            s_sub_u32 s{S_CNT}, s{S_CNT}, 1
            s_cmp_eq_u32 s{S_CNT}, 0
            s_cbranch_scc1 L_id_done
            s_nop 1
            s_cbranch_vccz L_id_done
            s_sleep 1
            s_branch L_poll_id
            L_id_done:
            v_cmp_ne_u32 vcc, s{S_XCC}, v4
            s_mov_b32 s{S_FAST}, {0 if o.force_slow else 1}
            s_nop 1
            s_cmp_eq_u64 vcc, 0
            s_cselect_b32 s{S_FAST}, s{S_FAST}, 0
            s_mov_b64 exec, 1
            v_mov_b32 v4, s{S_FAST}
            v_mov_b32 v5, {FASTW}
            ds_write_b32 v5, v4
            s_mov_b64 exec, -1
            """)
        if o.sent and st == o.h0b - 1:
            e(f"""
            s_mul_i32 s3, s{S_MT}, 3
            s_add_u32 s3, s3, s{S_G}
            s_lshl_b32 s3, s3, 7
            s_add_u32 s3, s3, {WS_CF}
            v_mul_u32_u24 v37, {24*128}, v0
            v_add_u32 v37, s3, v37
            """)
        if st == o.h0b: _poll(e, o, "h0", V_POLL, 0, "0xfff", V_TAG, V_TMP)
        if o.sent and st == o.h0b:
            e(f"s_mov_b64 exec, 0xff\nbuffer_load_dwordx2 v[38:39], v37, s[{SRD_WS}:{SRD_WS+3}], 0 offen sc1\ns_mov_b64 exec, -1")
        if st == o.h1b: _poll(e, o, "h1", V_POLL, 32, "0xfff", V_TAG, V_TMP)
        if o.sent and st == o.h1b:
            e(f"""
            s_mov_b64 exec, 0xff
            v_cmp_ne_u64 vcc, v[38:39], v[{V_TAG}:{V_TAG+1}]
            s_nop 4
            s_mov_b64 exec, -1
            s_cbranch_vccz L_cf_ok
            """)
            _poll(e, o, "cf", 37, 0, "0xff", V_TAG, V_TMP)
            e("L_cf_ok:")
        if st == o.h2b: _poll(e, o, "h2", V_POLL, 64, "0xfff", V_TAG, V_TMP)
        e("s_barrier")
        if o.tlbw and o.tlbb and st == o.tlbb: tlb_warm()
        if o.wbl2 and st == o.wbl2:
            e(f"""
            s_or_b32 s3, s{S_MT}, s{S_G}
            s_cmp_lg_u32 s3, 0
            s_cbranch_scc1 L_nowb
            buffer_wbl2 sc1
            L_nowb:
            """)
        if st in slots: stamp(slots[st])
    if o.stamps:
        e(f"s_waitcnt lgkmcnt(0)")
        e(f"s_lshl_b32 s3, s{S_CU}, 9\ns_add_u32 s3, s3, {WS_ST}")
        e("s_mov_b64 exec, 1\nv_mov_b32 v1, 0")
        for k in range(0, 32, 4):
            for q in range(4): e(f"v_mov_b32 v{4+q}, s{S_STAMP+k+q}")
            e(f"buffer_store_dwordx4 v[4:7], v1, s[{SRD_WS}:{SRD_WS+3}], s3 offen offset:{k*4}\ns_nop 1")
        e(f"v_mov_b32 v4, s{S_FAST}\nbuffer_store_dword v4, v1, s[{SRD_WS}:{SRD_WS+3}], s3 offen offset:128")
        e("s_mov_b64 exec, -1")
    e("s_branch L_gather")

V_T1, V_T1B, V_T2, V_T2B = 2, 3, 4, 5
V_X = 6; V_X8 = 10
V_PF, V_PV = 6, 7
V_H, V_H8, V_FW, V_HG = 14, 15, 16, 17
V_HF = 1
V_TAG = 18
V_EP = 20
V_P = 24
V_WF = 32
V_ACC1 = 64
V_XF = 112
S_MH, S_NH, S_HST, S_NL2E = 48, 49, 50, 51
S_PO = 52
S_PFB = 54

class Stream:
    def __init__(self, e): self.e = e; self.nlds = 0; self.done = 0; self.count = 0; self.fast_ok = False; self.flags = set(); self.hold_silu = 0
    def emit(self, s):
        for l in s.split("\n"):
            l = l.strip()
            if l:
                self.e(l)
                if not l.endswith(":"): self.count += 1
    def lds(self, s):
        self.emit(s); self.nlds += 1; return self.nlds
    def wait_lds(self, opid):
        if opid <= self.done: return
        n = min(self.nlds - opid, 15)
        self.emit(f"s_waitcnt lgkmcnt({n})"); self.done = self.nlds - n

_uid = [0]
OUTLINE = []
NOST = [False, False, 0, False]
def dual(txt, force_sc1=False):
    if force_sc1: return txt + " sc1"
    _uid[0] += 1; k = _uid[0]
    OUTLINE.append(f"L_ds{k}:\n{txt} sc1\ns_branch L_dd{k}")
    nt = " nt" if (NOST[3] and "dwordx4" in txt) else ""
    return (f"s_cmp_eq_u32 s{S_FAST}, 0\ns_cbranch_scc1 L_ds{k}\n{txt}{nt}\nL_dd{k}:")

def silu_ops(acc, s, noep=False):
    ops = []
    for q in range(4):
        v = [acc + 4 * q + r for r in range(4)]
        t = [V_EP + r for r in range(4)]
        if not noep:
            for r in range(4): ops.append(("silu", f"v_mul_f32 v{t[r]}, s{S_NL2E}, v{v[r]}"))
            for r in range(4): ops.append(("v", f"v_exp_f32 v{t[r]}, v{t[r]}"))
            for r in range(4): ops.append(("v", f"v_add_f32 v{t[r]}, 1.0, v{t[r]}"))
            for r in range(4): ops.append(("v", f"v_rcp_f32 v{t[r]}, v{t[r]}"))
            for r in range(4): ops.append(("silu", f"v_mul_f32 v{v[r]}, v{v[r]}, v{t[r]}"))
        ops.append(("silu", f"v_cvt_pk_bf16_f32 v{V_P+2*q}, v{v[0]}, v{v[1]}"))
        ops.append(("silu", f"v_cvt_pk_bf16_f32 v{V_P+2*q+1}, v{v[2]}, v{v[3]}"))
    sts = [("st", "s_nop 0" if NOST[0] else dual(f"buffer_store_dwordx4 v[{V_P+4*tt}:{V_P+4*tt+3}], v{V_HG}, s[{SRD_WS}:{SRD_WS+3}], s{S_HST} offen offset:{tt*1024}", s < NOST[2])) for tt in range(2)]
    if s < NOST[2] or s == 2:
        k = [i for i, x in enumerate(ops) if x[1].startswith(f"v_cvt_pk_bf16_f32 v{V_P+3},")]
        if k: ops.insert(k[0] + 1, sts[0]); ops.append(sts[1])
        else: ops += sts
    else: ops += sts
    if s < 2: ops.append(("v", f"s_add_u32 s{S_HST}, s{S_HST}, {UNIT}"))
    return ops

def hflag_ops(s, n):
    return [("v", f"s_waitcnt vmcnt({n})\ns_mov_b64 exec, 1"),
            ("st", dual(f"buffer_store_dwordx2 v[{V_TAG}:{V_TAG+1}], v{V_HF}, s[{SRD_WS}:{SRD_WS+3}], 0 offen offset:{s*32}")),
            ("flag%d" % s, "s_mov_b64 exec, -1")]

def pflag(e, u, n):
    e(f"""
    s_mov_b32 s60, {u*16*FS[0]}
    s_waitcnt vmcnt({n})
    s_mov_b64 exec, 0xf
    buffer_store_dwordx2 v[{V_TAG}:{V_TAG+1}], v{V_PF}, s[{SRD_WS}:{SRD_WS+3}], s60 offen sc1
    s_mov_b64 exec, -1
    """)

def compute(e, o):
    e("L_compute:")
    if o.prio: e(f"s_setprio {o.prio}")
    common_ids(e)
    e(f"""
    s_lshr_b32 s{S_MH}, s{S_WAVE}, 1
    s_and_b32 s{S_NH}, s{S_WAVE}, 1
    s_mov_b32 s{S_NL2E}, 0xbfb8aa3b
    v_lshrrev_b32 v20, 5, v0
    v_lshrrev_b32 v21, 4, v0
    v_and_b32 v21, 1, v21
    v_and_b32 v22, 15, v0
    v_lshrrev_b32 v23, 2, v22
    v_and_b32 v22, 3, v22
    v_lshrrev_b32 v24, 1, v22
    v_lshl_add_u32 v24, v21, 1, v24
    s_lshl_b32 s{S_T0}, s{S_NH}, 2
    v_add_u32 v24, s{S_T0}, v24
    v_and_b32 v25, 2, v23
    v_lshlrev_b32 v25, 1, v25
    v_xor_b32 v24, v24, v25
    v_lshlrev_b32 v24, 4, v24
    v_and_b32 v22, 1, v22
    v_lshl_add_u32 v24, v22, 3, v24
    v_lshl_add_u32 v24, v23, 7, v24
    v_add_u32 v24, {RING}, v24
    v_lshl_add_u32 v{V_T1}, v20, 10, v24
    v_lshl_add_u32 v{V_T2}, v20, 9, v24
    v_add_u32 v{V_T1B}, {8*UNIT}, v{V_T1}
    v_add_u32 v{V_T2B}, {8*UNIT}, v{V_T2}
    v_and_b32 v25, 31, v0
    v_lshrrev_b32 v26, 1, v25
    v_and_b32 v26, 7, v26
    v_xor_b32 v26, v20, v26
    v_lshlrev_b32 v26, 4, v26
    s_lshl_b32 s{S_T1}, s{S_MH}, 12
    v_lshl_add_u32 v26, v25, 7, v26
    v_add_u32 v{V_X}, s{S_T1}, v26
    v_xor_b32 v{V_X+1}, 32, v{V_X}
    v_xor_b32 v{V_X+2}, 64, v{V_X}
    v_xor_b32 v{V_X+3}, 96, v{V_X}
    """)
    for ks in range(4): e(f"v_add_u32 v{V_X8+ks}, {8*UNIT}, v{V_X+ks}")
    e(f"""
    v_lshlrev_b32 v27, 4, v0
    v_add_u32 v{V_H}, s{S_T1}, v27
    v_add_u32 v{V_H8}, {8*UNIT}, v{V_H}
    s_lshl_b32 s{S_T0}, s{S_NH}, 11
    v_add_u32 v{V_HG}, s{S_T0}, v{V_H}
    s_mul_i32 s{S_HST}, s{S_CU}, 24576
    s_add_u32 s{S_HST}, s{S_HST}, {WS_H}
    s_lshl_b32 s{S_T0}, s{S_CU}, 7
    s_lshl_b32 s{S_T1}, s{S_WAVE}, 3
    s_add_u32 s{S_T0}, s{S_T0}, s{S_T1}
    s_add_u32 s{S_T0}, s{S_T0}, {WS_HF}
    v_mov_b32 v{V_HF}, s{S_T0}
    s_mul_i32 s{S_T0}, s{S_MT}, 3
    s_add_u32 s{S_T0}, s{S_T0}, s{S_G}
    s_lshl_b32 s{S_T1}, s{S_MH}, 2
    s_mul_i32 s{S_T1}, s{S_T1}, 24
    s_add_u32 s{S_T0}, s{S_T0}, s{S_T1}
    s_mul_i32 s{S_PO}, s{S_T0}, 24576
    s_mul_i32 s{S_T1}, s{S_J}, 3072
    s_add_u32 s{S_PO}, s{S_PO}, s{S_T1}
    s_lshl_b32 s{S_T1}, s{S_NH}, 9
    s_add_u32 s{S_PO}, s{S_PO}, s{S_T1}
    s_add_u32 s{S_PO}, s{S_PO}, {WS_P}
    s_add_u32 s{S_PO+1}, s{S_PO}, {2*24*24576}
    s_mul_i32 s{S_T0}, s{S_T0}, {48*FS[0]}
    s_lshl_b32 s{S_T1}, s{S_J}, 1
    s_add_u32 s{S_T1}, s{S_T1}, s{S_NH}
    s_mul_i32 s{S_T1}, s{S_T1}, {FS[0]}
    s_add_u32 s{S_T0}, s{S_T0}, s{S_T1}
    s_add_u32 s{S_PFB}, s{S_T0}, {WS_PF if FS[0] == 8 else WS_PFX}
    v_mov_b32 v{V_FW}, {FASTW}
    s_waitcnt lgkmcnt(0)
    """)
    load_epoch(e)
    finish_tag(e)
    e(f"v_mov_b32 v{V_TAG}, s{S_TAG}\nv_mov_b32 v{V_TAG+1}, s{S_TAG+1}")
    if not o.latew: e("s_waitcnt vmcnt(0)")

    tasks = []
    def ringbase(n, vA, vB):
        slot = n % R
        return (vA, slot * UNIT) if slot < 8 else (vB, (slot - 8) * UNIT)
    for n in range(27):
        st = n // 3; s = n // 9; i = n % 9
        base, so = ringbase(n, V_T1, V_T1B)
        for ks in range(4):
            t = dict(step=st, first=(n % 3 == 0 and ks == 0), idx=len(tasks))
            t["wr"] = [(base, so + (16 * ks + 4 * b) * 128) for b in range(2)]
            xf = V_XF + (i * 4 + ks) * 4
            t["pre"] = []
            if s == 0:
                xb = (V_X8 + ks) if i == 8 else (V_X + ks)
                t["pre"] = [f"ds_read_b128 v[{xf}:{xf+3}], v{xb} offset:{0 if i == 8 else i*UNIT}"]
            acc = V_ACC1 + 16 * (s & 1)
            t["mf"] = lambda wf, acc=acc, xf=xf, z=(i == 0 and ks == 0): f"v_mfma_f32_32x32x16_bf16 v[{acc}:{acc+15}], v[{wf}:{wf+3}], v[{xf}:{xf+3}], " + ("0" if z else f"v[{acc}:{acc+15}]")
            tasks.append(t)
    seen_p, seen_u, last_u = set(), set(), {}
    ACCU = {0: V_ACC1 + 16, 1: V_ACC1 + 32, 2: V_ACC1}
    for q, (p, u) in enumerate(P2):
        n = 27 + q; st = n // 3
        base, so = ringbase(n, V_T2, V_T2B)
        for ks in range(4):
            t = dict(step=st, first=(n % 3 == 0 and ks == 0), idx=len(tasks))
            t["wr"] = [(base, so + (16 * ks + 8 * b) * 128) for b in range(2)]
            hf = V_XF + (p * 4 + ks) * 4
            t["pre"] = []
            if p not in seen_p:
                hb = V_H8 if p == 8 else V_H
                t["pre"] = [f"ds_read_b128 v[{hf}:{hf+3}], v{hb} offset:{(0 if p == 8 else p*UNIT) + ks*1024}"]
            acc = ACCU[u]
            t["mf"] = lambda wf, acc=acc, hf=hf, z=(u not in seen_u and ks == 0): f"v_mfma_f32_32x32x16_bf16 v[{acc}:{acc+15}], v[{hf}:{hf+3}], v[{wf}:{wf+3}], " + ("0" if z else f"v[{acc}:{acc+15}]")
            tasks.append(t); last_u[u] = t["idx"]
        seen_p.add(p); seen_u.add(u)
    global PUBACC
    n = len(tasks)
    S = Stream(e)
    NP = n // 2
    side = []; side_start = [0]; hold = [0]; cur = [0]
    last_of_step = {}
    for t in tasks: last_of_step[t["step"]] = t["idx"]
    def pubops(u):
        ops = []
        a = ACCU[u]
        for q in range(8): ops.append(("v", f"v_cvt_pk_bf16_f32 v{V_P+q}, v{a+2*q}, v{a+2*q+1}"))
        ops.append(("v", "s_nop 0"))
        for q in range(2):
            d = V_P + 4 * q
            ops.append(("v", f"v_permlane32_swap_b32 v{d}, v{d+2}"))
            ops.append(("v", f"v_permlane32_swap_b32 v{d+1}, v{d+3}"))
        if not o.x_nopub:
            for q in range(2):
                d = V_P + 4 * q
                ops.append(("st", f"buffer_store_dwordx4 v[{d}:{d+3}], v{V_PV}, s[{SRD_WS}:{SRD_WS+3}], s{S_PO+q} offen offset:{u*1024} sc1"))
            ops.append(("v", "s_nop 0"))
        return ops
    def cost(kind, txt):
        if kind == "lds": return 24
        if kind == "st": return 16
        if txt.startswith(("v_exp", "v_rcp")): return 8
        if txt.startswith("s_") and not txt.startswith(("s_waitcnt", "s_nop")): return 2
        return 4
    def pop_side(budget):
        used = 0
        while side and S.count >= side_start[0] and cur[0] >= hold[0]:
            kind, txt = side[0]
            if kind == "gap": side.pop(0); hold[0] = cur[0] + txt; continue
            if kind == "st" and "L_ds" in txt and not S.fast_ok: break
            if kind == "silu" and S.count < S.hold_silu: break
            c = cost(kind, txt)
            if used and used + c > budget: break
            side.pop(0)
            if kind == "lds": S.lds(txt)
            else: S.emit(txt)
            if kind.startswith("flag"): S.flags.add(int(kind[4:]))
            used += c
    NR = o.LP + 1
    def tr_reads(q):
        for h in range(2):
            t = tasks[2*q + h]
            wf = V_WF + 8 * (q % NR) + 4 * h
            t["wf"] = wf
            for b, (base, off) in enumerate(t["wr"]):
                t["last"] = S.lds(f"ds_read_b64_tr_b16 v[{wf+2*b}:{wf+2*b+1}], v{base} offset:{off}")
    def pre_reads(q):
        k = 0
        for h in range(2):
            t = tasks[2*q + h]
            for x in t["pre"]:
                t["last"] = S.lds(x); k += 1
        return k
    def barrier(step):
        for fs, fb in ((0, o.h0b), (1, o.h1b), (2, o.h2b)):
            if step == fb: assert fs in S.flags, f"flag {fs} must be sent before B_{fb} (the control wave waits for it there)"
        if o.astamp and o.astamp <= step < o.astamp + 6: S.emit(f"s_memtime s[{S_STAMP+16+2*(step-o.astamp)}:{S_STAMP+17+2*(step-o.astamp)}]")
        S.emit("s_waitcnt lgkmcnt(0)"); S.done = S.nlds
        S.emit("s_barrier")
    late_addr = [("v", f"v_and_b32 v{V_PV}, 31, v0"), ("v", f"v_lshrrev_b32 v{V_PF}, 5, v0"), ("v", f"v_lshlrev_b32 v{V_PV}, 4, v{V_PV}"),
                 ("v", f"v_mul_u32_u24 v{V_PF}, {24*24576}, v{V_PF}"), ("v", f"v_add_u32 v{V_PV}, v{V_PV}, v{V_PF}"),
                 ("v", f"v_mul_u32_u24 v{V_PF}, {24*48*FS[0]}, v0"), ("v", f"v_add_u32 v{V_PF}, s{S_PFB}, v{V_PF}")]
    budget = o.epb
    pubq = []
    fast_known = False
    barrier(0)
    for q0 in range(o.LP):
        tr_reads(q0); pre_reads(q0)
    for q in range(NP):
        cur[0] = q
        A, B = tasks[2*q], tasks[2*q+1]
        nq = q + o.LP
        deferred = False
        f9 = 6 * 9
        if o.ep2first and q == f9:
            S.emit("s_nop 7\ns_nop 3")
            side_start[0] = 0; S.hold_silu = 0
            pop_side(10**6)
            barrier(9)
            for q0 in range(f9, f9 + o.LP): tr_reads(q0); pre_reads(q0)
        if nq < NP and not (o.ep2first and f9 <= nq < f9 + o.LP):
            if tasks[2*nq]["first"]:
                barrier(tasks[2*nq]["step"]); deferred = True
            else:
                tr_reads(nq)
        skip_pre = o.ep2first and f9 <= nq < f9 + o.LP
        if A["first"] and A["step"] == 11:
            assert not any(x[0] == "silu" for x in side), "acc of sub-tile 2 still in use"
        S.wait_lds(max(A["last"], B["last"]))
        S.emit(A["mf"](A["wf"]))
        if deferred:
            if tasks[2*nq]["step"] == o.fastb: S.lds(f"ds_read_b32 v{V_FW}, v{V_FW}")
            tr_reads(nq); pre_reads(nq)
        else:
            k = pre_reads(nq) if (nq < NP and not skip_pre) else 0
            if not (o.ep2first and q >= f9 - 0 and side and side[0][0] == 'silu' and False): pop_side(budget if k == 0 else max(budget - 24, 4))
            if o.wgap2 and q + 1 < NP and k == 0 and "last" in tasks[2*q+2] and "last" in tasks[2*q+3]:
                S.wait_lds(max(tasks[2*q+2]["last"], tasks[2*q+3]["last"]))
        S.emit(B["mf"](B["wf"]))
        if A["first"] and A["step"] == o.fastb:
            S.emit(f"v_readfirstlane_b32 s{S_FAST}, v{V_FW}"); S.fast_ok = True
        im = B["idx"]
        if im == last_of_step.get(2):
            if o.latew: side.append(("v", "s_waitcnt vmcnt(0)"))
            side += silu_ops(V_ACC1, 0, o.x_noep) + [("gap", o.gap0)] + hflag_ops(0, 0); side_start[0] = S.count + 12; budget = o.epb0
        if im == last_of_step.get(5):
            assert not any(x[0] == "silu" or x[0] == "st" and "x4" in x[1] for x in side), len(side)
            side += silu_ops(V_ACC1 + 16, 1, o.x_noep); budget = o.epb
            S.hold_silu = S.count + 12
        if im == last_of_step.get(8):
            assert not side, len(side)
            ops2 = silu_ops(V_ACC1, 2, o.x_noep)
            k1 = min(o.f1pos, len(ops2) - 2)
            ops2 = ops2[:k1] + hflag_ops(1, 0) + ops2[k1:]
            side += ops2 + late_addr + [("gap", o.gap2)] + hflag_ops(2, 0); side_start[0] = S.count + 12; budget = o.epb2
        for u, at in ((0, o.pub0), (1, o.pub1)):
            if at and q >= NP - at and im >= last_u[u] + 4 and u not in pubq and not side:
                pubq.append(u); side += pubops(u); side_start[0] = S.count; budget = 24
    assert not side
    if o.x_pad:
        e(f"s_mov_b32 s60, {o.x_pad}\nL_xpad:\nv_mov_b32 v20, v21\nv_mov_b32 v22, v21\nv_mov_b32 v20, v21\nv_mov_b32 v22, v21\ns_sub_u32 s60, s60, 1\ns_cmp_lg_u32 s60, 0\ns_cbranch_scc1 L_xpad")
    e("s_nop 7")
    if o.stamps: e(f"s_memtime s[{S_STAMP+4}:{S_STAMP+5}]")
    e("s_nop 3")
    rest = [u for u in (0, 1, 2) if u not in pubq]
    order = pubq + rest
    for u in rest:
        for k, x in pubops(u): e(x)
    for i, u in enumerate(order):
        younger = 2 * (len(order) - 1 - i) + i
        if o.x_nopub: younger = i
        if o.stamps and i == 2: e(f"s_memtime s[{S_STAMP+14}:{S_STAMP+15}]")
        if o.sent and u == 2: continue
        pflag(e, u, younger)
    if o.stamps:
        e(f"s_memtime s[{S_STAMP+6}:{S_STAMP+7}]")
        e(f"s_cmp_lg_u32 s{S_WAVE}, 0\ns_cbranch_scc1 L_end\ns_waitcnt lgkmcnt(0)")
        e(f"s_lshl_b32 s3, s{S_CU}, 9\ns_add_u32 s3, s3, {WS_ST + 256}\ns_mov_b64 exec, 1\nv_mov_b32 v1, 0")
        for k in range(0, 16, 4):
            for q in range(4): e(f"v_mov_b32 v{4+q}, s{S_STAMP+k+q}")
            e(f"buffer_store_dwordx4 v[4:7], v1, s[{SRD_WS}:{SRD_WS+3}], s3 offen offset:{k*4}\ns_nop 1")
        if o.astamp:
            e(f"s_lshl_b32 s3, s{S_CU}, 9\ns_add_u32 s3, s3, {WS_ST + 192*512}")
            for k, r0 in enumerate((S_STAMP, S_STAMP+16, S_STAMP+20, S_STAMP+24)):
                for q in range(4): e(f"v_mov_b32 v{4+q}, s{r0+q}")
                e(f"buffer_store_dwordx4 v[4:7], v1, s[{SRD_WS}:{SRD_WS+3}], s3 offen offset:{k*16}\ns_nop 1")
        e("s_waitcnt vmcnt(0)")
    if o.gsplit:
        e(f"s_cmp_lt_u32 s{S_WAVE}, 3\ns_cbranch_scc1 L_gather")
    e("s_endpgm")

def gather(e, o):
    VT, VA, VL, VD, VS = 2, 4, 5, 8, 44
    S_U = 48
    e("L_gather:")
    e(f"""
    s_cmp_eq_u32 s{S_WAVE}, 7
    s_cbranch_scc1 L_end
    s_and_b32 s{S_U}, s{S_WAVE}, 3
    s_cmp_lt_u32 s{S_WAVE}, 4
    s_cselect_b32 s57, 1, 0
    s_mul_i32 s3, s{S_CU}, {48*FS[0]}
    s_min_u32 s50, s{S_U}, {1 if o.sent else 2}
    s_mul_i32 s50, s50, {16*FS[0]}
    s_add_u32 s3, s3, s50
    s_add_u32 s3, s3, {WS_PF if FS[0] == 8 else WS_PFX}
    v_mul_u32_u24 v{VA}, {FS[0]}, v0
    v_add_u32 v{VA}, s3, v{VA}
    v_lshlrev_b32 v{VL}, 4, v0
    v_mov_b32 v{VT}, s{S_TAG}
    v_mov_b32 v{VT+1}, s{S_TAG+1}
    s_mul_i32 s52, s{S_CU}, 24576
    s_lshl_b32 s53, s{S_U}, 10
    s_add_u32 s52, s52, s53
    s_add_u32 s52, s52, {WS_P}
    v_lshlrev_b32 v6, 1, v0
    s_lshl_b32 s50, s{S_MT}, 6
    s_lshl_b32 s51, s{S_J}, 3
    s_add_u32 s50, s50, s51
    s_mul_i32 s50, s50, 1152
    s_mul_i32 s51, s{S_G}, 384
    s_add_u32 s50, s50, s51
    s_lshl_b32 s51, s{S_U}, 7
    s_add_u32 s50, s50, s51
    s_add_u32 s53, s50, 4608
    s_mov_b32 s54, 0xffff0000
    """)
    if o.ppipe:
        e(f"""
        s_mov_b64 exec, 0xffff
        s_mov_b32 s{S_CNT}, {SPIN_MAX}
        buffer_load_dwordx2 v[40:41], v{VA}, s[{SRD_WS}:{SRD_WS+3}], 0 offen sc1
        L_pp:
        s_sleep {o.ppipe}
        buffer_load_dwordx2 v[42:43], v{VA}, s[{SRD_WS}:{SRD_WS+3}], 0 offen sc1
        s_waitcnt vmcnt(1)
        v_cmp_ne_u64 vcc, v[40:41], v[{VT}:{VT+1}]
        s_sub_u32 s{S_CNT}, s{S_CNT}, 1
        s_cmp_eq_u32 s{S_CNT}, 0
        s_cbranch_scc1 L_ppdone
        s_nop 1
        s_cbranch_vccz L_ppdone
        s_sleep {o.ppipe}
        buffer_load_dwordx2 v[40:41], v{VA}, s[{SRD_WS}:{SRD_WS+3}], 0 offen sc1
        s_waitcnt vmcnt(1)
        v_cmp_ne_u64 vcc, v[42:43], v[{VT}:{VT+1}]
        s_nop 4
        s_cbranch_vccnz L_pp
        L_ppdone:
        s_mov_b64 exec, -1
        """)
    else:
        _poll(e, o, "p", VA, 0, "0xffff", VT, 40, o.psleep)
    if o.stamps: e(f"s_memtime s[{S_STAMP+8}:{S_STAMP+9}]")
    if o.sent:
        e(f"s_cmp_eq_u32 s{S_U}, 2\ns_cbranch_scc1 L_gsent")
    if o.gsplit:
        e(f"s_lshl_b32 s56, s57, 3\ns_add_u32 s52, s52, s56\ns_mul_i32 s56, s57, 4608\ns_add_u32 s50, s50, s56")
    for p in range(8):
        if o.gsplit: e(f"buffer_load_dwordx2 v[{VD+4*p}:{VD+4*p+1}], v{VL}, s[{SRD_WS}:{SRD_WS+3}], s52 offen sc1")
        else: e(f"buffer_load_dwordx4 v[{VD+4*p}:{VD+4*p+3}], v{VL}, s[{SRD_WS}:{SRD_WS+3}], s52 offen sc1")
        if p < 7: e(f"s_add_u32 s52, s52, 3072")
    if o.sent:
        e(f"""
        s_branch L_gloaded
        L_gsent:
        s_mov_b32 s{S_CNT}, {SPIN_MAX}
        s_mov_b32 s55, {SENT:#x}
        L_gretry:
        s_mov_b32 s56, s52
        """)
        for p in range(8):
            e(f"buffer_load_dwordx4 v[{VD+4*p}:{VD+4*p+3}], v{VL}, s[{SRD_WS}:{SRD_WS+3}], s56 offen sc1")
            if p < 7: e(f"s_add_u32 s56, s56, 3072")
        e("s_mov_b64 s[58:59], 0")
        for p in range(8):
            e(f"s_waitcnt vmcnt({7-p})")
            e(f"v_cmp_eq_u32 vcc, s55, v{VD+4*p}\nv_cmp_eq_u32 s[60:61], s55, v{VD+4*p+3}")
            e(f"s_nop 0\ns_or_b64 s[58:59], s[58:59], vcc\ns_or_b64 s[58:59], s[58:59], s[60:61]")
        e(f"""
        s_sub_u32 s{S_CNT}, s{S_CNT}, 1
        s_cmp_eq_u32 s{S_CNT}, 0
        s_cbranch_scc1 L_gloaded
        s_cmp_eq_u64 s[58:59], 0
        s_cbranch_scc1 L_gloaded
        s_sleep {o.gsleep}
        s_branch L_gretry
        L_gloaded:
        """)
    e(f"""
    s_or_b32 s51, s{S_J}, s{S_G}
    s_or_b32 s51, s51, s{S_U}
    s_or_b32 s51, s51, s57
    s_cmp_lg_u32 s51, 0
    s_cbranch_scc1 L_noepoch
    s_lshl_b32 s51, s{S_MT}, 7
    v_mov_b32 v{VA}, s51
    s_mov_b64 exec, 1
    buffer_store_dwordx2 v[{VT}:{VT+1}], v{VA}, s[{SRD_WS}:{SRD_WS+3}], 0 offen sc1
    s_mov_b64 exec, -1
    s_waitcnt vmcnt(0)
    L_noepoch:
    """)
    ND = 2 if o.gsplit else 4
    for p in range(8):
        e(f"s_waitcnt vmcnt({7-p})")
        for d in range(ND):
            src = VD + 4 * p + d
            if p == 0:
                e(f"v_lshlrev_b32 v{VS+2*d}, 16, v{src}\nv_and_b32 v{VS+2*d+1}, s54, v{src}")
            else:
                e(f"v_lshlrev_b32 v{VS+8}, 16, v{src}\nv_and_b32 v{VS+9}, s54, v{src}")
                e(f"v_add_f32 v{VS+2*d}, v{VS+2*d}, v{VS+8}\nv_add_f32 v{VS+2*d+1}, v{VS+2*d+1}, v{VS+9}")
    for d in range(ND):
        e(f"v_cvt_pk_bf16_f32 v{VD+d}, v{VS+2*d}, v{VS+2*d+1}")
    if o.outx4:
        e(f"""
        s_lshl_b32 s51, s{S_U}, 10
        v_add_u32 v7, s51, v6
        v_lshl_add_u32 v{VA}, v0, 4, s51
        v_lshrrev_b32 v{VS+8}, 3, v0
        v_mul_u32_u24 v{VS+8}, 1152, v{VS+8}
        v_and_b32 v{VS+9}, 7, v0
        v_lshl_add_u32 v{VS+8}, v{VS+9}, 4, v{VS+8}
        """)
        for d in range(4):
            e(f"ds_write_b16 v7, v{VD+d} offset:{2*d*128}\nds_write_b16_d16_hi v7, v{VD+d} offset:{(2*d+1)*128}")
        e(f"""
        s_waitcnt lgkmcnt(0)
        ds_read_b128 v[{VD+4}:{VD+7}], v{VA}
        s_waitcnt lgkmcnt(0)
        buffer_store_dwordx4 v[{VD+4}:{VD+7}], v{VS+8}, s[{SRD_OUT}:{SRD_OUT+3}], s50 offen {"sc1" if o.outx4 == 2 else ""}
        """)
    else:
      for d in range(ND):
        so = "s50" if d < 2 else "s53"
        e(f"buffer_store_short v{VD+d}, v6, s[{SRD_OUT}:{SRD_OUT+3}], {so} offen offset:{(2*d % 4)*1152}")
        e(f"buffer_store_short_d16_hi v{VD+d}, v6, s[{SRD_OUT}:{SRD_OUT+3}], {so} offen offset:{((2*d+1) % 4)*1152}")
    if o.span:
        e(f"""
        s_waitcnt vmcnt(0)
        s_memrealtime s[{S_STAMP+2}:{S_STAMP+3}]
        s_waitcnt lgkmcnt(0)
        s_lshl_b32 s3, s{S_CU}, 6
        s_lshl_b32 s51, s{S_U}, 4
        s_add_u32 s3, s3, s51
        s_add_u32 s3, s3, {WS_ST}
        s_cmp_eq_u32 s57, 1
        s_cselect_b32 s3, {WS_ST + 192*64}, s3
        s_mov_b64 exec, 1
        v_mov_b32 v1, 0
        v_mov_b32 v4, s{S_STAMP}
        v_mov_b32 v5, s{S_STAMP+1}
        v_mov_b32 v6, s{S_STAMP+2}
        v_mov_b32 v7, s{S_STAMP+3}
        buffer_store_dwordx4 v[4:7], v1, s[{SRD_WS}:{SRD_WS+3}], s3 offen sc1
        """)
    if o.stamps:
        e(f"""
        s_cmp_lg_u32 s{S_WAVE}, 6
        s_cbranch_scc1 L_end
        s_waitcnt vmcnt(0)
        s_memtime s[{S_STAMP+10}:{S_STAMP+11}]
        s_memrealtime s[{S_STAMP+12}:{S_STAMP+13}]
        s_waitcnt lgkmcnt(0)
        s_lshl_b32 s3, s{S_CU}, 9
        s_add_u32 s3, s3, {WS_ST + 384}
        s_mov_b64 exec, 1
        v_mov_b32 v1, 0
        """)
        for k in range(0, 16, 4):
            for q in range(4): e(f"v_mov_b32 v{4+q}, s{S_STAMP+k+q}")
            e(f"buffer_store_dwordx4 v[4:7], v1, s[{SRD_WS}:{SRD_WS+3}], s3 offen offset:{k*4}\ns_nop 1")
        e("s_waitcnt vmcnt(0)")
    e("s_endpgm")

def prefetch2(e, o):
    e("L_prefetch:")
    e(f"""
    s_sub_u32 s52, s3, 24
    s_cmp_ge_u32 s{S_WAVE}, 4
    s_cbranch_scc1 L_pf_h
    v_min_u32 v1, 215, v0
    s_mov_b32 s{S_T0}, 21846
    v_mul_u32_u24 v2, s{S_T0}, v1
    v_lshrrev_b32 v2, 16, v2
    v_mul_u32_u24 v3, 3, v2
    v_sub_u32 v3, v1, v3
    v_mul_u32_u24 v4, 9216, v2
    v_mul_u32_u24 v3, 384, v3
    v_add_u32 v4, v4, v3
    s_mul_i32 s53, s52, {72*9216}
    s_mul_i32 s{S_T1}, s{S_J}, 1152
    s_add_u32 s53, s53, s{S_T1}
    s_add_u32 s53, s53, 128
    s_mov_b32 s{S_T0}, 7282
    v_mul_u32_u24 v5, s{S_T0}, v1
    v_lshrrev_b32 v5, 16, v5
    v_mul_u32_u24 v6, 9, v5
    v_sub_u32 v6, v1, v6
    s_mul_i32 s54, s52, 24
    v_add_u32 v5, s54, v5
    v_lshrrev_b32 v7, 6, v5
    v_and_b32 v5, 63, v5
    v_mul_u32_u24 v7, 192, v7
    v_add_u32 v5, v5, v7
    v_mul_u32_u24 v5, 1152, v5
    v_lshl_add_u32 v5, v6, 7, v5
    s_mul_i32 s55, s{S_J}, {576*1152}
    s_waitcnt lgkmcnt(0)
    """)
    srd(e, SRD_B, S_W1, 576*4608*2)
    srd(e, SRD_C, S_W2, 576*4608*2)
    for k in range(o.pfdelay):
        if o.probe1: e(f"s_sub_u32 s56, s53, 128\nv_and_b32 v9, 7, v1\nv_mul_u32_u24 v9, 9216, v9\nbuffer_load_dword v8, v9, s[{SRD_B}:{SRD_B+3}], s56 offen\ns_waitcnt vmcnt(0)")
        elif k == 0: e(f"s_sub_u32 s56, s53, 128\nbuffer_load_dword v8, v4, s[{SRD_B}:{SRD_B+3}], s56 offen\ns_waitcnt vmcnt(0)")
        else:
            srd(e, SRD_A, S_X, 512*576*2)
            e(f"s_mul_i32 s56, s52, {576*128}\ns_add_u32 s56, s56, {(k-1)*216*128}\nv_lshlrev_b32 v9, 7, v1\nbuffer_load_dword v8, v9, s[{SRD_A}:{SRD_A+3}], s56 offen\ns_waitcnt vmcnt(0)")
    e(f"""
    buffer_load_dword v8, v4, s[{SRD_B}:{SRD_B+3}], s53 offen
    s_waitcnt vmcnt(0)
    s_add_u32 s53, s53, 128
    buffer_load_dword v8, v4, s[{SRD_B}:{SRD_B+3}], s53 offen
    s_waitcnt vmcnt(0)
    buffer_load_dword v8, v5, s[{SRD_C}:{SRD_C+3}], s55 offen
    s_waitcnt vmcnt(0)
    s_add_u32 s55, s55, {64*1152}
    buffer_load_dword v8, v5, s[{SRD_C}:{SRD_C+3}], s55 offen
    s_waitcnt vmcnt(0)
    s_add_u32 s55, s55, {64*1152}
    buffer_load_dword v8, v5, s[{SRD_C}:{SRD_C+3}], s55 offen
    s_waitcnt vmcnt(0)
    s_endpgm
    L_pf_h:
    v_subrev_u32 v1, 256, v0
    v_min_u32 v1, 191, v1
    v_lshrrev_b32 v2, 6, v1
    v_and_b32 v3, 63, v1
    v_mul_u32_u24 v2, 24576, v2
    v_lshl_add_u32 v2, v3, 7, v2
    s_mul_i32 s53, s{S_J}, {24*24576}
    s_mul_i32 s54, s52, {3*24576}
    s_add_u32 s53, s53, s54
    s_add_u32 s53, s53, {WS_H}
    v_and_b32 v4, {7 if o.probe1 else 63}, v3
    v_mul_u32_u24 v4, 9216, v4
    s_mul_i32 s54, s52, {72*9216}
    s_mul_i32 s55, s{S_J}, 1152
    s_add_u32 s54, s54, s55
    s_waitcnt lgkmcnt(0)
    """)
    srd(e, SRD_B, S_W1, 576*4608*2)
    srd(e, SRD_WS, S_WS, WS_SIZE)
    if not o.ptouch:
        e("s_endpgm")
        return
    for k in range(o.hdelay):
        e(f"buffer_load_dword v8, v4, s[{SRD_B}:{SRD_B+3}], s54 offen\ns_waitcnt vmcnt(0)\ns_add_u32 s54, s54, 384")
    for st in range(3):
        e(f"buffer_load_dword v8, v2, s[{SRD_WS}:{SRD_WS+3}], s53 offen\ns_waitcnt vmcnt(0)")
        if st < 2: e(f"s_add_u32 s53, s53, {UNIT}")
    e("s_endpgm")

def prefetch(e, o):
    if o.pfv == 2: return prefetch2(e, o)
    e("L_prefetch:")
    e(f"""
    s_sub_u32 s3, s3, 24
    s_mov_b32 s52, s3
    s_mov_b32 s{S_T0}, 10923
    v_mul_u32_u24 v1, s{S_T0}, v0
    v_lshrrev_b32 v1, 16, v1
    v_mul_u32_u24 v2, 6, v1
    v_sub_u32 v2, v0, v2
    v_lshrrev_b32 v3, 1, v2
    v_and_b32 v2, 1, v2
    v_mul_u32_u24 v3, 384, v3
    v_lshl_add_u32 v3, v2, 7, v3
    v_mul_u32_u24 v1, 9216, v1
    v_add_u32 v1, v1, v3
    s_mul_i32 s{S_T0}, s3, {72*9216}
    s_mul_i32 s{S_T1}, s{S_J}, 1152
    s_add_u32 s{S_T0}, s{S_T0}, s{S_T1}
    s_add_u32 s{S_T0}, s{S_T0}, 128
    s_mul_i32 s{S_T1}, s{S_J}, {576*1152}
    s_mul_i32 s3, s3, {72*1152}
    s_add_u32 s{S_T1}, s{S_T1}, s3
    v_lshlrev_b32 v4, 7, v0
    v_add_u32 v5, 65536, v4
    v_min_u32 v5, {647*128}, v5
    v_cmp_gt_u32 vcc, 432, v0
    s_waitcnt lgkmcnt(0)
    """)
    srd(e, SRD_B, S_W1, 576*4608*2)
    srd(e, SRD_C, S_W2, 576*4608*2)
    e(f"""
    v_mov_b32 v6, 0
    v_cndmask_b32 v1, v6, v1, vcc
    """)
    if o.sent and o.clrpos == 0:
        srd(e, SRD_WS, S_WS, WS_SIZE)
        clear_inboxes(e, o)
    if o.pfdelay:
        e(f"""
        v_min_u32 v15, {o.pfdelay * 8 - 1}, v0
        v_mul_u32_u24 v15, 9216, v15
        s_sub_u32 s53, s{S_T0}, 128
        buffer_load_dword v16, v15, s[{SRD_B}:{SRD_B+3}], s53 offen
        s_waitcnt vmcnt(0)
        """)
    if o.pfsplit:
        e(f"""
        v_cmp_eq_u32 vcc, 0, v2
        s_nop 1
        s_and_saveexec_b64 s[54:55], vcc
        buffer_load_dword v8, v1, s[{SRD_B}:{SRD_B+3}], s{S_T0} offen
        s_waitcnt vmcnt(0)
        s_andn2_b64 exec, s[54:55], exec
        buffer_load_dword v8, v1, s[{SRD_B}:{SRD_B+3}], s{S_T0} offen
        s_mov_b64 exec, s[54:55]
        """)
    else:
        e(f"buffer_load_dword v8, v1, s[{SRD_B}:{SRD_B+3}], s{S_T0} offen")
    if o.ptouch:
        srd(e, SRD_WS, S_WS, WS_SIZE)
        e(f"""
        s_mul_i32 s50, s{S_J}, {24*24576}
        s_mul_i32 s51, s52, {576*128}
        s_add_u32 s50, s50, s51
        s_add_u32 s50, s50, {WS_H}
        v_min_u32 v11, 63, v0
        v_lshlrev_b32 v11, 7, v11
        v_add_u32 v11, 65536, v11
        """)
    if o.ptouch == 3:
        e(f"""
        v_lshrrev_b32 v12, 6, v0
        v_min_u32 v12, 2, v12
        v_mul_u32_u24 v12, 24576, v12
        v_and_b32 v13, 63, v0
        v_lshl_add_u32 v14, v13, 7, v12
        v_add_u32 v14, 16384, v14
        """)
    e("s_waitcnt vmcnt(0)")
    if o.ptouch == 2:
        e(f"buffer_load_dword v12, v4, s[{SRD_WS}:{SRD_WS+3}], s50 offen\nbuffer_load_dword v13, v11, s[{SRD_WS}:{SRD_WS+3}], s50 offen")
    e(f"""
    buffer_load_dword v9, v4, s[{SRD_C}:{SRD_C+3}], s{S_T1} offen
    buffer_load_dword v10, v5, s[{SRD_C}:{SRD_C+3}], s{S_T1} offen
    s_waitcnt vmcnt(0)
    """)
    if o.ptouch == 3:
        e(f"buffer_load_dword v12, v14, s[{SRD_WS}:{SRD_WS+3}], s50 offen\ns_waitcnt vmcnt(0)")
    if o.ptouch == 1:
        e(f"buffer_load_dword v12, v4, s[{SRD_WS}:{SRD_WS+3}], s50 offen\nbuffer_load_dword v13, v11, s[{SRD_WS}:{SRD_WS+3}], s50 offen\ns_waitcnt vmcnt(0)")
    if o.sent and o.clrpos == 1: clear_inboxes(e, o)
    e("s_endpgm")

def clear_inboxes(e, o):
    e(f"""
    s_lshl_b32 s3, s52, 7
    s_load_dwordx2 s[{S_TAG}:{S_TAG+1}], s[{S_WS}:{S_WS+1}], s3
    s_mul_i32 s56, s{S_J}, 24
    s_mul_i32 s57, s52, 3
    s_add_u32 s56, s56, s57
    v_lshrrev_b32 v20, 6, v0
    v_and_b32 v21, 63, v0
    v_mul_u32_u24 v20, 3072, v20
    v_lshl_add_u32 v20, v21, 4, v20
    s_mul_i32 s57, s56, 24576
    s_add_u32 s57, s57, {WS_P + 2048}
    v_mov_b32 v24, {SENT:#x}
    v_mov_b32 v25, {SENT:#x}
    v_mov_b32 v26, {SENT:#x}
    v_mov_b32 v27, {SENT:#x}
    buffer_store_dwordx4 v[24:27], v20, s[{SRD_WS}:{SRD_WS+3}], s57 offen sc1
    s_add_u32 s57, s57, 24576
    buffer_store_dwordx4 v[24:27], v20, s[{SRD_WS}:{SRD_WS+3}], s57 offen sc1
    s_add_u32 s57, s57, 24576
    buffer_store_dwordx4 v[24:27], v20, s[{SRD_WS}:{SRD_WS+3}], s57 offen sc1
    s_waitcnt vmcnt(0) lgkmcnt(0)
    s_barrier
    s_add_u32 s{S_TAG}, s{S_TAG}, {TAGC_LO:#x}
    s_addc_u32 s{S_TAG+1}, s{S_TAG+1}, {TAGC_HI:#x}
    s_lshl_b32 s56, s56, 7
    s_add_u32 s56, s56, {WS_CF}
    v_mov_b32 v22, s{S_TAG}
    v_mov_b32 v23, s{S_TAG+1}
    v_lshlrev_b32 v21, 7, v0
    v_cmp_gt_u32 vcc, 3, v0
    s_nop 1
    s_and_saveexec_b64 s[54:55], vcc
    s_cbranch_execz L_clr_done
    buffer_store_dwordx2 v[22:23], v21, s[{SRD_WS}:{SRD_WS+3}], s56 offen sc1
    L_clr_done:
    s_mov_b64 exec, s[54:55]
    """)

def build(o):
    if o.order: P2[:] = P2B
    FS[0] = o.pfs
    _uid[0] = 0; OUTLINE.clear(); NOST[0] = o.x_nost; NOST[1] = o.x_nodsw; NOST[2] = o.hsc1; NOST[3] = o.hnt
    e = E(); prologue(e, o)
    parts = []
    ls = E(); loader_start(ls, o)
    for lw in range(3):
        x = E(); loader(x, o, lw); parts.append(("loader%d" % lw, x))
    x = E(); control(x, o); parts.append(("control", x))
    x = E(); prefetch(x, o); parts.append(("prefetch", x))
    x = E(); compute(x, o); parts.append(("compute", x))
    eg = E(); gather(eg, o)
    for k, v in parts:
        pre = e.text() + "\n" + (ls.text() + "\n" if k.startswith("loader") else "")
        pr = hazard.check(pre + v.text() + "\n" + eg.text())
        if pr: raise SystemExit(f"hazards in {k}")
    body = "\n".join([e.text(), ls.text()] + [v.text() for k, v in parts] + [eg.text(), "\n".join(OUTLINE), "L_end:", "s_endpgm"])
    nsgpr = 100 if o.stamps else 72
    hdr = f"""; Fused FFN: out = silu(x @ w1) @ w2   (M=512, D=576, F=4608), one launch.
; 192 compute workgroups = 8 F-slices (j) x 8 row tiles (mt) x 3 column groups (g): 4 MFMA waves, 3 LDS-DMA loader waves, 1 control wave;
; @launch grid=({NWG + o.npf},1,1) block=(512,1,1) lds={LDS_BYTES}
.amdgcn_target "amdgcn-amd-amdhsa--gfx950"
.text
.globl {KNAME}
.p2align 8
.type {KNAME},@function
{KNAME}:
"""
    tail = f"""
.section .rodata,"a"
.p2align 6
.amdhsa_kernel {KNAME}
  .amdhsa_next_free_vgpr 256
  .amdhsa_next_free_sgpr {nsgpr}
  .amdhsa_accum_offset 256
  .amdhsa_group_segment_fixed_size 0
  .amdhsa_kernarg_size 48
  .amdhsa_user_sgpr_count 2
  .amdhsa_user_sgpr_kernarg_segment_ptr 1
  .amdhsa_system_sgpr_workgroup_id_x 1
.end_amdhsa_kernel
"""
    return hdr + body + tail

if __name__ == "__main__":
    o = Opt()
    out = sys.argv[1]
    for a in sys.argv[2:]:
        k, v = a.split("=")
        setattr(o, k, bool(int(v)) if isinstance(getattr(Opt, k), bool) else int(v))
    open(out, "w").write(build(o))
    print("wrote", out)
```

```python
import sys, os
sys.path.insert(0, os.path.dirname(__file__))
import hazard

KNAME = "standalone__dense_activation_silu__sampling_kernel"
NWG = 192
NPF = 64
XH = 0
RING = 73728
R = 11
UNIT = 8192
LDS_BYTES = 163840
WS_E, WS_ID, WS_HF, WS_PF, WS_H, WS_P, WS_ST = 0, 4096, 32768, 65536, 262144, 5242880, 16777216
WS_PFX = 12582912
FS = [8]
WS_CF = 163840
SENT = 0x7F817F81
WS_SIZE = 0x10000000
TAGC_LO, TAGC_HI = 0x7F4A7C15, 0x9E3779B9
SPIN_MAX = 100000
FASTW = XH + 3 * UNIT

P2 = [(0,0),(1,0),(2,0), (0,1),(1,1),(2,1), (0,2),(1,2),(2,2), (3,0),(4,0),(5,0), (3,1),(4,1),(5,1),
      (6,0),(7,0),(8,0), (6,1),(7,1),(8,1), (3,2),(4,2),(5,2), (6,2),(7,2),(8,2)]
P2B = [(0,0),(1,0),(2,0), (0,1),(1,1),(2,1), (0,2),(1,2),(2,2), (3,0),(4,0),(5,0), (3,1),(4,1),(5,1),
       (3,2),(4,2),(5,2), (6,0),(7,0),(8,0), (6,1),(7,1),(8,1), (6,2),(7,2),(8,2)]
PCH = [(p % 3, p // 3) for p in range(9)]

class Opt:
    stamps = False
    LP = 3
    pairw = True
    pub0 = 17
    pub1 = 11
    DRAIN = 2
    epb = 52
    epb2 = 110
    f1pos = 8
    h0b = 8
    h1b = 11
    h2b = 13
    fastb = 4
    gap0 = 5
    gap2 = 4
    tlbw = False
    ctouch = False
    ptouch = 1
    t0b = 3
    t1b = 5
    t2b = 7
    order = 0
    touch = 2
    wgap2 = True
    ppipe = 0
    epb0 = 80
    sent = False
    gsleep = 1
    bx = 0
    probe1 = False
    latew = False
    lprio = 0
    cprio = 0
    gsplit = False
    x_perm = 0
    pfs = 8
    pfv = 2
    hdelay = 4
    clrpos = 1
    clrb = 4
    cfb = 7
    chkb = 15
    span = False
    x_pad = 0
    ep2first = False
    hnt = True
    pfdelay = 2
    pfsplit = True
    outx4 = 0
    tlbb = 0
    wbl2 = 0
    hsc1 = 0
    early = 1
    astamp = 0
    ep2_rate = 9
    prefetch_code = True
    prio = 0
    npf = 64
    force_slow = False
    sleep = 1
    w_nt = True
    x_noep = False
    x_nodma = False
    x_nopub = False
    x_nost = False
    x_hplain = False
    x_nodsw = False
    psleep = 1
    stampset = 0

class E:
    def __init__(self): self.L = []
    def __call__(self, s):
        for l in s.split("\n"):
            l = l.strip()
            if l: self.L.append(l)
    def text(self): return "\n".join(self.L)

S_X, S_W1, S_W2, S_OUT, S_WS = 4, 6, 8, 10, 12
S_J, S_MT, S_G, S_WAVE, S_CU = 14, 15, 16, 17, 18
S_FAST = 19
S_TAG = 20
S_T0, S_T1 = 22, 23
SRD_A, SRD_B, SRD_C = 24, 28, 32
SRD_WS, SRD_OUT = 36, 40
S_G1, S_G2 = 44, 45
S_CNT = 46
S_STAMP = 64

def srd(e, d, base, size):
    e(f"s_mov_b32 s{d}, s{base}\ns_and_b32 s{d+1}, s{base+1}, 0xffff\ns_mov_b32 s{d+2}, {size}\ns_mov_b32 s{d+3}, 0x20000")

def prologue(e, o):
    e(f"""
    s_cmp_ge_u32 s2, {NWG + o.npf}
    s_cbranch_scc1 L_end
    s_load_dwordx4 s[4:7], s[0:1], 0
    s_load_dwordx4 s[8:11], s[0:1], 16
    s_load_dwordx2 s[12:13], s[0:1], 40
    """)
    if o.x_perm == 1:
        e("s_lshr_b32 s3, s2, 3\ns_and_b32 s3, s3, 7\ns_xor_b32 s2, s2, s3")
    if o.x_perm == 2:
        e("s_lshr_b32 s3, s2, 5\ns_and_b32 s3, s3, 1\ns_lshr_b32 s22, s2, 3\ns_and_b32 s3, s3, s22\ns_xor_b32 s2, s2, s3")
    if o.prefetch_code:
        e(f"""
        s_getpc_b64 s[{S_T0}:{S_T0+1}]
        L_pf:
        v_lshlrev_b32 v1, 7, v0
        v_min_u32 v1, L_end-L_pf, v1
        global_load_dword v31, v1, s[{S_T0}:{S_T0+1}]
        """)
    if o.stamps:
        e(f"s_memrealtime s[{S_STAMP}:{S_STAMP+1}]\ns_memtime s[{S_STAMP+2}:{S_STAMP+3}]")
    if o.span:
        e(f"s_memrealtime s[{S_STAMP}:{S_STAMP+1}]")
    e(f"""
    v_lshrrev_b32 v1, 6, v0
    s_and_b32 s{S_J}, s2, 7
    s_lshr_b32 s3, s2, 3
    v_readfirstlane_b32 s{S_WAVE}, v1
    s_cmp_ge_u32 s2, {NWG}
    s_cbranch_scc1 L_prefetch
    s_mul_i32 s{S_MT}, s3, 171
    s_lshr_b32 s{S_MT}, s{S_MT}, 9
    s_mul_i32 s{S_G}, s{S_MT}, 3
    s_sub_u32 s{S_G}, s3, s{S_G}
    v_and_b32 v0, 63, v0
    s_cmp_lt_u32 s{S_WAVE}, 4
    s_cbranch_scc1 L_compute
    s_cmp_eq_u32 s{S_WAVE}, 7
    s_cbranch_scc1 L_control
    """)

def common_ids(e):
    e(f"""
    s_add_u32 s{S_G1}, s{S_G}, 1
    s_cmp_eq_u32 s{S_G1}, 3
    s_cselect_b32 s{S_G1}, 0, s{S_G1}
    s_add_u32 s{S_G2}, s{S_G1}, 1
    s_cmp_eq_u32 s{S_G2}, 3
    s_cselect_b32 s{S_G2}, 0, s{S_G2}
    s_lshl_b32 s{S_CU}, s{S_J}, 3
    s_add_u32 s{S_CU}, s{S_CU}, s{S_MT}
    s_mul_i32 s{S_CU}, s{S_CU}, 3
    s_add_u32 s{S_CU}, s{S_CU}, s{S_G}
    s_lshl_b32 s3, s{S_MT}, 7
    """)

def load_epoch(e):
    e(f"s_load_dwordx2 s[{S_TAG}:{S_TAG+1}], s[{S_WS}:{S_WS+1}], s3")
    srd(e, SRD_WS, S_WS, WS_SIZE)
    srd(e, SRD_OUT, S_OUT, 512*576*2)

def finish_tag(e):
    e(f"""
    s_waitcnt lgkmcnt(0)
    s_add_u32 s{S_TAG}, s{S_TAG}, {TAGC_LO:#x}
    s_addc_u32 s{S_TAG+1}, s{S_TAG+1}, {TAGC_HI:#x}
    """)

def dma_unit(e, srd_r, vp, s_off, half_step, lds, flags="", s_tmp=61, s_lb=None):
    pats = vp if len(vp) == 4 else vp * 4
    m0 = (lambda c: f"s_mov_b32 m0, {c}") if s_lb is None else (lambda c: f"s_add_u32 m0, s{s_lb}, {c}")
    e(f"{m0(lds)}\ns_add_u32 s{s_tmp}, s{s_off}, {half_step}")
    for k in range(4):
        e(f"buffer_load_dwordx4 v{pats[k]}, s[{srd_r}:{srd_r+3}], s{s_off} offen offset:{1024*k} {flags} lds")
    e(f"{m0(lds + 4096)}\ns_nop 0")
    for k in range(4):
        e(f"buffer_load_dwordx4 v{pats[k]}, s[{srd_r}:{srd_r+3}], s{s_tmp} offen offset:{1024*k} {flags} lds")

def issue_barrier(n): return -1 if n < R else (n - R) // 3 + 1

V_LX, V_LW1, V_LW2 = 8, 12, 16
S_C = [48, 49, 50]; S_XO = [51, 52, 53]; S_WO = [54, 55, 56]; S_GB = [57, 58, 59]; S_OFF = 60
S_LW, S_LB = 62, 63
S_LH = 47
V_LIN = 20

def lstamp(e, o, k):
    if o.stamps and not o.astamp: e(f"s_memtime s[{S_STAMP+16+2*k}:{S_STAMP+17+2*k}]")

def loader_start(e, o):
    wf = "nt" if o.w_nt else ""
    if o.lprio: e(f"s_setprio {o.lprio}")
    e(f"""
    s_sub_u32 s{S_LW}, s{S_WAVE}, 4
    v_lshrrev_b32 v1, 3, v0
    v_and_b32 v2, 7, v0
    v_lshrrev_b32 v6, 1, v1
    v_mul_u32_u24 v5, 1152, v1
    v_xor_b32 v6, v2, v6
    v_lshlrev_b32 v7, 4, v6
    v_add_u32 v{V_LX}, v5, v7
    v_xor_b32 v7, 64, v7
    v_add_u32 v{V_LX+1}, v5, v7
    v_add_u32 v{V_LX+1}, {9216-1024}, v{V_LX+1}
    v_add_u32 v{V_LX+2}, {2*(9216-1024)}, v{V_LX}
    v_add_u32 v{V_LX+3}, {2*(9216-1024)}, v{V_LX+1}
    s_mul_i32 s{S_T0}, s{S_G}, 3
    s_add_u32 s{S_T0}, s{S_T0}, s{S_MT}
    s_add_u32 s{S_T0}, s{S_T0}, s{S_LW}
    s_cmp_ge_u32 s{S_T0}, 9
    s_cselect_b32 s{S_T1}, 9, 0
    s_sub_u32 s{S_C[0]}, s{S_T0}, s{S_T1}
    s_mul_i32 s{S_T0}, s{S_MT}, {64*1152}
    s_lshl_b32 s{S_XO[0]}, s{S_C[0]}, 7
    s_add_u32 s{S_XO[0]}, s{S_XO[0]}, s{S_T0}
    s_lshl_b32 s{S_LB}, s{S_LW}, 13
    v_and_b32 v3, 2, v1
    v_lshlrev_b32 v3, 1, v3
    v_xor_b32 v3, v2, v3
    v_lshlrev_b32 v3, 4, v3
    v_mul_u32_u24 v4, 9216, v1
    v_add_u32 v{V_LW1}, v4, v3
    v_add_u32 v{V_LW2}, v5, v3
    s_mul_i32 s{S_T1}, s{S_J}, 1152
    s_mul_i32 s3, s{S_G}, 384
    s_add_u32 s{S_T1}, s{S_T1}, s3
    s_mul_i32 s3, s{S_C[0]}, {64*9216}
    s_add_u32 s{S_WO[0]}, s{S_T1}, s3
    v_add_u32 v{V_LW1+1}, {1*(73728-1024)}, v{V_LW1}
    v_add_u32 v{V_LW1+2}, {2*(73728-1024)}, v{V_LW1}
    v_add_u32 v{V_LW1+3}, {3*(73728-1024)}, v{V_LW1}
    s_waitcnt lgkmcnt(0)
    """)
    lstamp(e, o, 0)
    srd(e, SRD_A, S_X, 512*576*2)
    XP = [V_LX, V_LX+1, V_LX+2, V_LX+3]; WP = [V_LW1, V_LW1+1, V_LW1+2, V_LW1+3]
    dma_unit(e, SRD_A, XP, S_XO[0], 4*9216, XH, s_lb=S_LB)
    srd(e, SRD_B, S_W1, 576*4608*2)
    dma_unit(e, SRD_B, WP, S_WO[0], 4*73728, RING, wf, s_lb=S_LB)
    lstamp(e, o, 1)
    for k in (1, 2):
        e(f"""
        s_add_u32 s3, s{S_C[k-1]}, 3
        s_cmp_ge_u32 s3, 9
        s_cselect_b32 s{S_C[k]}, 9, 0
        s_sub_u32 s{S_C[k]}, s3, s{S_C[k]}
        s_lshl_b32 s3, s{S_C[k]}, 7
        s_add_u32 s{S_XO[k]}, s{S_T0}, s3
        s_mul_i32 s3, s{S_C[k]}, {64*9216}
        s_add_u32 s{S_WO[k]}, s{S_T1}, s3
        """)
        if (k == 1 and o.early < 2) or not o.early:
            dma_unit(e, SRD_A, XP, S_XO[k], 4*9216, XH + 3*k*UNIT, s_lb=S_LB)
            dma_unit(e, SRD_B, WP, S_WO[k], 4*73728, RING + 3*k*UNIT, wf, s_lb=S_LB)
    if not o.early:
        e(f"s_cmp_eq_u32 s{S_LW}, 2\ns_cbranch_scc1 L_ld_no4")
        e(f"s_add_u32 s{S_OFF}, s{S_WO[0]}, 128")
        dma_unit(e, SRD_B, WP, S_OFF, 4*73728, RING + 9*UNIT, wf, s_lb=S_LB)
        e("L_ld_no4:")
    lstamp(e, o, 2)
    common_ids(e)
    srd(e, SRD_C, S_W2, 576*4608*2)
    for k in (1, 2, 3):
        e(f"v_add_u32 v{V_LW2+k}, {k*(9216-1024)}, v{V_LW2}")
    e(f"""
    s_mul_i32 s{S_T0}, s{S_J}, {576*1152}
    s_mul_i32 s{S_T1}, s{S_G}, 384
    s_add_u32 s{S_T0}, s{S_T0}, s{S_T1}
    """)
    for k, sg in enumerate((S_G, S_G1, S_G2)):
        e(f"s_mul_i32 s3, s{sg}, {192*1152}\ns_add_u32 s{S_GB[k]}, s{S_T0}, s3")
    e(f"""
    s_cmp_eq_u32 s{S_LW}, 1
    s_cselect_b32 s3, s{S_G1}, s{S_G}
    s_cmp_eq_u32 s{S_LW}, 2
    s_cselect_b32 s3, s{S_G2}, s3
    s_sub_u32 s{S_LH}, s{S_CU}, s{S_G}
    s_add_u32 s{S_LH}, s{S_LH}, s3
    s_mul_i32 s{S_LH}, s{S_LH}, 24576
    s_add_u32 s{S_LH}, s{S_LH}, {WS_H}
    v_lshlrev_b32 v{V_LIN}, 4, v0
    """)
    e(f"s_lshl_b32 s3, s{S_MT}, 7")
    load_epoch(e)
    finish_tag(e)
    e(f"""
    s_cmp_eq_u32 s{S_LW}, 1
    s_cbranch_scc1 L_loader1
    s_cmp_eq_u32 s{S_LW}, 2
    s_cbranch_scc1 L_loader2
    """)

def loader(e, o, lw):
    wf = "nt" if o.w_nt else ""
    WP = [V_LW1, V_LW1+1, V_LW1+2, V_LW1+3]; W2P = [V_LW2, V_LW2+1, V_LW2+2, V_LW2+3]
    e(f"L_loader{lw}:")
    XP = [V_LX, V_LX+1, V_LX+2, V_LX+3]
    if o.early == 2: seq = [("x", lw), ("w", lw)]
    elif o.early: seq = [("x", lw), ("w", lw), ("x", 3+lw), ("w", 3+lw)]
    else: seq = [("x", lw), ("w", lw), ("x", 3+lw), ("w", 3+lw), ("x", 6+lw), ("w", 6+lw)] + ([("w", 9+lw)] if 9 + lw < R else [])
    def issue_w(n):
        slot = n % R
        if n < 27:
            s, i = n // 9, n % 9
            t = i // 3
            e(f"s_add_u32 s{S_OFF}, s{S_WO[t]}, {128*s}")
            dma_unit(e, SRD_B, WP, S_OFF, 4*73728, RING + slot*UNIT, wf)
        else:
            p, u = P2[n - 27]
            k, s = PCH[p]
            e(f"s_add_u32 s{S_OFF}, s{S_GB[k]}, {73728*s + 128*u}")
            dma_unit(e, SRD_C, W2P, S_OFF, 4*9216, RING + slot*UNIT, wf)
        seq.append(("w", n))
    hb = {o.h0b: 0, o.h1b: 1, o.h2b: 2}
    hneed = {9: 0, 12: 1, (15 if o.order else 14): 2}
    for st in range(18):
        need = [("w", 3*st + lw)] + ([("x", 3*st + lw)] if st < 3 else []) + ([("h", hneed[st])] if st in hneed else [])
        last = max(seq.index(x) for x in need)
        n = 8 * (len(seq) - 1 - last)
        assert n <= 63
        e(f"s_waitcnt vmcnt({n})")
        if st == 0 and not o.astamp: lstamp(e, o, 3)
        if o.astamp and o.astamp <= st < o.astamp + 6: e(f"s_memtime s[{S_STAMP+16+2*(st-o.astamp)}:{S_STAMP+17+2*(st-o.astamp)}]")
        e("s_barrier")
        if st in hb:
            sg = hb[st]
            e(f"s_add_u32 s{S_OFF}, s{S_LH}, {sg*UNIT}")
            dma_unit(e, SRD_WS, [V_LIN], S_OFF, 4096, XH + (3*sg + lw)*UNIT, "" if o.x_hplain else "sc1"); seq.append(("h", sg))
        if o.early == 2 and st == 0:
            dma_unit(e, SRD_A, XP, S_XO[1], 4*9216, XH + (3 + lw)*UNIT); seq.append(("x", 3 + lw))
            issue_w(3 + lw)
        if o.early and st == 0:
            dma_unit(e, SRD_A, XP, S_XO[2], 4*9216, XH + (6 + lw)*UNIT); seq.append(("x", 6 + lw))
            issue_w(6 + lw)
        if o.early and st == 1 and 9 + lw < R: issue_w(9 + lw)
        for nn in range(R, 54):
            if nn % 3 == lw and issue_barrier(nn) == st:
                if o.x_nodma: seq.append(('w', nn))
                else: issue_w(nn)
    if o.stamps and (lw == 0 or o.astamp):
        base = WS_ST + 192 if not o.astamp else WS_ST + 192*512 + (1 + lw)*64
        e(f"s_waitcnt lgkmcnt(0)\ns_lshl_b32 s3, s{S_CU}, 9\ns_add_u32 s3, s3, {base}\ns_mov_b64 exec, 1\nv_mov_b32 v1, 0")
        for k, r0 in enumerate((S_STAMP, S_STAMP+16, S_STAMP+20, S_STAMP+24)):
            for q in range(4): e(f"v_mov_b32 v{4+q}, s{r0+q}")
            e(f"buffer_store_dwordx4 v[4:7], v1, s[{SRD_WS}:{SRD_WS+3}], s3 offen offset:{k*16}\ns_nop 1")
        e("s_mov_b64 exec, -1")
    e("s_branch L_gather")

def _poll(e, o, name, vaddr, imm, mask, vtag, vtmp, sleep=None):
    sleep = o.sleep if sleep is None else sleep
    e(f"""
    s_mov_b64 exec, {mask}
    s_mov_b32 s{S_CNT}, {SPIN_MAX}
    L_poll_{name}:
    buffer_load_dwordx2 v[{vtmp}:{vtmp+1}], v{vaddr}, s[{SRD_WS}:{SRD_WS+3}], 0 offen offset:{imm} sc1
    s_waitcnt vmcnt(0)
    v_cmp_ne_u64 vcc, v[{vtmp}:{vtmp+1}], v[{vtag}:{vtag+1}]
    s_sub_u32 s{S_CNT}, s{S_CNT}, 1
    s_cmp_eq_u32 s{S_CNT}, 0
    s_cbranch_scc1 L_polldone_{name}
    s_nop 1
    s_cbranch_vccz L_polldone_{name}
    """)
    if sleep: e(f"s_sleep {sleep}")
    e(f"""
    s_branch L_poll_{name}
    L_polldone_{name}:
    s_mov_b64 exec, -1
    """)

def control(e, o):
    V_LIN, V_POLL, V_TAG, V_TMP, V_ID = 8, 9, 10, 12, 14
    S_OFF, S_H1, S_H2, S_XCC, S_H0 = 60, 48, 49, 50, 51
    e("L_control:")
    if o.cprio: e(f"s_setprio {o.cprio}")
    common_ids(e)
    e("s_waitcnt lgkmcnt(0)")
    load_epoch(e)
    def tlb_warm():
        e(f"""
        v_min_u32 v26, 39, v0
        v_lshlrev_b32 v26, 18, v26
        buffer_load_dword v29, v26, s[{SRD_WS}:{SRD_WS+3}], 0 offen offset:2048 sc1
        v_min_u32 v27, 8, v0
        v_lshlrev_b32 v27, 16, v27
        buffer_load_dword v28, v27, s[{SRD_OUT}:{SRD_OUT+3}], 0 offen sc1
        """)
    if o.tlbw and not o.tlbb: tlb_warm()
    e(f"""
    s_getreg_b32 s{S_XCC}, hwreg(HW_REG_XCC_ID, 0, 4)
    v_lshlrev_b32 v{V_LIN}, 4, v0
    s_sub_u32 s{S_T0}, s{S_CU}, s{S_G}
    s_add_u32 s{S_H1}, s{S_T0}, s{S_G1}
    s_add_u32 s{S_H2}, s{S_T0}, s{S_G2}
    s_lshl_b32 s{S_T0}, s{S_H1}, 7
    s_lshl_b32 s{S_T1}, s{S_H2}, 7
    v_mov_b32 v1, s{S_T0}
    v_mov_b32 v2, s{S_T1}
    s_lshl_b32 s{S_OFF}, s{S_CU}, 7
    v_mov_b32 v7, s{S_OFF}
    v_lshrrev_b32 v3, 2, v0
    v_cmp_eq_u32 vcc, 1, v3
    v_and_b32 v6, 3, v0
    v_lshlrev_b32 v6, 3, v6
    v_cndmask_b32 v4, v7, v1, vcc
    v_cmp_eq_u32 vcc, 2, v3
    s_mul_i32 s{S_H1}, s{S_H1}, 24576
    s_mul_i32 s{S_H2}, s{S_H2}, 24576
    v_cndmask_b32 v4, v4, v2, vcc
    v_add_u32 v4, {WS_HF}, v4
    v_add_u32 v{V_POLL}, v4, v6
    v_cmp_eq_u32 vcc, 0, v0
    s_mul_i32 s{S_H0}, s{S_CU}, 24576
    s_add_u32 s{S_H0}, s{S_H0}, {WS_H}
    v_cndmask_b32 v4, v2, v1, vcc
    v_add_u32 v{V_ID}, {WS_ID}, v4
    s_add_u32 s{S_H1}, s{S_H1}, {WS_H}
    s_add_u32 s{S_H2}, s{S_H2}, {WS_H}
    """)
    finish_tag(e)
    e(f"""
    s_add_u32 s{S_T0}, s{S_XCC}, 16
    s_add_u32 s{S_T0}, s{S_TAG}, s{S_T0}
    s_addc_u32 s{S_T1}, s{S_TAG+1}, 0
    v_mov_b32 v4, s{S_T0}
    v_mov_b32 v5, s{S_T1}
    s_lshl_b32 s3, s{S_CU}, 7
    s_add_u32 s3, s3, {WS_ID}
    v_mov_b32 v6, s3
    v_mov_b32 v{V_TAG}, s{S_TAG}
    v_mov_b32 v{V_TAG+1}, s{S_TAG+1}
    s_mov_b64 exec, 1
    buffer_store_dwordx2 v[4:5], v6, s[{SRD_WS}:{SRD_WS+3}], 0 offen sc1
    s_mov_b64 exec, -1
    """)
    def hdma(s):
        for k, sh in enumerate((S_H0, S_H1, S_H2)):
            p = 3 * s + k
            e(f"s_add_u32 s{S_OFF}, s{sh}, {s*UNIT}")
            dma_unit(e, SRD_WS, [V_LIN], S_OFF, 4096, XH + p * UNIT, "sc1")
    def stamp(k):
        if o.stamps: e(f"s_memtime s[{S_STAMP+4+2*k}:{S_STAMP+5+2*k}]\ns_waitcnt lgkmcnt(0)")
    bl = [0,1,2,3,6,9,10,11,12,13,14,15,16,17] if o.stampset == 0 else [0,2,3,4,5,6,7,8,9,10,11,12,14,17]
    slots = {b: i for i, b in enumerate(bl)}
    for st in range(18):
        if st == o.fastb - 2:
            e(f"s_mov_b64 exec, 3\nbuffer_load_dwordx2 v[{V_TMP}:{V_TMP+1}], v{V_ID}, s[{SRD_WS}:{SRD_WS+3}], 0 offen sc1\ns_mov_b64 exec, -1")
        if o.touch and st == o.fastb - 2:
            e(f"""
            v_lshlrev_b32 v20, 7, v0
            s_mul_i32 s{S_OFF}, s{S_CU}, {48*FS[0]}
            s_add_u32 s{S_OFF}, s{S_OFF}, {WS_PF if FS[0] == 8 else WS_PFX}
            s_mov_b64 exec, {"7" if FS[0] == 8 else "-1"}
            buffer_load_dword v24, v20, s[{SRD_WS}:{SRD_WS+3}], s{S_OFF} offen sc1
            s_lshl_b32 s{S_OFF}, s{S_CU}, 7
            s_add_u32 s{S_OFF}, s{S_OFF}, {WS_HF}
            s_mov_b64 exec, 1
            buffer_load_dword v25, v20, s[{SRD_WS}:{SRD_WS+3}], s{S_OFF} offen
            s_mov_b64 exec, -1
            """)
        for sg, tb in enumerate((o.t0b, o.t1b, o.t2b)):
            if o.ctouch and st == tb:
                e(f"""
                s_mul_i32 s{S_OFF}, s{S_CU}, 24576
                s_add_u32 s{S_OFF}, s{S_OFF}, {WS_H + sg*UNIT}
                buffer_load_dword v{21+sg}, v20, s[{SRD_WS}:{SRD_WS+3}], s{S_OFF} offen
                """)
        if st == o.fastb: e("s_waitcnt lgkmcnt(0)")
        if st == o.fastb - 1:
            e(f"""
            s_mov_b64 exec, 3
            s_mov_b32 s{S_CNT}, {SPIN_MAX}
            s_waitcnt vmcnt({(2 + (o.ctouch and o.fastb - 2 <= o.t0b <= o.fastb - 1)) if o.touch else 0})
            s_branch L_check_id
            L_poll_id:
            buffer_load_dwordx2 v[{V_TMP}:{V_TMP+1}], v{V_ID}, s[{SRD_WS}:{SRD_WS+3}], 0 offen sc1
            s_waitcnt vmcnt(0)
            L_check_id:
            v_subrev_co_u32 v4, vcc, s{S_TAG}, v{V_TMP}
            v_mov_b32 v6, s{S_TAG+1}
            s_nop 0
            v_subb_co_u32 v5, vcc, v{V_TMP+1}, v6, vcc
            v_subrev_u32 v4, 16, v4
            v_lshrrev_b32 v6, 4, v4
            v_or_b32 v6, v6, v5
            v_cmp_ne_u32 vcc, 0, v6
            s_sub_u32 s{S_CNT}, s{S_CNT}, 1
            s_cmp_eq_u32 s{S_CNT}, 0
            s_cbranch_scc1 L_id_done
            s_nop 1
            s_cbranch_vccz L_id_done
            s_sleep 1
            s_branch L_poll_id
            L_id_done:
            v_cmp_ne_u32 vcc, s{S_XCC}, v4
            s_mov_b32 s{S_FAST}, {0 if o.force_slow else 1}
            s_nop 1
            s_cmp_eq_u64 vcc, 0
            s_cselect_b32 s{S_FAST}, s{S_FAST}, 0
            s_mov_b64 exec, 1
            v_mov_b32 v4, s{S_FAST}
            v_mov_b32 v5, {FASTW}
            ds_write_b32 v5, v4
            s_mov_b64 exec, -1
            """)
        if o.sent and st == o.h0b - 1:
            e(f"""
            s_mul_i32 s3, s{S_MT}, 3
            s_add_u32 s3, s3, s{S_G}
            s_lshl_b32 s3, s3, 7
            s_add_u32 s3, s3, {WS_CF}
            v_mul_u32_u24 v37, {24*128}, v0
            v_add_u32 v37, s3, v37
            """)
        if st == o.h0b: _poll(e, o, "h0", V_POLL, 0, "0xfff", V_TAG, V_TMP)
        if o.sent and st == o.h0b:
            e(f"s_mov_b64 exec, 0xff\nbuffer_load_dwordx2 v[38:39], v37, s[{SRD_WS}:{SRD_WS+3}], 0 offen sc1\ns_mov_b64 exec, -1")
        if st == o.h1b: _poll(e, o, "h1", V_POLL, 32, "0xfff", V_TAG, V_TMP)
        if o.sent and st == o.h1b:
            e(f"""
            s_mov_b64 exec, 0xff
            v_cmp_ne_u64 vcc, v[38:39], v[{V_TAG}:{V_TAG+1}]
            s_nop 4
            s_mov_b64 exec, -1
            s_cbranch_vccz L_cf_ok
            """)
            _poll(e, o, "cf", 37, 0, "0xff", V_TAG, V_TMP)
            e("L_cf_ok:")
        if st == o.h2b: _poll(e, o, "h2", V_POLL, 64, "0xfff", V_TAG, V_TMP)
        e("s_barrier")
        if o.tlbw and o.tlbb and st == o.tlbb: tlb_warm()
        if o.wbl2 and st == o.wbl2:
            e(f"""
            s_or_b32 s3, s{S_MT}, s{S_G}
            s_cmp_lg_u32 s3, 0
            s_cbranch_scc1 L_nowb
            buffer_wbl2 sc1
            L_nowb:
            """)
        if st in slots: stamp(slots[st])
    if o.stamps:
        e(f"s_waitcnt lgkmcnt(0)")
        e(f"s_lshl_b32 s3, s{S_CU}, 9\ns_add_u32 s3, s3, {WS_ST}")
        e("s_mov_b64 exec, 1\nv_mov_b32 v1, 0")
        for k in range(0, 32, 4):
            for q in range(4): e(f"v_mov_b32 v{4+q}, s{S_STAMP+k+q}")
            e(f"buffer_store_dwordx4 v[4:7], v1, s[{SRD_WS}:{SRD_WS+3}], s3 offen offset:{k*4}\ns_nop 1")
        e(f"v_mov_b32 v4, s{S_FAST}\nbuffer_store_dword v4, v1, s[{SRD_WS}:{SRD_WS+3}], s3 offen offset:128")
        e("s_mov_b64 exec, -1")
    e("s_branch L_gather")

V_T1, V_T1B, V_T2, V_T2B = 2, 3, 4, 5
V_X = 6; V_X8 = 10
V_PF, V_PV = 6, 7
V_H, V_H8, V_FW, V_HG = 14, 15, 16, 17
V_HF = 1
V_TAG = 18
V_EP = 20
V_P = 24
V_WF = 32
V_ACC1 = 64
V_XF = 112
S_MH, S_NH, S_HST, S_NL2E = 48, 49, 50, 51
S_PO = 52
S_PFB = 54

class Stream:
    def __init__(self, e): self.e = e; self.nlds = 0; self.done = 0; self.count = 0; self.fast_ok = False; self.flags = set(); self.hold_silu = 0
    def emit(self, s):
        for l in s.split("\n"):
            l = l.strip()
            if l:
                self.e(l)
                if not l.endswith(":"): self.count += 1
    def lds(self, s):
        self.emit(s); self.nlds += 1; return self.nlds
    def wait_lds(self, opid):
        if opid <= self.done: return
        n = min(self.nlds - opid, 15)
        self.emit(f"s_waitcnt lgkmcnt({n})"); self.done = self.nlds - n

_uid = [0]
OUTLINE = []
NOST = [False, False, 0, False]
def dual(txt, force_sc1=False):
    if force_sc1: return txt + " sc1"
    _uid[0] += 1; k = _uid[0]
    OUTLINE.append(f"L_ds{k}:\n{txt} sc1\ns_branch L_dd{k}")
    nt = " nt" if (NOST[3] and "dwordx4" in txt) else ""
    return (f"s_cmp_eq_u32 s{S_FAST}, 0\ns_cbranch_scc1 L_ds{k}\n{txt}{nt}\nL_dd{k}:")

def silu_ops(acc, s, noep=False):
    ops = []
    for q in range(4):
        v = [acc + 4 * q + r for r in range(4)]
        t = [V_EP + r for r in range(4)]
        if not noep:
            for r in range(4): ops.append(("silu", f"v_mul_f32 v{t[r]}, s{S_NL2E}, v{v[r]}"))
            for r in range(4): ops.append(("v", f"v_exp_f32 v{t[r]}, v{t[r]}"))
            for r in range(4): ops.append(("v", f"v_add_f32 v{t[r]}, 1.0, v{t[r]}"))
            for r in range(4): ops.append(("v", f"v_rcp_f32 v{t[r]}, v{t[r]}"))
            for r in range(4): ops.append(("silu", f"v_mul_f32 v{v[r]}, v{v[r]}, v{t[r]}"))
        ops.append(("silu", f"v_cvt_pk_bf16_f32 v{V_P+2*q}, v{v[0]}, v{v[1]}"))
        ops.append(("silu", f"v_cvt_pk_bf16_f32 v{V_P+2*q+1}, v{v[2]}, v{v[3]}"))
    sts = [("st", "s_nop 0" if NOST[0] else dual(f"buffer_store_dwordx4 v[{V_P+4*tt}:{V_P+4*tt+3}], v{V_HG}, s[{SRD_WS}:{SRD_WS+3}], s{S_HST} offen offset:{tt*1024}", s < NOST[2])) for tt in range(2)]
    if s < NOST[2] or s == 2:
        k = [i for i, x in enumerate(ops) if x[1].startswith(f"v_cvt_pk_bf16_f32 v{V_P+3},")]
        if k: ops.insert(k[0] + 1, sts[0]); ops.append(sts[1])
        else: ops += sts
    else: ops += sts
    if s < 2: ops.append(("v", f"s_add_u32 s{S_HST}, s{S_HST}, {UNIT}"))
    return ops

def hflag_ops(s, n):
    return [("v", f"s_waitcnt vmcnt({n})\ns_mov_b64 exec, 1"),
            ("st", dual(f"buffer_store_dwordx2 v[{V_TAG}:{V_TAG+1}], v{V_HF}, s[{SRD_WS}:{SRD_WS+3}], 0 offen offset:{s*32}")),
            ("flag%d" % s, "s_mov_b64 exec, -1")]

def pflag(e, u, n):
    e(f"""
    s_mov_b32 s60, {u*16*FS[0]}
    s_waitcnt vmcnt({n})
    s_mov_b64 exec, 0xf
    buffer_store_dwordx2 v[{V_TAG}:{V_TAG+1}], v{V_PF}, s[{SRD_WS}:{SRD_WS+3}], s60 offen sc1
    s_mov_b64 exec, -1
    """)

def compute(e, o):
    e("L_compute:")
    if o.prio: e(f"s_setprio {o.prio}")
    common_ids(e)
    e(f"""
    s_lshr_b32 s{S_MH}, s{S_WAVE}, 1
    s_and_b32 s{S_NH}, s{S_WAVE}, 1
    s_mov_b32 s{S_NL2E}, 0xbfb8aa3b
    v_lshrrev_b32 v20, 5, v0
    v_lshrrev_b32 v21, 4, v0
    v_and_b32 v21, 1, v21
    v_and_b32 v22, 15, v0
    v_lshrrev_b32 v23, 2, v22
    v_and_b32 v22, 3, v22
    v_lshrrev_b32 v24, 1, v22
    v_lshl_add_u32 v24, v21, 1, v24
    s_lshl_b32 s{S_T0}, s{S_NH}, 2
    v_add_u32 v24, s{S_T0}, v24
    v_and_b32 v25, 2, v23
    v_lshlrev_b32 v25, 1, v25
    v_xor_b32 v24, v24, v25
    v_lshlrev_b32 v24, 4, v24
    v_and_b32 v22, 1, v22
    v_lshl_add_u32 v24, v22, 3, v24
    v_lshl_add_u32 v24, v23, 7, v24
    v_add_u32 v24, {RING}, v24
    v_lshl_add_u32 v{V_T1}, v20, 10, v24
    v_lshl_add_u32 v{V_T2}, v20, 9, v24
    v_add_u32 v{V_T1B}, {8*UNIT}, v{V_T1}
    v_add_u32 v{V_T2B}, {8*UNIT}, v{V_T2}
    v_and_b32 v25, 31, v0
    v_lshrrev_b32 v26, 1, v25
    v_and_b32 v26, 7, v26
    v_xor_b32 v26, v20, v26
    v_lshlrev_b32 v26, 4, v26
    s_lshl_b32 s{S_T1}, s{S_MH}, 12
    v_lshl_add_u32 v26, v25, 7, v26
    v_add_u32 v{V_X}, s{S_T1}, v26
    v_xor_b32 v{V_X+1}, 32, v{V_X}
    v_xor_b32 v{V_X+2}, 64, v{V_X}
    v_xor_b32 v{V_X+3}, 96, v{V_X}
    """)
    for ks in range(4): e(f"v_add_u32 v{V_X8+ks}, {8*UNIT}, v{V_X+ks}")
    e(f"""
    v_lshlrev_b32 v27, 4, v0
    v_add_u32 v{V_H}, s{S_T1}, v27
    v_add_u32 v{V_H8}, {8*UNIT}, v{V_H}
    s_lshl_b32 s{S_T0}, s{S_NH}, 11
    v_add_u32 v{V_HG}, s{S_T0}, v{V_H}
    s_mul_i32 s{S_HST}, s{S_CU}, 24576
    s_add_u32 s{S_HST}, s{S_HST}, {WS_H}
    s_lshl_b32 s{S_T0}, s{S_CU}, 7
    s_lshl_b32 s{S_T1}, s{S_WAVE}, 3
    s_add_u32 s{S_T0}, s{S_T0}, s{S_T1}
    s_add_u32 s{S_T0}, s{S_T0}, {WS_HF}
    v_mov_b32 v{V_HF}, s{S_T0}
    s_mul_i32 s{S_T0}, s{S_MT}, 3
    s_add_u32 s{S_T0}, s{S_T0}, s{S_G}
    s_lshl_b32 s{S_T1}, s{S_MH}, 2
    s_mul_i32 s{S_T1}, s{S_T1}, 24
    s_add_u32 s{S_T0}, s{S_T0}, s{S_T1}
    s_mul_i32 s{S_PO}, s{S_T0}, 24576
    s_mul_i32 s{S_T1}, s{S_J}, 3072
    s_add_u32 s{S_PO}, s{S_PO}, s{S_T1}
    s_lshl_b32 s{S_T1}, s{S_NH}, 9
    s_add_u32 s{S_PO}, s{S_PO}, s{S_T1}
    s_add_u32 s{S_PO}, s{S_PO}, {WS_P}
    s_add_u32 s{S_PO+1}, s{S_PO}, {2*24*24576}
    s_mul_i32 s{S_T0}, s{S_T0}, {48*FS[0]}
    s_lshl_b32 s{S_T1}, s{S_J}, 1
    s_add_u32 s{S_T1}, s{S_T1}, s{S_NH}
    s_mul_i32 s{S_T1}, s{S_T1}, {FS[0]}
    s_add_u32 s{S_T0}, s{S_T0}, s{S_T1}
    s_add_u32 s{S_PFB}, s{S_T0}, {WS_PF if FS[0] == 8 else WS_PFX}
    v_mov_b32 v{V_FW}, {FASTW}
    s_waitcnt lgkmcnt(0)
    """)
    load_epoch(e)
    finish_tag(e)
    e(f"v_mov_b32 v{V_TAG}, s{S_TAG}\nv_mov_b32 v{V_TAG+1}, s{S_TAG+1}")
    if not o.latew: e("s_waitcnt vmcnt(0)")

    tasks = []
    def ringbase(n, vA, vB):
        slot = n % R
        return (vA, slot * UNIT) if slot < 8 else (vB, (slot - 8) * UNIT)
    for n in range(27):
        st = n // 3; s = n // 9; i = n % 9
        base, so = ringbase(n, V_T1, V_T1B)
        for ks in range(4):
            t = dict(step=st, first=(n % 3 == 0 and ks == 0), idx=len(tasks))
            t["wr"] = [(base, so + (16 * ks + 4 * b) * 128) for b in range(2)]
            xf = V_XF + (i * 4 + ks) * 4
            t["pre"] = []
            if s == 0:
                xb = (V_X8 + ks) if i == 8 else (V_X + ks)
                t["pre"] = [f"ds_read_b128 v[{xf}:{xf+3}], v{xb} offset:{0 if i == 8 else i*UNIT}"]
            acc = V_ACC1 + 16 * (s & 1)
            t["mf"] = lambda wf, acc=acc, xf=xf, z=(i == 0 and ks == 0): f"v_mfma_f32_32x32x16_bf16 v[{acc}:{acc+15}], v[{wf}:{wf+3}], v[{xf}:{xf+3}], " + ("0" if z else f"v[{acc}:{acc+15}]")
            tasks.append(t)
    seen_p, seen_u, last_u = set(), set(), {}
    ACCU = {0: V_ACC1 + 16, 1: V_ACC1 + 32, 2: V_ACC1}
    for q, (p, u) in enumerate(P2):
        n = 27 + q; st = n // 3
        base, so = ringbase(n, V_T2, V_T2B)
        for ks in range(4):
            t = dict(step=st, first=(n % 3 == 0 and ks == 0), idx=len(tasks))
            t["wr"] = [(base, so + (16 * ks + 8 * b) * 128) for b in range(2)]
            hf = V_XF + (p * 4 + ks) * 4
            t["pre"] = []
            if p not in seen_p:
                hb = V_H8 if p == 8 else V_H
                t["pre"] = [f"ds_read_b128 v[{hf}:{hf+3}], v{hb} offset:{(0 if p == 8 else p*UNIT) + ks*1024}"]
            acc = ACCU[u]
            t["mf"] = lambda wf, acc=acc, hf=hf, z=(u not in seen_u and ks == 0): f"v_mfma_f32_32x32x16_bf16 v[{acc}:{acc+15}], v[{hf}:{hf+3}], v[{wf}:{wf+3}], " + ("0" if z else f"v[{acc}:{acc+15}]")
            tasks.append(t); last_u[u] = t["idx"]
        seen_p.add(p); seen_u.add(u)
    global PUBACC
    n = len(tasks)
    S = Stream(e)
    NP = n // 2
    side = []; side_start = [0]; hold = [0]; cur = [0]
    last_of_step = {}
    for t in tasks: last_of_step[t["step"]] = t["idx"]
    def pubops(u):
        ops = []
        a = ACCU[u]
        for q in range(8): ops.append(("v", f"v_cvt_pk_bf16_f32 v{V_P+q}, v{a+2*q}, v{a+2*q+1}"))
        ops.append(("v", "s_nop 0"))
        for q in range(2):
            d = V_P + 4 * q
            ops.append(("v", f"v_permlane32_swap_b32 v{d}, v{d+2}"))
            ops.append(("v", f"v_permlane32_swap_b32 v{d+1}, v{d+3}"))
        if not o.x_nopub:
            for q in range(2):
                d = V_P + 4 * q
                ops.append(("st", f"buffer_store_dwordx4 v[{d}:{d+3}], v{V_PV}, s[{SRD_WS}:{SRD_WS+3}], s{S_PO+q} offen offset:{u*1024} sc1"))
            ops.append(("v", "s_nop 0"))
        return ops
    def cost(kind, txt):
        if kind == "lds": return 24
        if kind == "st": return 16
        if txt.startswith(("v_exp", "v_rcp")): return 8
        if txt.startswith("s_") and not txt.startswith(("s_waitcnt", "s_nop")): return 2
        return 4
    def pop_side(budget):
        used = 0
        while side and S.count >= side_start[0] and cur[0] >= hold[0]:
            kind, txt = side[0]
            if kind == "gap": side.pop(0); hold[0] = cur[0] + txt; continue
            if kind == "st" and "L_ds" in txt and not S.fast_ok: break
            if kind == "silu" and S.count < S.hold_silu: break
            c = cost(kind, txt)
            if used and used + c > budget: break
            side.pop(0)
            if kind == "lds": S.lds(txt)
            else: S.emit(txt)
            if kind.startswith("flag"): S.flags.add(int(kind[4:]))
            used += c
    NR = o.LP + 1
    def tr_reads(q):
        for h in range(2):
            t = tasks[2*q + h]
            wf = V_WF + 8 * (q % NR) + 4 * h
            t["wf"] = wf
            for b, (base, off) in enumerate(t["wr"]):
                t["last"] = S.lds(f"ds_read_b64_tr_b16 v[{wf+2*b}:{wf+2*b+1}], v{base} offset:{off}")
    def pre_reads(q):
        k = 0
        for h in range(2):
            t = tasks[2*q + h]
            for x in t["pre"]:
                t["last"] = S.lds(x); k += 1
        return k
    def barrier(step):
        for fs, fb in ((0, o.h0b), (1, o.h1b), (2, o.h2b)):
            if step == fb: assert fs in S.flags, f"flag {fs} must be sent before B_{fb} (the control wave waits for it there)"
        if o.astamp and o.astamp <= step < o.astamp + 6: S.emit(f"s_memtime s[{S_STAMP+16+2*(step-o.astamp)}:{S_STAMP+17+2*(step-o.astamp)}]")
        S.emit("s_waitcnt lgkmcnt(0)"); S.done = S.nlds
        S.emit("s_barrier")
    late_addr = [("v", f"v_and_b32 v{V_PV}, 31, v0"), ("v", f"v_lshrrev_b32 v{V_PF}, 5, v0"), ("v", f"v_lshlrev_b32 v{V_PV}, 4, v{V_PV}"),
                 ("v", f"v_mul_u32_u24 v{V_PF}, {24*24576}, v{V_PF}"), ("v", f"v_add_u32 v{V_PV}, v{V_PV}, v{V_PF}"),
                 ("v", f"v_mul_u32_u24 v{V_PF}, {24*48*FS[0]}, v0"), ("v", f"v_add_u32 v{V_PF}, s{S_PFB}, v{V_PF}")]
    budget = o.epb
    pubq = []
    fast_known = False
    barrier(0)
    for q0 in range(o.LP):
        tr_reads(q0); pre_reads(q0)
    for q in range(NP):
        cur[0] = q
        A, B = tasks[2*q], tasks[2*q+1]
        nq = q + o.LP
        deferred = False
        f9 = 6 * 9
        if o.ep2first and q == f9:
            S.emit("s_nop 7\ns_nop 3")
            side_start[0] = 0; S.hold_silu = 0
            pop_side(10**6)
            barrier(9)
            for q0 in range(f9, f9 + o.LP): tr_reads(q0); pre_reads(q0)
        if nq < NP and not (o.ep2first and f9 <= nq < f9 + o.LP):
            if tasks[2*nq]["first"]:
                barrier(tasks[2*nq]["step"]); deferred = True
            else:
                tr_reads(nq)
        skip_pre = o.ep2first and f9 <= nq < f9 + o.LP
        if A["first"] and A["step"] == 11:
            assert not any(x[0] == "silu" for x in side), "acc of sub-tile 2 still in use"
        S.wait_lds(max(A["last"], B["last"]))
        S.emit(A["mf"](A["wf"]))
        if deferred:
            if tasks[2*nq]["step"] == o.fastb: S.lds(f"ds_read_b32 v{V_FW}, v{V_FW}")
            tr_reads(nq); pre_reads(nq)
        else:
            k = pre_reads(nq) if (nq < NP and not skip_pre) else 0
            if not (o.ep2first and q >= f9 - 0 and side and side[0][0] == 'silu' and False): pop_side(budget if k == 0 else max(budget - 24, 4))
            if o.wgap2 and q + 1 < NP and k == 0 and "last" in tasks[2*q+2] and "last" in tasks[2*q+3]:
                S.wait_lds(max(tasks[2*q+2]["last"], tasks[2*q+3]["last"]))
        S.emit(B["mf"](B["wf"]))
        if A["first"] and A["step"] == o.fastb:
            S.emit(f"v_readfirstlane_b32 s{S_FAST}, v{V_FW}"); S.fast_ok = True
        im = B["idx"]
        if im == last_of_step.get(2):
            if o.latew: side.append(("v", "s_waitcnt vmcnt(0)"))
            side += silu_ops(V_ACC1, 0, o.x_noep) + [("gap", o.gap0)] + hflag_ops(0, 0); side_start[0] = S.count + 12; budget = o.epb0
        if im == last_of_step.get(5):
            assert not any(x[0] == "silu" or x[0] == "st" and "x4" in x[1] for x in side), len(side)
            side += silu_ops(V_ACC1 + 16, 1, o.x_noep); budget = o.epb
            S.hold_silu = S.count + 12
        if im == last_of_step.get(8):
            assert not side, len(side)
            ops2 = silu_ops(V_ACC1, 2, o.x_noep)
            k1 = min(o.f1pos, len(ops2) - 2)
            ops2 = ops2[:k1] + hflag_ops(1, 0) + ops2[k1:]
            side += ops2 + late_addr + [("gap", o.gap2)] + hflag_ops(2, 0); side_start[0] = S.count + 12; budget = o.epb2
        for u, at in ((0, o.pub0), (1, o.pub1)):
            if at and q >= NP - at and im >= last_u[u] + 4 and u not in pubq and not side:
                pubq.append(u); side += pubops(u); side_start[0] = S.count; budget = 24
    assert not side
    if o.x_pad:
        e(f"s_mov_b32 s60, {o.x_pad}\nL_xpad:\nv_mov_b32 v20, v21\nv_mov_b32 v22, v21\nv_mov_b32 v20, v21\nv_mov_b32 v22, v21\ns_sub_u32 s60, s60, 1\ns_cmp_lg_u32 s60, 0\ns_cbranch_scc1 L_xpad")
    e("s_nop 7")
    if o.stamps: e(f"s_memtime s[{S_STAMP+4}:{S_STAMP+5}]")
    e("s_nop 3")
    rest = [u for u in (0, 1, 2) if u not in pubq]
    order = pubq + rest
    for u in rest:
        for k, x in pubops(u): e(x)
    for i, u in enumerate(order):
        younger = 2 * (len(order) - 1 - i) + i
        if o.x_nopub: younger = i
        if o.stamps and i == 2: e(f"s_memtime s[{S_STAMP+14}:{S_STAMP+15}]")
        if o.sent and u == 2: continue
        pflag(e, u, younger)
    if o.stamps:
        e(f"s_memtime s[{S_STAMP+6}:{S_STAMP+7}]")
        e(f"s_cmp_lg_u32 s{S_WAVE}, 0\ns_cbranch_scc1 L_end\ns_waitcnt lgkmcnt(0)")
        e(f"s_lshl_b32 s3, s{S_CU}, 9\ns_add_u32 s3, s3, {WS_ST + 256}\ns_mov_b64 exec, 1\nv_mov_b32 v1, 0")
        for k in range(0, 16, 4):
            for q in range(4): e(f"v_mov_b32 v{4+q}, s{S_STAMP+k+q}")
            e(f"buffer_store_dwordx4 v[4:7], v1, s[{SRD_WS}:{SRD_WS+3}], s3 offen offset:{k*4}\ns_nop 1")
        if o.astamp:
            e(f"s_lshl_b32 s3, s{S_CU}, 9\ns_add_u32 s3, s3, {WS_ST + 192*512}")
            for k, r0 in enumerate((S_STAMP, S_STAMP+16, S_STAMP+20, S_STAMP+24)):
                for q in range(4): e(f"v_mov_b32 v{4+q}, s{r0+q}")
                e(f"buffer_store_dwordx4 v[4:7], v1, s[{SRD_WS}:{SRD_WS+3}], s3 offen offset:{k*16}\ns_nop 1")
        e("s_waitcnt vmcnt(0)")
    if o.gsplit:
        e(f"s_cmp_lt_u32 s{S_WAVE}, 3\ns_cbranch_scc1 L_gather")
    e("s_endpgm")

def gather(e, o):
    VT, VA, VL, VD, VS = 2, 4, 5, 8, 44
    S_U = 48
    e("L_gather:")
    e(f"""
    s_cmp_eq_u32 s{S_WAVE}, 7
    s_cbranch_scc1 L_end
    s_and_b32 s{S_U}, s{S_WAVE}, 3
    s_cmp_lt_u32 s{S_WAVE}, 4
    s_cselect_b32 s57, 1, 0
    s_mul_i32 s3, s{S_CU}, {48*FS[0]}
    s_min_u32 s50, s{S_U}, {1 if o.sent else 2}
    s_mul_i32 s50, s50, {16*FS[0]}
    s_add_u32 s3, s3, s50
    s_add_u32 s3, s3, {WS_PF if FS[0] == 8 else WS_PFX}
    v_mul_u32_u24 v{VA}, {FS[0]}, v0
    v_add_u32 v{VA}, s3, v{VA}
    v_lshlrev_b32 v{VL}, 4, v0
    v_mov_b32 v{VT}, s{S_TAG}
    v_mov_b32 v{VT+1}, s{S_TAG+1}
    s_mul_i32 s52, s{S_CU}, 24576
    s_lshl_b32 s53, s{S_U}, 10
    s_add_u32 s52, s52, s53
    s_add_u32 s52, s52, {WS_P}
    v_lshlrev_b32 v6, 1, v0
    s_lshl_b32 s50, s{S_MT}, 6
    s_lshl_b32 s51, s{S_J}, 3
    s_add_u32 s50, s50, s51
    s_mul_i32 s50, s50, 1152
    s_mul_i32 s51, s{S_G}, 384
    s_add_u32 s50, s50, s51
    s_lshl_b32 s51, s{S_U}, 7
    s_add_u32 s50, s50, s51
    s_add_u32 s53, s50, 4608
    s_mov_b32 s54, 0xffff0000
    """)
    if o.ppipe:
        e(f"""
        s_mov_b64 exec, 0xffff
        s_mov_b32 s{S_CNT}, {SPIN_MAX}
        buffer_load_dwordx2 v[40:41], v{VA}, s[{SRD_WS}:{SRD_WS+3}], 0 offen sc1
        L_pp:
        s_sleep {o.ppipe}
        buffer_load_dwordx2 v[42:43], v{VA}, s[{SRD_WS}:{SRD_WS+3}], 0 offen sc1
        s_waitcnt vmcnt(1)
        v_cmp_ne_u64 vcc, v[40:41], v[{VT}:{VT+1}]
        s_sub_u32 s{S_CNT}, s{S_CNT}, 1
        s_cmp_eq_u32 s{S_CNT}, 0
        s_cbranch_scc1 L_ppdone
        s_nop 1
        s_cbranch_vccz L_ppdone
        s_sleep {o.ppipe}
        buffer_load_dwordx2 v[40:41], v{VA}, s[{SRD_WS}:{SRD_WS+3}], 0 offen sc1
        s_waitcnt vmcnt(1)
        v_cmp_ne_u64 vcc, v[42:43], v[{VT}:{VT+1}]
        s_nop 4
        s_cbranch_vccnz L_pp
        L_ppdone:
        s_mov_b64 exec, -1
        """)
    else:
        _poll(e, o, "p", VA, 0, "0xffff", VT, 40, o.psleep)
    if o.stamps: e(f"s_memtime s[{S_STAMP+8}:{S_STAMP+9}]")
    if o.sent:
        e(f"s_cmp_eq_u32 s{S_U}, 2\ns_cbranch_scc1 L_gsent")
    if o.gsplit:
        e(f"s_lshl_b32 s56, s57, 3\ns_add_u32 s52, s52, s56\ns_mul_i32 s56, s57, 4608\ns_add_u32 s50, s50, s56")
    for p in range(8):
        if o.gsplit: e(f"buffer_load_dwordx2 v[{VD+4*p}:{VD+4*p+1}], v{VL}, s[{SRD_WS}:{SRD_WS+3}], s52 offen sc1")
        else: e(f"buffer_load_dwordx4 v[{VD+4*p}:{VD+4*p+3}], v{VL}, s[{SRD_WS}:{SRD_WS+3}], s52 offen sc1")
        if p < 7: e(f"s_add_u32 s52, s52, 3072")
    if o.sent:
        e(f"""
        s_branch L_gloaded
        L_gsent:
        s_mov_b32 s{S_CNT}, {SPIN_MAX}
        s_mov_b32 s55, {SENT:#x}
        L_gretry:
        s_mov_b32 s56, s52
        """)
        for p in range(8):
            e(f"buffer_load_dwordx4 v[{VD+4*p}:{VD+4*p+3}], v{VL}, s[{SRD_WS}:{SRD_WS+3}], s56 offen sc1")
            if p < 7: e(f"s_add_u32 s56, s56, 3072")
        e("s_mov_b64 s[58:59], 0")
        for p in range(8):
            e(f"s_waitcnt vmcnt({7-p})")
            e(f"v_cmp_eq_u32 vcc, s55, v{VD+4*p}\nv_cmp_eq_u32 s[60:61], s55, v{VD+4*p+3}")
            e(f"s_nop 0\ns_or_b64 s[58:59], s[58:59], vcc\ns_or_b64 s[58:59], s[58:59], s[60:61]")
        e(f"""
        s_sub_u32 s{S_CNT}, s{S_CNT}, 1
        s_cmp_eq_u32 s{S_CNT}, 0
        s_cbranch_scc1 L_gloaded
        s_cmp_eq_u64 s[58:59], 0
        s_cbranch_scc1 L_gloaded
        s_sleep {o.gsleep}
        s_branch L_gretry
        L_gloaded:
        """)
    e(f"""
    s_or_b32 s51, s{S_J}, s{S_G}
    s_or_b32 s51, s51, s{S_U}
    s_or_b32 s51, s51, s57
    s_cmp_lg_u32 s51, 0
    s_cbranch_scc1 L_noepoch
    s_lshl_b32 s51, s{S_MT}, 7
    v_mov_b32 v{VA}, s51
    s_mov_b64 exec, 1
    buffer_store_dwordx2 v[{VT}:{VT+1}], v{VA}, s[{SRD_WS}:{SRD_WS+3}], 0 offen sc1
    s_mov_b64 exec, -1
    s_waitcnt vmcnt(0)
    L_noepoch:
    """)
    ND = 2 if o.gsplit else 4
    for p in range(8):
        e(f"s_waitcnt vmcnt({7-p})")
        for d in range(ND):
            src = VD + 4 * p + d
            if p == 0:
                e(f"v_lshlrev_b32 v{VS+2*d}, 16, v{src}\nv_and_b32 v{VS+2*d+1}, s54, v{src}")
            else:
                e(f"v_lshlrev_b32 v{VS+8}, 16, v{src}\nv_and_b32 v{VS+9}, s54, v{src}")
                e(f"v_add_f32 v{VS+2*d}, v{VS+2*d}, v{VS+8}\nv_add_f32 v{VS+2*d+1}, v{VS+2*d+1}, v{VS+9}")
    for d in range(ND):
        e(f"v_cvt_pk_bf16_f32 v{VD+d}, v{VS+2*d}, v{VS+2*d+1}")
    if o.outx4:
        e(f"""
        s_lshl_b32 s51, s{S_U}, 10
        v_add_u32 v7, s51, v6
        v_lshl_add_u32 v{VA}, v0, 4, s51
        v_lshrrev_b32 v{VS+8}, 3, v0
        v_mul_u32_u24 v{VS+8}, 1152, v{VS+8}
        v_and_b32 v{VS+9}, 7, v0
        v_lshl_add_u32 v{VS+8}, v{VS+9}, 4, v{VS+8}
        """)
        for d in range(4):
            e(f"ds_write_b16 v7, v{VD+d} offset:{2*d*128}\nds_write_b16_d16_hi v7, v{VD+d} offset:{(2*d+1)*128}")
        e(f"""
        s_waitcnt lgkmcnt(0)
        ds_read_b128 v[{VD+4}:{VD+7}], v{VA}
        s_waitcnt lgkmcnt(0)
        buffer_store_dwordx4 v[{VD+4}:{VD+7}], v{VS+8}, s[{SRD_OUT}:{SRD_OUT+3}], s50 offen {"sc1" if o.outx4 == 2 else ""}
        """)
    else:
      for d in range(ND):
        so = "s50" if d < 2 else "s53"
        e(f"buffer_store_short v{VD+d}, v6, s[{SRD_OUT}:{SRD_OUT+3}], {so} offen offset:{(2*d % 4)*1152}")
        e(f"buffer_store_short_d16_hi v{VD+d}, v6, s[{SRD_OUT}:{SRD_OUT+3}], {so} offen offset:{((2*d+1) % 4)*1152}")
    if o.span:
        e(f"""
        s_waitcnt vmcnt(0)
        s_memrealtime s[{S_STAMP+2}:{S_STAMP+3}]
        s_waitcnt lgkmcnt(0)
        s_lshl_b32 s3, s{S_CU}, 6
        s_lshl_b32 s51, s{S_U}, 4
        s_add_u32 s3, s3, s51
        s_add_u32 s3, s3, {WS_ST}
        s_cmp_eq_u32 s57, 1
        s_cselect_b32 s3, {WS_ST + 192*64}, s3
        s_mov_b64 exec, 1
        v_mov_b32 v1, 0
        v_mov_b32 v4, s{S_STAMP}
        v_mov_b32 v5, s{S_STAMP+1}
        v_mov_b32 v6, s{S_STAMP+2}
        v_mov_b32 v7, s{S_STAMP+3}
        buffer_store_dwordx4 v[4:7], v1, s[{SRD_WS}:{SRD_WS+3}], s3 offen sc1
        """)
    if o.stamps:
        e(f"""
        s_cmp_lg_u32 s{S_WAVE}, 6
        s_cbranch_scc1 L_end
        s_waitcnt vmcnt(0)
        s_memtime s[{S_STAMP+10}:{S_STAMP+11}]
        s_memrealtime s[{S_STAMP+12}:{S_STAMP+13}]
        s_waitcnt lgkmcnt(0)
        s_lshl_b32 s3, s{S_CU}, 9
        s_add_u32 s3, s3, {WS_ST + 384}
        s_mov_b64 exec, 1
        v_mov_b32 v1, 0
        """)
        for k in range(0, 16, 4):
            for q in range(4): e(f"v_mov_b32 v{4+q}, s{S_STAMP+k+q}")
            e(f"buffer_store_dwordx4 v[4:7], v1, s[{SRD_WS}:{SRD_WS+3}], s3 offen offset:{k*4}\ns_nop 1")
        e("s_waitcnt vmcnt(0)")
    e("s_endpgm")

def prefetch2(e, o):
    e("L_prefetch:")
    e(f"""
    s_sub_u32 s52, s3, 24
    s_cmp_ge_u32 s{S_WAVE}, 4
    s_cbranch_scc1 L_pf_h
    v_min_u32 v1, 215, v0
    s_mov_b32 s{S_T0}, 21846
    v_mul_u32_u24 v2, s{S_T0}, v1
    v_lshrrev_b32 v2, 16, v2
    v_mul_u32_u24 v3, 3, v2
    v_sub_u32 v3, v1, v3
    v_mul_u32_u24 v4, 9216, v2
    v_mul_u32_u24 v3, 384, v3
    v_add_u32 v4, v4, v3
    s_mul_i32 s53, s52, {72*9216}
    s_mul_i32 s{S_T1}, s{S_J}, 1152
    s_add_u32 s53, s53, s{S_T1}
    s_add_u32 s53, s53, 128
    s_mov_b32 s{S_T0}, 7282
    v_mul_u32_u24 v5, s{S_T0}, v1
    v_lshrrev_b32 v5, 16, v5
    v_mul_u32_u24 v6, 9, v5
    v_sub_u32 v6, v1, v6
    s_mul_i32 s54, s52, 24
    v_add_u32 v5, s54, v5
    v_lshrrev_b32 v7, 6, v5
    v_and_b32 v5, 63, v5
    v_mul_u32_u24 v7, 192, v7
    v_add_u32 v5, v5, v7
    v_mul_u32_u24 v5, 1152, v5
    v_lshl_add_u32 v5, v6, 7, v5
    s_mul_i32 s55, s{S_J}, {576*1152}
    s_waitcnt lgkmcnt(0)
    """)
    srd(e, SRD_B, S_W1, 576*4608*2)
    srd(e, SRD_C, S_W2, 576*4608*2)
    for k in range(o.pfdelay):
        if o.probe1: e(f"s_sub_u32 s56, s53, 128\nv_and_b32 v9, 7, v1\nv_mul_u32_u24 v9, 9216, v9\nbuffer_load_dword v8, v9, s[{SRD_B}:{SRD_B+3}], s56 offen\ns_waitcnt vmcnt(0)")
        elif k == 0: e(f"s_sub_u32 s56, s53, 128\nbuffer_load_dword v8, v4, s[{SRD_B}:{SRD_B+3}], s56 offen\ns_waitcnt vmcnt(0)")
        else:
            srd(e, SRD_A, S_X, 512*576*2)
            e(f"s_mul_i32 s56, s52, {576*128}\ns_add_u32 s56, s56, {(k-1)*216*128}\nv_lshlrev_b32 v9, 7, v1\nbuffer_load_dword v8, v9, s[{SRD_A}:{SRD_A+3}], s56 offen\ns_waitcnt vmcnt(0)")
    e(f"""
    buffer_load_dword v8, v4, s[{SRD_B}:{SRD_B+3}], s53 offen
    s_waitcnt vmcnt(0)
    s_add_u32 s53, s53, 128
    buffer_load_dword v8, v4, s[{SRD_B}:{SRD_B+3}], s53 offen
    s_waitcnt vmcnt(0)
    buffer_load_dword v8, v5, s[{SRD_C}:{SRD_C+3}], s55 offen
    s_waitcnt vmcnt(0)
    s_add_u32 s55, s55, {64*1152}
    buffer_load_dword v8, v5, s[{SRD_C}:{SRD_C+3}], s55 offen
    s_waitcnt vmcnt(0)
    s_add_u32 s55, s55, {64*1152}
    buffer_load_dword v8, v5, s[{SRD_C}:{SRD_C+3}], s55 offen
    s_waitcnt vmcnt(0)
    s_endpgm
    L_pf_h:
    v_subrev_u32 v1, 256, v0
    v_min_u32 v1, 191, v1
    v_lshrrev_b32 v2, 6, v1
    v_and_b32 v3, 63, v1
    v_mul_u32_u24 v2, 24576, v2
    v_lshl_add_u32 v2, v3, 7, v2
    s_mul_i32 s53, s{S_J}, {24*24576}
    s_mul_i32 s54, s52, {3*24576}
    s_add_u32 s53, s53, s54
    s_add_u32 s53, s53, {WS_H}
    v_and_b32 v4, {7 if o.probe1 else 63}, v3
    v_mul_u32_u24 v4, 9216, v4
    s_mul_i32 s54, s52, {72*9216}
    s_mul_i32 s55, s{S_J}, 1152
    s_add_u32 s54, s54, s55
    s_waitcnt lgkmcnt(0)
    """)
    srd(e, SRD_B, S_W1, 576*4608*2)
    srd(e, SRD_WS, S_WS, WS_SIZE)
    if not o.ptouch:
        e("s_endpgm")
        return
    if o.bx:
        srd(e, SRD_A, S_X, 512*576*2)
        e(f"v_lshlrev_b32 v9, 7, v1\ns_mul_i32 s56, s52, {576*128}")
    for k in range(o.hdelay):
        if o.bx and k < 3:
            e(f"buffer_load_dword v8, v9, s[{SRD_A}:{SRD_A+3}], s56 offen\ns_waitcnt vmcnt(0)\ns_add_u32 s56, s56, {192*128}")
        else:
            e(f"buffer_load_dword v8, v4, s[{SRD_B}:{SRD_B+3}], s54 offen\ns_waitcnt vmcnt(0)\ns_add_u32 s54, s54, 384")
    for st in range(3):
        e(f"buffer_load_dword v8, v2, s[{SRD_WS}:{SRD_WS+3}], s53 offen\ns_waitcnt vmcnt(0)")
        if st < 2: e(f"s_add_u32 s53, s53, {UNIT}")
    e("s_endpgm")

def prefetch(e, o):
    if o.pfv == 2: return prefetch2(e, o)
    e("L_prefetch:")
    e(f"""
    s_sub_u32 s3, s3, 24
    s_mov_b32 s52, s3
    s_mov_b32 s{S_T0}, 10923
    v_mul_u32_u24 v1, s{S_T0}, v0
    v_lshrrev_b32 v1, 16, v1
    v_mul_u32_u24 v2, 6, v1
    v_sub_u32 v2, v0, v2
    v_lshrrev_b32 v3, 1, v2
    v_and_b32 v2, 1, v2
    v_mul_u32_u24 v3, 384, v3
    v_lshl_add_u32 v3, v2, 7, v3
    v_mul_u32_u24 v1, 9216, v1
    v_add_u32 v1, v1, v3
    s_mul_i32 s{S_T0}, s3, {72*9216}
    s_mul_i32 s{S_T1}, s{S_J}, 1152
    s_add_u32 s{S_T0}, s{S_T0}, s{S_T1}
    s_add_u32 s{S_T0}, s{S_T0}, 128
    s_mul_i32 s{S_T1}, s{S_J}, {576*1152}
    s_mul_i32 s3, s3, {72*1152}
    s_add_u32 s{S_T1}, s{S_T1}, s3
    v_lshlrev_b32 v4, 7, v0
    v_add_u32 v5, 65536, v4
    v_min_u32 v5, {647*128}, v5
    v_cmp_gt_u32 vcc, 432, v0
    s_waitcnt lgkmcnt(0)
    """)
    srd(e, SRD_B, S_W1, 576*4608*2)
    srd(e, SRD_C, S_W2, 576*4608*2)
    e(f"""
    v_mov_b32 v6, 0
    v_cndmask_b32 v1, v6, v1, vcc
    """)
    if o.sent and o.clrpos == 0:
        srd(e, SRD_WS, S_WS, WS_SIZE)
        clear_inboxes(e, o)
    if o.pfdelay:
        e(f"""
        v_min_u32 v15, {o.pfdelay * 8 - 1}, v0
        v_mul_u32_u24 v15, 9216, v15
        s_sub_u32 s53, s{S_T0}, 128
        buffer_load_dword v16, v15, s[{SRD_B}:{SRD_B+3}], s53 offen
        s_waitcnt vmcnt(0)
        """)
    if o.pfsplit:
        e(f"""
        v_cmp_eq_u32 vcc, 0, v2
        s_nop 1
        s_and_saveexec_b64 s[54:55], vcc
        buffer_load_dword v8, v1, s[{SRD_B}:{SRD_B+3}], s{S_T0} offen
        s_waitcnt vmcnt(0)
        s_andn2_b64 exec, s[54:55], exec
        buffer_load_dword v8, v1, s[{SRD_B}:{SRD_B+3}], s{S_T0} offen
        s_mov_b64 exec, s[54:55]
        """)
    else:
        e(f"buffer_load_dword v8, v1, s[{SRD_B}:{SRD_B+3}], s{S_T0} offen")
    if o.ptouch:
        srd(e, SRD_WS, S_WS, WS_SIZE)
        e(f"""
        s_mul_i32 s50, s{S_J}, {24*24576}
        s_mul_i32 s51, s52, {576*128}
        s_add_u32 s50, s50, s51
        s_add_u32 s50, s50, {WS_H}
        v_min_u32 v11, 63, v0
        v_lshlrev_b32 v11, 7, v11
        v_add_u32 v11, 65536, v11
        """)
    if o.ptouch == 3:
        e(f"""
        v_lshrrev_b32 v12, 6, v0
        v_min_u32 v12, 2, v12
        v_mul_u32_u24 v12, 24576, v12
        v_and_b32 v13, 63, v0
        v_lshl_add_u32 v14, v13, 7, v12
        v_add_u32 v14, 16384, v14
        """)
    e("s_waitcnt vmcnt(0)")
    if o.ptouch == 2:
        e(f"buffer_load_dword v12, v4, s[{SRD_WS}:{SRD_WS+3}], s50 offen\nbuffer_load_dword v13, v11, s[{SRD_WS}:{SRD_WS+3}], s50 offen")
    e(f"""
    buffer_load_dword v9, v4, s[{SRD_C}:{SRD_C+3}], s{S_T1} offen
    buffer_load_dword v10, v5, s[{SRD_C}:{SRD_C+3}], s{S_T1} offen
    s_waitcnt vmcnt(0)
    """)
    if o.ptouch == 3:
        e(f"buffer_load_dword v12, v14, s[{SRD_WS}:{SRD_WS+3}], s50 offen\ns_waitcnt vmcnt(0)")
    if o.ptouch == 1:
        e(f"buffer_load_dword v12, v4, s[{SRD_WS}:{SRD_WS+3}], s50 offen\nbuffer_load_dword v13, v11, s[{SRD_WS}:{SRD_WS+3}], s50 offen\ns_waitcnt vmcnt(0)")
    if o.sent and o.clrpos == 1: clear_inboxes(e, o)
    e("s_endpgm")

def clear_inboxes(e, o):
    e(f"""
    s_lshl_b32 s3, s52, 7
    s_load_dwordx2 s[{S_TAG}:{S_TAG+1}], s[{S_WS}:{S_WS+1}], s3
    s_mul_i32 s56, s{S_J}, 24
    s_mul_i32 s57, s52, 3
    s_add_u32 s56, s56, s57
    v_lshrrev_b32 v20, 6, v0
    v_and_b32 v21, 63, v0
    v_mul_u32_u24 v20, 3072, v20
    v_lshl_add_u32 v20, v21, 4, v20
    s_mul_i32 s57, s56, 24576
    s_add_u32 s57, s57, {WS_P + 2048}
    v_mov_b32 v24, {SENT:#x}
    v_mov_b32 v25, {SENT:#x}
    v_mov_b32 v26, {SENT:#x}
    v_mov_b32 v27, {SENT:#x}
    buffer_store_dwordx4 v[24:27], v20, s[{SRD_WS}:{SRD_WS+3}], s57 offen sc1
    s_add_u32 s57, s57, 24576
    buffer_store_dwordx4 v[24:27], v20, s[{SRD_WS}:{SRD_WS+3}], s57 offen sc1
    s_add_u32 s57, s57, 24576
    buffer_store_dwordx4 v[24:27], v20, s[{SRD_WS}:{SRD_WS+3}], s57 offen sc1
    s_waitcnt vmcnt(0) lgkmcnt(0)
    s_barrier
    s_add_u32 s{S_TAG}, s{S_TAG}, {TAGC_LO:#x}
    s_addc_u32 s{S_TAG+1}, s{S_TAG+1}, {TAGC_HI:#x}
    s_lshl_b32 s56, s56, 7
    s_add_u32 s56, s56, {WS_CF}
    v_mov_b32 v22, s{S_TAG}
    v_mov_b32 v23, s{S_TAG+1}
    v_lshlrev_b32 v21, 7, v0
    v_cmp_gt_u32 vcc, 3, v0
    s_nop 1
    s_and_saveexec_b64 s[54:55], vcc
    s_cbranch_execz L_clr_done
    buffer_store_dwordx2 v[22:23], v21, s[{SRD_WS}:{SRD_WS+3}], s56 offen sc1
    L_clr_done:
    s_mov_b64 exec, s[54:55]
    """)

def build(o):
    if o.order: P2[:] = P2B
    FS[0] = o.pfs
    _uid[0] = 0; OUTLINE.clear(); NOST[0] = o.x_nost; NOST[1] = o.x_nodsw; NOST[2] = o.hsc1; NOST[3] = o.hnt
    e = E(); prologue(e, o)
    parts = []
    ls = E(); loader_start(ls, o)
    for lw in range(3):
        x = E(); loader(x, o, lw); parts.append(("loader%d" % lw, x))
    x = E(); control(x, o); parts.append(("control", x))
    x = E(); prefetch(x, o); parts.append(("prefetch", x))
    x = E(); compute(x, o); parts.append(("compute", x))
    eg = E(); gather(eg, o)
    for k, v in parts:
        pre = e.text() + "\n" + (ls.text() + "\n" if k.startswith("loader") else "")
        pr = hazard.check(pre + v.text() + "\n" + eg.text())
        if pr: raise SystemExit(f"hazards in {k}")
    body = "\n".join([e.text(), ls.text()] + [v.text() for k, v in parts] + [eg.text(), "\n".join(OUTLINE), "L_end:", "s_endpgm"])
    nsgpr = 100 if o.stamps else 72
    hdr = f"""; Fused FFN: out = silu(x @ w1) @ w2   (M=512, D=576, F=4608), one launch.
; 192 compute workgroups = 8 F-slices (j) x 8 row tiles (mt) x 3 column groups (g): 4 MFMA waves, 3 LDS-DMA loader waves, 1 control wave;
; @launch grid=({NWG + o.npf},1,1) block=(512,1,1) lds={LDS_BYTES}
.amdgcn_target "amdgcn-amd-amdhsa--gfx950"
.text
.globl {KNAME}
.p2align 8
.type {KNAME},@function
{KNAME}:
"""
    tail = f"""
.section .rodata,"a"
.p2align 6
.amdhsa_kernel {KNAME}
  .amdhsa_next_free_vgpr 256
  .amdhsa_next_free_sgpr {nsgpr}
  .amdhsa_accum_offset 256
  .amdhsa_group_segment_fixed_size 0
  .amdhsa_kernarg_size 48
  .amdhsa_user_sgpr_count 2
  .amdhsa_user_sgpr_kernarg_segment_ptr 1
  .amdhsa_system_sgpr_workgroup_id_x 1
.end_amdhsa_kernel
"""
    return hdr + body + tail

if __name__ == "__main__":
    o = Opt()
    out = sys.argv[1]
    for a in sys.argv[2:]:
        k, v = a.split("=")
        setattr(o, k, bool(int(v)) if isinstance(getattr(Opt, k), bool) else int(v))
    open(out, "w").write(build(o))
    print("wrote", out)
```

```python
import sys, os
sys.path.insert(0, os.path.dirname(__file__))
import hazard

KNAME = "standalone__dense_activation_silu__sampling_kernel"
NWG = 192
NPF = 64
XH = 0
RING = 73728
R = 11
UNIT = 8192
LDS_BYTES = 163840
WS_E, WS_ID, WS_HF, WS_PF, WS_H, WS_P, WS_ST = 0, 4096, 32768, 65536, 262144, 5242880, 16777216
WS_PFX = 12582912
FS = [8]
WS_CF = 163840
SENT = 0x7F817F81
WS_SIZE = 0x10000000
TAGC_LO, TAGC_HI = 0x7F4A7C15, 0x9E3779B9
SPIN_MAX = 100000
FASTW = XH + 3 * UNIT

P2 = [(0,0),(1,0),(2,0), (0,1),(1,1),(2,1), (0,2),(1,2),(2,2), (3,0),(4,0),(5,0), (3,1),(4,1),(5,1),
      (6,0),(7,0),(8,0), (6,1),(7,1),(8,1), (3,2),(4,2),(5,2), (6,2),(7,2),(8,2)]
P2B = [(0,0),(1,0),(2,0), (0,1),(1,1),(2,1), (0,2),(1,2),(2,2), (3,0),(4,0),(5,0), (3,1),(4,1),(5,1),
       (3,2),(4,2),(5,2), (6,0),(7,0),(8,0), (6,1),(7,1),(8,1), (6,2),(7,2),(8,2)]
PCH = [(p % 3, p // 3) for p in range(9)]

class Opt:
    stamps = False
    LP = 3
    pairw = True
    pub0 = 17
    pub1 = 11
    DRAIN = 2
    epb = 52
    epb2 = 110
    f1pos = 8
    h0b = 8
    h1b = 11
    h2b = 13
    fastb = 4
    gap0 = 5
    gap2 = 4
    tlbw = False
    ctouch = False
    ptouch = 1
    t0b = 3
    t1b = 5
    t2b = 7
    order = 0
    touch = 2
    wgap2 = True
    ppipe = 0
    epb0 = 80
    sent = False
    gsleep = 1
    pf_nt = False
    ht_nt = False
    bx = 0
    probe1 = False
    latew = False
    lprio = 0
    cprio = 0
    gsplit = False
    x_perm = 0
    pfs = 8
    pfv = 2
    hdelay = 4
    clrpos = 1
    clrb = 4
    cfb = 7
    chkb = 15
    span = False
    x_pad = 0
    ep2first = False
    hnt = True
    pfdelay = 2
    pfsplit = True
    outx4 = 0
    tlbb = 0
    wbl2 = 0
    hsc1 = 0
    early = 1
    astamp = 0
    ep2_rate = 9
    prefetch_code = True
    prio = 0
    npf = 64
    force_slow = False
    sleep = 1
    w_nt = True
    x_noep = False
    x_nodma = False
    x_nopub = False
    x_nost = False
    x_hplain = False
    x_nodsw = False
    psleep = 1
    stampset = 0

class E:
    def __init__(self): self.L = []
    def __call__(self, s):
        for l in s.split("\n"):
            l = l.strip()
            if l: self.L.append(l)
    def text(self): return "\n".join(self.L)

S_X, S_W1, S_W2, S_OUT, S_WS = 4, 6, 8, 10, 12
S_J, S_MT, S_G, S_WAVE, S_CU = 14, 15, 16, 17, 18
S_FAST = 19
S_TAG = 20
S_T0, S_T1 = 22, 23
SRD_A, SRD_B, SRD_C = 24, 28, 32
SRD_WS, SRD_OUT = 36, 40
S_G1, S_G2 = 44, 45
S_CNT = 46
S_STAMP = 64

def srd(e, d, base, size):
    e(f"s_mov_b32 s{d}, s{base}\ns_and_b32 s{d+1}, s{base+1}, 0xffff\ns_mov_b32 s{d+2}, {size}\ns_mov_b32 s{d+3}, 0x20000")

def prologue(e, o):
    e(f"""
    s_cmp_ge_u32 s2, {NWG + o.npf}
    s_cbranch_scc1 L_end
    s_load_dwordx4 s[4:7], s[0:1], 0
    s_load_dwordx4 s[8:11], s[0:1], 16
    s_load_dwordx2 s[12:13], s[0:1], 40
    """)
    if o.x_perm == 1:
        e("s_lshr_b32 s3, s2, 3\ns_and_b32 s3, s3, 7\ns_xor_b32 s2, s2, s3")
    if o.x_perm == 2:
        e("s_lshr_b32 s3, s2, 5\ns_and_b32 s3, s3, 1\ns_lshr_b32 s22, s2, 3\ns_and_b32 s3, s3, s22\ns_xor_b32 s2, s2, s3")
    if o.prefetch_code:
        e(f"""
        s_getpc_b64 s[{S_T0}:{S_T0+1}]
        L_pf:
        v_lshlrev_b32 v1, 7, v0
        v_min_u32 v1, L_end-L_pf, v1
        global_load_dword v31, v1, s[{S_T0}:{S_T0+1}]
        """)
    if o.stamps:
        e(f"s_memrealtime s[{S_STAMP}:{S_STAMP+1}]\ns_memtime s[{S_STAMP+2}:{S_STAMP+3}]")
    if o.span:
        e(f"s_memrealtime s[{S_STAMP}:{S_STAMP+1}]")
    e(f"""
    v_lshrrev_b32 v1, 6, v0
    s_and_b32 s{S_J}, s2, 7
    s_lshr_b32 s3, s2, 3
    v_readfirstlane_b32 s{S_WAVE}, v1
    s_cmp_ge_u32 s2, {NWG}
    s_cbranch_scc1 L_prefetch
    s_mul_i32 s{S_MT}, s3, 171
    s_lshr_b32 s{S_MT}, s{S_MT}, 9
    s_mul_i32 s{S_G}, s{S_MT}, 3
    s_sub_u32 s{S_G}, s3, s{S_G}
    v_and_b32 v0, 63, v0
    s_cmp_lt_u32 s{S_WAVE}, 4
    s_cbranch_scc1 L_compute
    s_cmp_eq_u32 s{S_WAVE}, 7
    s_cbranch_scc1 L_control
    """)

def common_ids(e):
    e(f"""
    s_add_u32 s{S_G1}, s{S_G}, 1
    s_cmp_eq_u32 s{S_G1}, 3
    s_cselect_b32 s{S_G1}, 0, s{S_G1}
    s_add_u32 s{S_G2}, s{S_G1}, 1
    s_cmp_eq_u32 s{S_G2}, 3
    s_cselect_b32 s{S_G2}, 0, s{S_G2}
    s_lshl_b32 s{S_CU}, s{S_J}, 3
    s_add_u32 s{S_CU}, s{S_CU}, s{S_MT}
    s_mul_i32 s{S_CU}, s{S_CU}, 3
    s_add_u32 s{S_CU}, s{S_CU}, s{S_G}
    s_lshl_b32 s3, s{S_MT}, 7
    """)

def load_epoch(e):
    e(f"s_load_dwordx2 s[{S_TAG}:{S_TAG+1}], s[{S_WS}:{S_WS+1}], s3")
    srd(e, SRD_WS, S_WS, WS_SIZE)
    srd(e, SRD_OUT, S_OUT, 512*576*2)

def finish_tag(e):
    e(f"""
    s_waitcnt lgkmcnt(0)
    s_add_u32 s{S_TAG}, s{S_TAG}, {TAGC_LO:#x}
    s_addc_u32 s{S_TAG+1}, s{S_TAG+1}, {TAGC_HI:#x}
    """)

def dma_unit(e, srd_r, vp, s_off, half_step, lds, flags="", s_tmp=61, s_lb=None):
    pats = vp if len(vp) == 4 else vp * 4
    m0 = (lambda c: f"s_mov_b32 m0, {c}") if s_lb is None else (lambda c: f"s_add_u32 m0, s{s_lb}, {c}")
    e(f"{m0(lds)}\ns_add_u32 s{s_tmp}, s{s_off}, {half_step}")
    for k in range(4):
        e(f"buffer_load_dwordx4 v{pats[k]}, s[{srd_r}:{srd_r+3}], s{s_off} offen offset:{1024*k} {flags} lds")
    e(f"{m0(lds + 4096)}\ns_nop 0")
    for k in range(4):
        e(f"buffer_load_dwordx4 v{pats[k]}, s[{srd_r}:{srd_r+3}], s{s_tmp} offen offset:{1024*k} {flags} lds")

def issue_barrier(n): return -1 if n < R else (n - R) // 3 + 1

V_LX, V_LW1, V_LW2 = 8, 12, 16
S_C = [48, 49, 50]; S_XO = [51, 52, 53]; S_WO = [54, 55, 56]; S_GB = [57, 58, 59]; S_OFF = 60
S_LW, S_LB = 62, 63
S_LH = 47
V_LIN = 20

def lstamp(e, o, k):
    if o.stamps and not o.astamp: e(f"s_memtime s[{S_STAMP+16+2*k}:{S_STAMP+17+2*k}]")

def loader_start(e, o):
    wf = "nt" if o.w_nt else ""
    if o.lprio: e(f"s_setprio {o.lprio}")
    e(f"""
    s_sub_u32 s{S_LW}, s{S_WAVE}, 4
    v_lshrrev_b32 v1, 3, v0
    v_and_b32 v2, 7, v0
    v_lshrrev_b32 v6, 1, v1
    v_mul_u32_u24 v5, 1152, v1
    v_xor_b32 v6, v2, v6
    v_lshlrev_b32 v7, 4, v6
    v_add_u32 v{V_LX}, v5, v7
    v_xor_b32 v7, 64, v7
    v_add_u32 v{V_LX+1}, v5, v7
    v_add_u32 v{V_LX+1}, {9216-1024}, v{V_LX+1}
    v_add_u32 v{V_LX+2}, {2*(9216-1024)}, v{V_LX}
    v_add_u32 v{V_LX+3}, {2*(9216-1024)}, v{V_LX+1}
    s_mul_i32 s{S_T0}, s{S_G}, 3
    s_add_u32 s{S_T0}, s{S_T0}, s{S_MT}
    s_add_u32 s{S_T0}, s{S_T0}, s{S_LW}
    s_cmp_ge_u32 s{S_T0}, 9
    s_cselect_b32 s{S_T1}, 9, 0
    s_sub_u32 s{S_C[0]}, s{S_T0}, s{S_T1}
    s_mul_i32 s{S_T0}, s{S_MT}, {64*1152}
    s_lshl_b32 s{S_XO[0]}, s{S_C[0]}, 7
    s_add_u32 s{S_XO[0]}, s{S_XO[0]}, s{S_T0}
    s_lshl_b32 s{S_LB}, s{S_LW}, 13
    v_and_b32 v3, 2, v1
    v_lshlrev_b32 v3, 1, v3
    v_xor_b32 v3, v2, v3
    v_lshlrev_b32 v3, 4, v3
    v_mul_u32_u24 v4, 9216, v1
    v_add_u32 v{V_LW1}, v4, v3
    v_add_u32 v{V_LW2}, v5, v3
    s_mul_i32 s{S_T1}, s{S_J}, 1152
    s_mul_i32 s3, s{S_G}, 384
    s_add_u32 s{S_T1}, s{S_T1}, s3
    s_mul_i32 s3, s{S_C[0]}, {64*9216}
    s_add_u32 s{S_WO[0]}, s{S_T1}, s3
    v_add_u32 v{V_LW1+1}, {1*(73728-1024)}, v{V_LW1}
    v_add_u32 v{V_LW1+2}, {2*(73728-1024)}, v{V_LW1}
    v_add_u32 v{V_LW1+3}, {3*(73728-1024)}, v{V_LW1}
    s_waitcnt lgkmcnt(0)
    """)
    lstamp(e, o, 0)
    srd(e, SRD_A, S_X, 512*576*2)
    XP = [V_LX, V_LX+1, V_LX+2, V_LX+3]; WP = [V_LW1, V_LW1+1, V_LW1+2, V_LW1+3]
    dma_unit(e, SRD_A, XP, S_XO[0], 4*9216, XH, s_lb=S_LB)
    srd(e, SRD_B, S_W1, 576*4608*2)
    dma_unit(e, SRD_B, WP, S_WO[0], 4*73728, RING, wf, s_lb=S_LB)
    lstamp(e, o, 1)
    for k in (1, 2):
        e(f"""
        s_add_u32 s3, s{S_C[k-1]}, 3
        s_cmp_ge_u32 s3, 9
        s_cselect_b32 s{S_C[k]}, 9, 0
        s_sub_u32 s{S_C[k]}, s3, s{S_C[k]}
        s_lshl_b32 s3, s{S_C[k]}, 7
        s_add_u32 s{S_XO[k]}, s{S_T0}, s3
        s_mul_i32 s3, s{S_C[k]}, {64*9216}
        s_add_u32 s{S_WO[k]}, s{S_T1}, s3
        """)
        if (k == 1 and o.early < 2) or not o.early:
            dma_unit(e, SRD_A, XP, S_XO[k], 4*9216, XH + 3*k*UNIT, s_lb=S_LB)
            dma_unit(e, SRD_B, WP, S_WO[k], 4*73728, RING + 3*k*UNIT, wf, s_lb=S_LB)
    if not o.early:
        e(f"s_cmp_eq_u32 s{S_LW}, 2\ns_cbranch_scc1 L_ld_no4")
        e(f"s_add_u32 s{S_OFF}, s{S_WO[0]}, 128")
        dma_unit(e, SRD_B, WP, S_OFF, 4*73728, RING + 9*UNIT, wf, s_lb=S_LB)
        e("L_ld_no4:")
    lstamp(e, o, 2)
    common_ids(e)
    srd(e, SRD_C, S_W2, 576*4608*2)
    for k in (1, 2, 3):
        e(f"v_add_u32 v{V_LW2+k}, {k*(9216-1024)}, v{V_LW2}")
    e(f"""
    s_mul_i32 s{S_T0}, s{S_J}, {576*1152}
    s_mul_i32 s{S_T1}, s{S_G}, 384
    s_add_u32 s{S_T0}, s{S_T0}, s{S_T1}
    """)
    for k, sg in enumerate((S_G, S_G1, S_G2)):
        e(f"s_mul_i32 s3, s{sg}, {192*1152}\ns_add_u32 s{S_GB[k]}, s{S_T0}, s3")
    e(f"""
    s_cmp_eq_u32 s{S_LW}, 1
    s_cselect_b32 s3, s{S_G1}, s{S_G}
    s_cmp_eq_u32 s{S_LW}, 2
    s_cselect_b32 s3, s{S_G2}, s3
    s_sub_u32 s{S_LH}, s{S_CU}, s{S_G}
    s_add_u32 s{S_LH}, s{S_LH}, s3
    s_mul_i32 s{S_LH}, s{S_LH}, 24576
    s_add_u32 s{S_LH}, s{S_LH}, {WS_H}
    v_lshlrev_b32 v{V_LIN}, 4, v0
    """)
    e(f"s_lshl_b32 s3, s{S_MT}, 7")
    load_epoch(e)
    finish_tag(e)
    e(f"""
    s_cmp_eq_u32 s{S_LW}, 1
    s_cbranch_scc1 L_loader1
    s_cmp_eq_u32 s{S_LW}, 2
    s_cbranch_scc1 L_loader2
    """)

def loader(e, o, lw):
    wf = "nt" if o.w_nt else ""
    WP = [V_LW1, V_LW1+1, V_LW1+2, V_LW1+3]; W2P = [V_LW2, V_LW2+1, V_LW2+2, V_LW2+3]
    e(f"L_loader{lw}:")
    XP = [V_LX, V_LX+1, V_LX+2, V_LX+3]
    if o.early == 2: seq = [("x", lw), ("w", lw)]
    elif o.early: seq = [("x", lw), ("w", lw), ("x", 3+lw), ("w", 3+lw)]
    else: seq = [("x", lw), ("w", lw), ("x", 3+lw), ("w", 3+lw), ("x", 6+lw), ("w", 6+lw)] + ([("w", 9+lw)] if 9 + lw < R else [])
    def issue_w(n):
        slot = n % R
        if n < 27:
            s, i = n // 9, n % 9
            t = i // 3
            e(f"s_add_u32 s{S_OFF}, s{S_WO[t]}, {128*s}")
            dma_unit(e, SRD_B, WP, S_OFF, 4*73728, RING + slot*UNIT, wf)
        else:
            p, u = P2[n - 27]
            k, s = PCH[p]
            e(f"s_add_u32 s{S_OFF}, s{S_GB[k]}, {73728*s + 128*u}")
            dma_unit(e, SRD_C, W2P, S_OFF, 4*9216, RING + slot*UNIT, wf)
        seq.append(("w", n))
    hb = {o.h0b: 0, o.h1b: 1, o.h2b: 2}
    hneed = {9: 0, 12: 1, (15 if o.order else 14): 2}
    for st in range(18):
        need = [("w", 3*st + lw)] + ([("x", 3*st + lw)] if st < 3 else []) + ([("h", hneed[st])] if st in hneed else [])
        last = max(seq.index(x) for x in need)
        n = 8 * (len(seq) - 1 - last)
        assert n <= 63
        e(f"s_waitcnt vmcnt({n})")
        if st == 0 and not o.astamp: lstamp(e, o, 3)
        if o.astamp and o.astamp <= st < o.astamp + 6: e(f"s_memtime s[{S_STAMP+16+2*(st-o.astamp)}:{S_STAMP+17+2*(st-o.astamp)}]")
        e("s_barrier")
        if st in hb:
            sg = hb[st]
            e(f"s_add_u32 s{S_OFF}, s{S_LH}, {sg*UNIT}")
            dma_unit(e, SRD_WS, [V_LIN], S_OFF, 4096, XH + (3*sg + lw)*UNIT, "" if o.x_hplain else "sc1"); seq.append(("h", sg))
        if o.early == 2 and st == 0:
            dma_unit(e, SRD_A, XP, S_XO[1], 4*9216, XH + (3 + lw)*UNIT); seq.append(("x", 3 + lw))
            issue_w(3 + lw)
        if o.early and st == 0:
            dma_unit(e, SRD_A, XP, S_XO[2], 4*9216, XH + (6 + lw)*UNIT); seq.append(("x", 6 + lw))
            issue_w(6 + lw)
        if o.early and st == 1 and 9 + lw < R: issue_w(9 + lw)
        for nn in range(R, 54):
            if nn % 3 == lw and issue_barrier(nn) == st:
                if o.x_nodma: seq.append(('w', nn))
                else: issue_w(nn)
    if o.stamps and (lw == 0 or o.astamp):
        base = WS_ST + 192 if not o.astamp else WS_ST + 192*512 + (1 + lw)*64
        e(f"s_waitcnt lgkmcnt(0)\ns_lshl_b32 s3, s{S_CU}, 9\ns_add_u32 s3, s3, {base}\ns_mov_b64 exec, 1\nv_mov_b32 v1, 0")
        for k, r0 in enumerate((S_STAMP, S_STAMP+16, S_STAMP+20, S_STAMP+24)):
            for q in range(4): e(f"v_mov_b32 v{4+q}, s{r0+q}")
            e(f"buffer_store_dwordx4 v[4:7], v1, s[{SRD_WS}:{SRD_WS+3}], s3 offen offset:{k*16}\ns_nop 1")
        e("s_mov_b64 exec, -1")
    e("s_branch L_gather")

def _poll(e, o, name, vaddr, imm, mask, vtag, vtmp, sleep=None):
    sleep = o.sleep if sleep is None else sleep
    e(f"""
    s_mov_b64 exec, {mask}
    s_mov_b32 s{S_CNT}, {SPIN_MAX}
    L_poll_{name}:
    buffer_load_dwordx2 v[{vtmp}:{vtmp+1}], v{vaddr}, s[{SRD_WS}:{SRD_WS+3}], 0 offen offset:{imm} sc1
    s_waitcnt vmcnt(0)
    v_cmp_ne_u64 vcc, v[{vtmp}:{vtmp+1}], v[{vtag}:{vtag+1}]
    s_sub_u32 s{S_CNT}, s{S_CNT}, 1
    s_cmp_eq_u32 s{S_CNT}, 0
    s_cbranch_scc1 L_polldone_{name}
    s_nop 1
    s_cbranch_vccz L_polldone_{name}
    """)
    if sleep: e(f"s_sleep {sleep}")
    e(f"""
    s_branch L_poll_{name}
    L_polldone_{name}:
    s_mov_b64 exec, -1
    """)

def control(e, o):
    V_LIN, V_POLL, V_TAG, V_TMP, V_ID = 8, 9, 10, 12, 14
    S_OFF, S_H1, S_H2, S_XCC, S_H0 = 60, 48, 49, 50, 51
    e("L_control:")
    if o.cprio: e(f"s_setprio {o.cprio}")
    common_ids(e)
    e("s_waitcnt lgkmcnt(0)")
    load_epoch(e)
    def tlb_warm():
        e(f"""
        v_min_u32 v26, 39, v0
        v_lshlrev_b32 v26, 18, v26
        buffer_load_dword v29, v26, s[{SRD_WS}:{SRD_WS+3}], 0 offen offset:2048 sc1
        v_min_u32 v27, 8, v0
        v_lshlrev_b32 v27, 16, v27
        buffer_load_dword v28, v27, s[{SRD_OUT}:{SRD_OUT+3}], 0 offen sc1
        """)
    if o.tlbw and not o.tlbb: tlb_warm()
    e(f"""
    s_getreg_b32 s{S_XCC}, hwreg(HW_REG_XCC_ID, 0, 4)
    v_lshlrev_b32 v{V_LIN}, 4, v0
    s_sub_u32 s{S_T0}, s{S_CU}, s{S_G}
    s_add_u32 s{S_H1}, s{S_T0}, s{S_G1}
    s_add_u32 s{S_H2}, s{S_T0}, s{S_G2}
    s_lshl_b32 s{S_T0}, s{S_H1}, 7
    s_lshl_b32 s{S_T1}, s{S_H2}, 7
    v_mov_b32 v1, s{S_T0}
    v_mov_b32 v2, s{S_T1}
    s_lshl_b32 s{S_OFF}, s{S_CU}, 7
    v_mov_b32 v7, s{S_OFF}
    v_lshrrev_b32 v3, 2, v0
    v_cmp_eq_u32 vcc, 1, v3
    v_and_b32 v6, 3, v0
    v_lshlrev_b32 v6, 3, v6
    v_cndmask_b32 v4, v7, v1, vcc
    v_cmp_eq_u32 vcc, 2, v3
    s_mul_i32 s{S_H1}, s{S_H1}, 24576
    s_mul_i32 s{S_H2}, s{S_H2}, 24576
    v_cndmask_b32 v4, v4, v2, vcc
    v_add_u32 v4, {WS_HF}, v4
    v_add_u32 v{V_POLL}, v4, v6
    v_cmp_eq_u32 vcc, 0, v0
    s_mul_i32 s{S_H0}, s{S_CU}, 24576
    s_add_u32 s{S_H0}, s{S_H0}, {WS_H}
    v_cndmask_b32 v4, v2, v1, vcc
    v_add_u32 v{V_ID}, {WS_ID}, v4
    s_add_u32 s{S_H1}, s{S_H1}, {WS_H}
    s_add_u32 s{S_H2}, s{S_H2}, {WS_H}
    """)
    finish_tag(e)
    e(f"""
    s_add_u32 s{S_T0}, s{S_XCC}, 16
    s_add_u32 s{S_T0}, s{S_TAG}, s{S_T0}
    s_addc_u32 s{S_T1}, s{S_TAG+1}, 0
    v_mov_b32 v4, s{S_T0}
    v_mov_b32 v5, s{S_T1}
    s_lshl_b32 s3, s{S_CU}, 7
    s_add_u32 s3, s3, {WS_ID}
    v_mov_b32 v6, s3
    v_mov_b32 v{V_TAG}, s{S_TAG}
    v_mov_b32 v{V_TAG+1}, s{S_TAG+1}
    s_mov_b64 exec, 1
    buffer_store_dwordx2 v[4:5], v6, s[{SRD_WS}:{SRD_WS+3}], 0 offen sc1
    s_mov_b64 exec, -1
    """)
    def hdma(s):
        for k, sh in enumerate((S_H0, S_H1, S_H2)):
            p = 3 * s + k
            e(f"s_add_u32 s{S_OFF}, s{sh}, {s*UNIT}")
            dma_unit(e, SRD_WS, [V_LIN], S_OFF, 4096, XH + p * UNIT, "sc1")
    def stamp(k):
        if o.stamps: e(f"s_memtime s[{S_STAMP+4+2*k}:{S_STAMP+5+2*k}]\ns_waitcnt lgkmcnt(0)")
    bl = [0,1,2,3,6,9,10,11,12,13,14,15,16,17] if o.stampset == 0 else [0,2,3,4,5,6,7,8,9,10,11,12,14,17]
    slots = {b: i for i, b in enumerate(bl)}
    for st in range(18):
        if st == o.fastb - 2:
            e(f"s_mov_b64 exec, 3\nbuffer_load_dwordx2 v[{V_TMP}:{V_TMP+1}], v{V_ID}, s[{SRD_WS}:{SRD_WS+3}], 0 offen sc1\ns_mov_b64 exec, -1")
        if o.touch and st == o.fastb - 2:
            e(f"""
            v_lshlrev_b32 v20, 7, v0
            s_mul_i32 s{S_OFF}, s{S_CU}, {48*FS[0]}
            s_add_u32 s{S_OFF}, s{S_OFF}, {WS_PF if FS[0] == 8 else WS_PFX}
            s_mov_b64 exec, {"7" if FS[0] == 8 else "-1"}
            buffer_load_dword v24, v20, s[{SRD_WS}:{SRD_WS+3}], s{S_OFF} offen sc1
            s_lshl_b32 s{S_OFF}, s{S_CU}, 7
            s_add_u32 s{S_OFF}, s{S_OFF}, {WS_HF}
            s_mov_b64 exec, 1
            buffer_load_dword v25, v20, s[{SRD_WS}:{SRD_WS+3}], s{S_OFF} offen
            s_mov_b64 exec, -1
            """)
        for sg, tb in enumerate((o.t0b, o.t1b, o.t2b)):
            if o.ctouch and st == tb:
                e(f"""
                s_mul_i32 s{S_OFF}, s{S_CU}, 24576
                s_add_u32 s{S_OFF}, s{S_OFF}, {WS_H + sg*UNIT}
                buffer_load_dword v{21+sg}, v20, s[{SRD_WS}:{SRD_WS+3}], s{S_OFF} offen
                """)
        if st == o.fastb: e("s_waitcnt lgkmcnt(0)")
        if st == o.fastb - 1:
            e(f"""
            s_mov_b64 exec, 3
            s_mov_b32 s{S_CNT}, {SPIN_MAX}
            s_waitcnt vmcnt({(2 + (o.ctouch and o.fastb - 2 <= o.t0b <= o.fastb - 1)) if o.touch else 0})
            s_branch L_check_id
            L_poll_id:
            buffer_load_dwordx2 v[{V_TMP}:{V_TMP+1}], v{V_ID}, s[{SRD_WS}:{SRD_WS+3}], 0 offen sc1
            s_waitcnt vmcnt(0)
            L_check_id:
            v_subrev_co_u32 v4, vcc, s{S_TAG}, v{V_TMP}
            v_mov_b32 v6, s{S_TAG+1}
            s_nop 0
            v_subb_co_u32 v5, vcc, v{V_TMP+1}, v6, vcc
            v_subrev_u32 v4, 16, v4
            v_lshrrev_b32 v6, 4, v4
            v_or_b32 v6, v6, v5
            v_cmp_ne_u32 vcc, 0, v6
            s_sub_u32 s{S_CNT}, s{S_CNT}, 1
            s_cmp_eq_u32 s{S_CNT}, 0
            s_cbranch_scc1 L_id_done
            s_nop 1
            s_cbranch_vccz L_id_done
            s_sleep 1
            s_branch L_poll_id
            L_id_done:
            v_cmp_ne_u32 vcc, s{S_XCC}, v4
            s_mov_b32 s{S_FAST}, {0 if o.force_slow else 1}
            s_nop 1
            s_cmp_eq_u64 vcc, 0
            s_cselect_b32 s{S_FAST}, s{S_FAST}, 0
            s_mov_b64 exec, 1
            v_mov_b32 v4, s{S_FAST}
            v_mov_b32 v5, {FASTW}
            ds_write_b32 v5, v4
            s_mov_b64 exec, -1
            """)
        if o.sent and st == o.h0b - 1:
            e(f"""
            s_mul_i32 s3, s{S_MT}, 3
            s_add_u32 s3, s3, s{S_G}
            s_lshl_b32 s3, s3, 7
            s_add_u32 s3, s3, {WS_CF}
            v_mul_u32_u24 v37, {24*128}, v0
            v_add_u32 v37, s3, v37
            """)
        if st == o.h0b: _poll(e, o, "h0", V_POLL, 0, "0xfff", V_TAG, V_TMP)
        if o.sent and st == o.h0b:
            e(f"s_mov_b64 exec, 0xff\nbuffer_load_dwordx2 v[38:39], v37, s[{SRD_WS}:{SRD_WS+3}], 0 offen sc1\ns_mov_b64 exec, -1")
        if st == o.h1b: _poll(e, o, "h1", V_POLL, 32, "0xfff", V_TAG, V_TMP)
        if o.sent and st == o.h1b:
            e(f"""
            s_mov_b64 exec, 0xff
            v_cmp_ne_u64 vcc, v[38:39], v[{V_TAG}:{V_TAG+1}]
            s_nop 4
            s_mov_b64 exec, -1
            s_cbranch_vccz L_cf_ok
            """)
            _poll(e, o, "cf", 37, 0, "0xff", V_TAG, V_TMP)
            e("L_cf_ok:")
        if st == o.h2b: _poll(e, o, "h2", V_POLL, 64, "0xfff", V_TAG, V_TMP)
        e("s_barrier")
        if o.tlbw and o.tlbb and st == o.tlbb: tlb_warm()
        if o.wbl2 and st == o.wbl2:
            e(f"""
            s_or_b32 s3, s{S_MT}, s{S_G}
            s_cmp_lg_u32 s3, 0
            s_cbranch_scc1 L_nowb
            buffer_wbl2 sc1
            L_nowb:
            """)
        if st in slots: stamp(slots[st])
    if o.stamps:
        e(f"s_waitcnt lgkmcnt(0)")
        e(f"s_lshl_b32 s3, s{S_CU}, 9\ns_add_u32 s3, s3, {WS_ST}")
        e("s_mov_b64 exec, 1\nv_mov_b32 v1, 0")
        for k in range(0, 32, 4):
            for q in range(4): e(f"v_mov_b32 v{4+q}, s{S_STAMP+k+q}")
            e(f"buffer_store_dwordx4 v[4:7], v1, s[{SRD_WS}:{SRD_WS+3}], s3 offen offset:{k*4}\ns_nop 1")
        e(f"v_mov_b32 v4, s{S_FAST}\nbuffer_store_dword v4, v1, s[{SRD_WS}:{SRD_WS+3}], s3 offen offset:128")
        e("s_mov_b64 exec, -1")
    e("s_branch L_gather")

V_T1, V_T1B, V_T2, V_T2B = 2, 3, 4, 5
V_X = 6; V_X8 = 10
V_PF, V_PV = 6, 7
V_H, V_H8, V_FW, V_HG = 14, 15, 16, 17
V_HF = 1
V_TAG = 18
V_EP = 20
V_P = 24
V_WF = 32
V_ACC1 = 64
V_XF = 112
S_MH, S_NH, S_HST, S_NL2E = 48, 49, 50, 51
S_PO = 52
S_PFB = 54

class Stream:
    def __init__(self, e): self.e = e; self.nlds = 0; self.done = 0; self.count = 0; self.fast_ok = False; self.flags = set(); self.hold_silu = 0
    def emit(self, s):
        for l in s.split("\n"):
            l = l.strip()
            if l:
                self.e(l)
                if not l.endswith(":"): self.count += 1
    def lds(self, s):
        self.emit(s); self.nlds += 1; return self.nlds
    def wait_lds(self, opid):
        if opid <= self.done: return
        n = min(self.nlds - opid, 15)
        self.emit(f"s_waitcnt lgkmcnt({n})"); self.done = self.nlds - n

_uid = [0]
OUTLINE = []
NOST = [False, False, 0, False]
def dual(txt, force_sc1=False):
    if force_sc1: return txt + " sc1"
    _uid[0] += 1; k = _uid[0]
    OUTLINE.append(f"L_ds{k}:\n{txt} sc1\ns_branch L_dd{k}")
    nt = " nt" if (NOST[3] and "dwordx4" in txt) else ""
    return (f"s_cmp_eq_u32 s{S_FAST}, 0\ns_cbranch_scc1 L_ds{k}\n{txt}{nt}\nL_dd{k}:")

def silu_ops(acc, s, noep=False):
    ops = []
    for q in range(4):
        v = [acc + 4 * q + r for r in range(4)]
        t = [V_EP + r for r in range(4)]
        if not noep:
            for r in range(4): ops.append(("silu", f"v_mul_f32 v{t[r]}, s{S_NL2E}, v{v[r]}"))
            for r in range(4): ops.append(("v", f"v_exp_f32 v{t[r]}, v{t[r]}"))
            for r in range(4): ops.append(("v", f"v_add_f32 v{t[r]}, 1.0, v{t[r]}"))
            for r in range(4): ops.append(("v", f"v_rcp_f32 v{t[r]}, v{t[r]}"))
            for r in range(4): ops.append(("silu", f"v_mul_f32 v{v[r]}, v{v[r]}, v{t[r]}"))
        ops.append(("silu", f"v_cvt_pk_bf16_f32 v{V_P+2*q}, v{v[0]}, v{v[1]}"))
        ops.append(("silu", f"v_cvt_pk_bf16_f32 v{V_P+2*q+1}, v{v[2]}, v{v[3]}"))
    sts = [("st", "s_nop 0" if NOST[0] else dual(f"buffer_store_dwordx4 v[{V_P+4*tt}:{V_P+4*tt+3}], v{V_HG}, s[{SRD_WS}:{SRD_WS+3}], s{S_HST} offen offset:{tt*1024}", s < NOST[2])) for tt in range(2)]
    if s < NOST[2] or s == 2:
        k = [i for i, x in enumerate(ops) if x[1].startswith(f"v_cvt_pk_bf16_f32 v{V_P+3},")]
        if k: ops.insert(k[0] + 1, sts[0]); ops.append(sts[1])
        else: ops += sts
    else: ops += sts
    if s < 2: ops.append(("v", f"s_add_u32 s{S_HST}, s{S_HST}, {UNIT}"))
    return ops

def hflag_ops(s, n):
    return [("v", f"s_waitcnt vmcnt({n})\ns_mov_b64 exec, 1"),
            ("st", dual(f"buffer_store_dwordx2 v[{V_TAG}:{V_TAG+1}], v{V_HF}, s[{SRD_WS}:{SRD_WS+3}], 0 offen offset:{s*32}")),
            ("flag%d" % s, "s_mov_b64 exec, -1")]

def pflag(e, u, n):
    e(f"""
    s_mov_b32 s60, {u*16*FS[0]}
    s_waitcnt vmcnt({n})
    s_mov_b64 exec, 0xf
    buffer_store_dwordx2 v[{V_TAG}:{V_TAG+1}], v{V_PF}, s[{SRD_WS}:{SRD_WS+3}], s60 offen sc1
    s_mov_b64 exec, -1
    """)

def compute(e, o):
    e("L_compute:")
    if o.prio: e(f"s_setprio {o.prio}")
    common_ids(e)
    e(f"""
    s_lshr_b32 s{S_MH}, s{S_WAVE}, 1
    s_and_b32 s{S_NH}, s{S_WAVE}, 1
    s_mov_b32 s{S_NL2E}, 0xbfb8aa3b
    v_lshrrev_b32 v20, 5, v0
    v_lshrrev_b32 v21, 4, v0
    v_and_b32 v21, 1, v21
    v_and_b32 v22, 15, v0
    v_lshrrev_b32 v23, 2, v22
    v_and_b32 v22, 3, v22
    v_lshrrev_b32 v24, 1, v22
    v_lshl_add_u32 v24, v21, 1, v24
    s_lshl_b32 s{S_T0}, s{S_NH}, 2
    v_add_u32 v24, s{S_T0}, v24
    v_and_b32 v25, 2, v23
    v_lshlrev_b32 v25, 1, v25
    v_xor_b32 v24, v24, v25
    v_lshlrev_b32 v24, 4, v24
    v_and_b32 v22, 1, v22
    v_lshl_add_u32 v24, v22, 3, v24
    v_lshl_add_u32 v24, v23, 7, v24
    v_add_u32 v24, {RING}, v24
    v_lshl_add_u32 v{V_T1}, v20, 10, v24
    v_lshl_add_u32 v{V_T2}, v20, 9, v24
    v_add_u32 v{V_T1B}, {8*UNIT}, v{V_T1}
    v_add_u32 v{V_T2B}, {8*UNIT}, v{V_T2}
    v_and_b32 v25, 31, v0
    v_lshrrev_b32 v26, 1, v25
    v_and_b32 v26, 7, v26
    v_xor_b32 v26, v20, v26
    v_lshlrev_b32 v26, 4, v26
    s_lshl_b32 s{S_T1}, s{S_MH}, 12
    v_lshl_add_u32 v26, v25, 7, v26
    v_add_u32 v{V_X}, s{S_T1}, v26
    v_xor_b32 v{V_X+1}, 32, v{V_X}
    v_xor_b32 v{V_X+2}, 64, v{V_X}
    v_xor_b32 v{V_X+3}, 96, v{V_X}
    """)
    for ks in range(4): e(f"v_add_u32 v{V_X8+ks}, {8*UNIT}, v{V_X+ks}")
    e(f"""
    v_lshlrev_b32 v27, 4, v0
    v_add_u32 v{V_H}, s{S_T1}, v27
    v_add_u32 v{V_H8}, {8*UNIT}, v{V_H}
    s_lshl_b32 s{S_T0}, s{S_NH}, 11
    v_add_u32 v{V_HG}, s{S_T0}, v{V_H}
    s_mul_i32 s{S_HST}, s{S_CU}, 24576
    s_add_u32 s{S_HST}, s{S_HST}, {WS_H}
    s_lshl_b32 s{S_T0}, s{S_CU}, 7
    s_lshl_b32 s{S_T1}, s{S_WAVE}, 3
    s_add_u32 s{S_T0}, s{S_T0}, s{S_T1}
    s_add_u32 s{S_T0}, s{S_T0}, {WS_HF}
    v_mov_b32 v{V_HF}, s{S_T0}
    s_mul_i32 s{S_T0}, s{S_MT}, 3
    s_add_u32 s{S_T0}, s{S_T0}, s{S_G}
    s_lshl_b32 s{S_T1}, s{S_MH}, 2
    s_mul_i32 s{S_T1}, s{S_T1}, 24
    s_add_u32 s{S_T0}, s{S_T0}, s{S_T1}
    s_mul_i32 s{S_PO}, s{S_T0}, 24576
    s_mul_i32 s{S_T1}, s{S_J}, 3072
    s_add_u32 s{S_PO}, s{S_PO}, s{S_T1}
    s_lshl_b32 s{S_T1}, s{S_NH}, 9
    s_add_u32 s{S_PO}, s{S_PO}, s{S_T1}
    s_add_u32 s{S_PO}, s{S_PO}, {WS_P}
    s_add_u32 s{S_PO+1}, s{S_PO}, {2*24*24576}
    s_mul_i32 s{S_T0}, s{S_T0}, {48*FS[0]}
    s_lshl_b32 s{S_T1}, s{S_J}, 1
    s_add_u32 s{S_T1}, s{S_T1}, s{S_NH}
    s_mul_i32 s{S_T1}, s{S_T1}, {FS[0]}
    s_add_u32 s{S_T0}, s{S_T0}, s{S_T1}
    s_add_u32 s{S_PFB}, s{S_T0}, {WS_PF if FS[0] == 8 else WS_PFX}
    v_mov_b32 v{V_FW}, {FASTW}
    s_waitcnt lgkmcnt(0)
    """)
    load_epoch(e)
    finish_tag(e)
    e(f"v_mov_b32 v{V_TAG}, s{S_TAG}\nv_mov_b32 v{V_TAG+1}, s{S_TAG+1}")
    if not o.latew: e("s_waitcnt vmcnt(0)")

    tasks = []
    def ringbase(n, vA, vB):
        slot = n % R
        return (vA, slot * UNIT) if slot < 8 else (vB, (slot - 8) * UNIT)
    for n in range(27):
        st = n // 3; s = n // 9; i = n % 9
        base, so = ringbase(n, V_T1, V_T1B)
        for ks in range(4):
            t = dict(step=st, first=(n % 3 == 0 and ks == 0), idx=len(tasks))
            t["wr"] = [(base, so + (16 * ks + 4 * b) * 128) for b in range(2)]
            xf = V_XF + (i * 4 + ks) * 4
            t["pre"] = []
            if s == 0:
                xb = (V_X8 + ks) if i == 8 else (V_X + ks)
                t["pre"] = [f"ds_read_b128 v[{xf}:{xf+3}], v{xb} offset:{0 if i == 8 else i*UNIT}"]
            acc = V_ACC1 + 16 * (s & 1)
            t["mf"] = lambda wf, acc=acc, xf=xf, z=(i == 0 and ks == 0): f"v_mfma_f32_32x32x16_bf16 v[{acc}:{acc+15}], v[{wf}:{wf+3}], v[{xf}:{xf+3}], " + ("0" if z else f"v[{acc}:{acc+15}]")
            tasks.append(t)
    seen_p, seen_u, last_u = set(), set(), {}
    ACCU = {0: V_ACC1 + 16, 1: V_ACC1 + 32, 2: V_ACC1}
    for q, (p, u) in enumerate(P2):
        n = 27 + q; st = n // 3
        base, so = ringbase(n, V_T2, V_T2B)
        for ks in range(4):
            t = dict(step=st, first=(n % 3 == 0 and ks == 0), idx=len(tasks))
            t["wr"] = [(base, so + (16 * ks + 8 * b) * 128) for b in range(2)]
            hf = V_XF + (p * 4 + ks) * 4
            t["pre"] = []
            if p not in seen_p:
                hb = V_H8 if p == 8 else V_H
                t["pre"] = [f"ds_read_b128 v[{hf}:{hf+3}], v{hb} offset:{(0 if p == 8 else p*UNIT) + ks*1024}"]
            acc = ACCU[u]
            t["mf"] = lambda wf, acc=acc, hf=hf, z=(u not in seen_u and ks == 0): f"v_mfma_f32_32x32x16_bf16 v[{acc}:{acc+15}], v[{hf}:{hf+3}], v[{wf}:{wf+3}], " + ("0" if z else f"v[{acc}:{acc+15}]")
            tasks.append(t); last_u[u] = t["idx"]
        seen_p.add(p); seen_u.add(u)
    global PUBACC
    n = len(tasks)
    S = Stream(e)
    NP = n // 2
    side = []; side_start = [0]; hold = [0]; cur = [0]
    last_of_step = {}
    for t in tasks: last_of_step[t["step"]] = t["idx"]
    def pubops(u):
        ops = []
        a = ACCU[u]
        for q in range(8): ops.append(("v", f"v_cvt_pk_bf16_f32 v{V_P+q}, v{a+2*q}, v{a+2*q+1}"))
        ops.append(("v", "s_nop 0"))
        for q in range(2):
            d = V_P + 4 * q
            ops.append(("v", f"v_permlane32_swap_b32 v{d}, v{d+2}"))
            ops.append(("v", f"v_permlane32_swap_b32 v{d+1}, v{d+3}"))
        if not o.x_nopub:
            for q in range(2):
                d = V_P + 4 * q
                ops.append(("st", f"buffer_store_dwordx4 v[{d}:{d+3}], v{V_PV}, s[{SRD_WS}:{SRD_WS+3}], s{S_PO+q} offen offset:{u*1024} sc1"))
            ops.append(("v", "s_nop 0"))
        return ops
    def cost(kind, txt):
        if kind == "lds": return 24
        if kind == "st": return 16
        if txt.startswith(("v_exp", "v_rcp")): return 8
        if txt.startswith("s_") and not txt.startswith(("s_waitcnt", "s_nop")): return 2
        return 4
    def pop_side(budget):
        used = 0
        while side and S.count >= side_start[0] and cur[0] >= hold[0]:
            kind, txt = side[0]
            if kind == "gap": side.pop(0); hold[0] = cur[0] + txt; continue
            if kind == "st" and "L_ds" in txt and not S.fast_ok: break
            if kind == "silu" and S.count < S.hold_silu: break
            c = cost(kind, txt)
            if used and used + c > budget: break
            side.pop(0)
            if kind == "lds": S.lds(txt)
            else: S.emit(txt)
            if kind.startswith("flag"): S.flags.add(int(kind[4:]))
            used += c
    NR = o.LP + 1
    def tr_reads(q):
        for h in range(2):
            t = tasks[2*q + h]
            wf = V_WF + 8 * (q % NR) + 4 * h
            t["wf"] = wf
            for b, (base, off) in enumerate(t["wr"]):
                t["last"] = S.lds(f"ds_read_b64_tr_b16 v[{wf+2*b}:{wf+2*b+1}], v{base} offset:{off}")
    def pre_reads(q):
        k = 0
        for h in range(2):
            t = tasks[2*q + h]
            for x in t["pre"]:
                t["last"] = S.lds(x); k += 1
        return k
    def barrier(step):
        for fs, fb in ((0, o.h0b), (1, o.h1b), (2, o.h2b)):
            if step == fb: assert fs in S.flags, f"flag {fs} must be sent before B_{fb} (the control wave waits for it there)"
        if o.astamp and o.astamp <= step < o.astamp + 6: S.emit(f"s_memtime s[{S_STAMP+16+2*(step-o.astamp)}:{S_STAMP+17+2*(step-o.astamp)}]")
        S.emit("s_waitcnt lgkmcnt(0)"); S.done = S.nlds
        S.emit("s_barrier")
    late_addr = [("v", f"v_and_b32 v{V_PV}, 31, v0"), ("v", f"v_lshrrev_b32 v{V_PF}, 5, v0"), ("v", f"v_lshlrev_b32 v{V_PV}, 4, v{V_PV}"),
                 ("v", f"v_mul_u32_u24 v{V_PF}, {24*24576}, v{V_PF}"), ("v", f"v_add_u32 v{V_PV}, v{V_PV}, v{V_PF}"),
                 ("v", f"v_mul_u32_u24 v{V_PF}, {24*48*FS[0]}, v0"), ("v", f"v_add_u32 v{V_PF}, s{S_PFB}, v{V_PF}")]
    budget = o.epb
    pubq = []
    fast_known = False
    barrier(0)
    for q0 in range(o.LP):
        tr_reads(q0); pre_reads(q0)
    for q in range(NP):
        cur[0] = q
        A, B = tasks[2*q], tasks[2*q+1]
        nq = q + o.LP
        deferred = False
        f9 = 6 * 9
        if o.ep2first and q == f9:
            S.emit("s_nop 7\ns_nop 3")
            side_start[0] = 0; S.hold_silu = 0
            pop_side(10**6)
            barrier(9)
            for q0 in range(f9, f9 + o.LP): tr_reads(q0); pre_reads(q0)
        if nq < NP and not (o.ep2first and f9 <= nq < f9 + o.LP):
            if tasks[2*nq]["first"]:
                barrier(tasks[2*nq]["step"]); deferred = True
            else:
                tr_reads(nq)
        skip_pre = o.ep2first and f9 <= nq < f9 + o.LP
        if A["first"] and A["step"] == 11:
            assert not any(x[0] == "silu" for x in side), "acc of sub-tile 2 still in use"
        S.wait_lds(max(A["last"], B["last"]))
        S.emit(A["mf"](A["wf"]))
        if deferred:
            if tasks[2*nq]["step"] == o.fastb: S.lds(f"ds_read_b32 v{V_FW}, v{V_FW}")
            tr_reads(nq); pre_reads(nq)
        else:
            k = pre_reads(nq) if (nq < NP and not skip_pre) else 0
            if not (o.ep2first and q >= f9 - 0 and side and side[0][0] == 'silu' and False): pop_side(budget if k == 0 else max(budget - 24, 4))
            if o.wgap2 and q + 1 < NP and k == 0 and "last" in tasks[2*q+2] and "last" in tasks[2*q+3]:
                S.wait_lds(max(tasks[2*q+2]["last"], tasks[2*q+3]["last"]))
        S.emit(B["mf"](B["wf"]))
        if A["first"] and A["step"] == o.fastb:
            S.emit(f"v_readfirstlane_b32 s{S_FAST}, v{V_FW}"); S.fast_ok = True
        im = B["idx"]
        if im == last_of_step.get(2):
            if o.latew: side.append(("v", "s_waitcnt vmcnt(0)"))
            side += silu_ops(V_ACC1, 0, o.x_noep) + [("gap", o.gap0)] + hflag_ops(0, 0); side_start[0] = S.count + 12; budget = o.epb0
        if im == last_of_step.get(5):
            assert not any(x[0] == "silu" or x[0] == "st" and "x4" in x[1] for x in side), len(side)
            side += silu_ops(V_ACC1 + 16, 1, o.x_noep); budget = o.epb
            S.hold_silu = S.count + 12
        if im == last_of_step.get(8):
            assert not side, len(side)
            ops2 = silu_ops(V_ACC1, 2, o.x_noep)
            k1 = min(o.f1pos, len(ops2) - 2)
            ops2 = ops2[:k1] + hflag_ops(1, 0) + ops2[k1:]
            side += ops2 + late_addr + [("gap", o.gap2)] + hflag_ops(2, 0); side_start[0] = S.count + 12; budget = o.epb2
        for u, at in ((0, o.pub0), (1, o.pub1)):
            if at and q >= NP - at and im >= last_u[u] + 4 and u not in pubq and not side:
                pubq.append(u); side += pubops(u); side_start[0] = S.count; budget = 24
    assert not side
    if o.x_pad:
        e(f"s_mov_b32 s60, {o.x_pad}\nL_xpad:\nv_mov_b32 v20, v21\nv_mov_b32 v22, v21\nv_mov_b32 v20, v21\nv_mov_b32 v22, v21\ns_sub_u32 s60, s60, 1\ns_cmp_lg_u32 s60, 0\ns_cbranch_scc1 L_xpad")
    e("s_nop 7")
    if o.stamps: e(f"s_memtime s[{S_STAMP+4}:{S_STAMP+5}]")
    e("s_nop 3")
    rest = [u for u in (0, 1, 2) if u not in pubq]
    order = pubq + rest
    for u in rest:
        for k, x in pubops(u): e(x)
    for i, u in enumerate(order):
        younger = 2 * (len(order) - 1 - i) + i
        if o.x_nopub: younger = i
        if o.stamps and i == 2: e(f"s_memtime s[{S_STAMP+14}:{S_STAMP+15}]")
        if o.sent and u == 2: continue
        pflag(e, u, younger)
    if o.stamps:
        e(f"s_memtime s[{S_STAMP+6}:{S_STAMP+7}]")
        e(f"s_cmp_lg_u32 s{S_WAVE}, 0\ns_cbranch_scc1 L_end\ns_waitcnt lgkmcnt(0)")
        e(f"s_lshl_b32 s3, s{S_CU}, 9\ns_add_u32 s3, s3, {WS_ST + 256}\ns_mov_b64 exec, 1\nv_mov_b32 v1, 0")
        for k in range(0, 16, 4):
            for q in range(4): e(f"v_mov_b32 v{4+q}, s{S_STAMP+k+q}")
            e(f"buffer_store_dwordx4 v[4:7], v1, s[{SRD_WS}:{SRD_WS+3}], s3 offen offset:{k*4}\ns_nop 1")
        if o.astamp:
            e(f"s_lshl_b32 s3, s{S_CU}, 9\ns_add_u32 s3, s3, {WS_ST + 192*512}")
            for k, r0 in enumerate((S_STAMP, S_STAMP+16, S_STAMP+20, S_STAMP+24)):
                for q in range(4): e(f"v_mov_b32 v{4+q}, s{r0+q}")
                e(f"buffer_store_dwordx4 v[4:7], v1, s[{SRD_WS}:{SRD_WS+3}], s3 offen offset:{k*16}\ns_nop 1")
        e("s_waitcnt vmcnt(0)")
    if o.gsplit:
        e(f"s_cmp_lt_u32 s{S_WAVE}, 3\ns_cbranch_scc1 L_gather")
    e("s_endpgm")

def gather(e, o):
    VT, VA, VL, VD, VS = 2, 4, 5, 8, 44
    S_U = 48
    e("L_gather:")
    e(f"""
    s_cmp_eq_u32 s{S_WAVE}, 7
    s_cbranch_scc1 L_end
    s_and_b32 s{S_U}, s{S_WAVE}, 3
    s_cmp_lt_u32 s{S_WAVE}, 4
    s_cselect_b32 s57, 1, 0
    s_mul_i32 s3, s{S_CU}, {48*FS[0]}
    s_min_u32 s50, s{S_U}, {1 if o.sent else 2}
    s_mul_i32 s50, s50, {16*FS[0]}
    s_add_u32 s3, s3, s50
    s_add_u32 s3, s3, {WS_PF if FS[0] == 8 else WS_PFX}
    v_mul_u32_u24 v{VA}, {FS[0]}, v0
    v_add_u32 v{VA}, s3, v{VA}
    v_lshlrev_b32 v{VL}, 4, v0
    v_mov_b32 v{VT}, s{S_TAG}
    v_mov_b32 v{VT+1}, s{S_TAG+1}
    s_mul_i32 s52, s{S_CU}, 24576
    s_lshl_b32 s53, s{S_U}, 10
    s_add_u32 s52, s52, s53
    s_add_u32 s52, s52, {WS_P}
    v_lshlrev_b32 v6, 1, v0
    s_lshl_b32 s50, s{S_MT}, 6
    s_lshl_b32 s51, s{S_J}, 3
    s_add_u32 s50, s50, s51
    s_mul_i32 s50, s50, 1152
    s_mul_i32 s51, s{S_G}, 384
    s_add_u32 s50, s50, s51
    s_lshl_b32 s51, s{S_U}, 7
    s_add_u32 s50, s50, s51
    s_add_u32 s53, s50, 4608
    s_mov_b32 s54, 0xffff0000
    """)
    if o.ppipe:
        e(f"""
        s_mov_b64 exec, 0xffff
        s_mov_b32 s{S_CNT}, {SPIN_MAX}
        buffer_load_dwordx2 v[40:41], v{VA}, s[{SRD_WS}:{SRD_WS+3}], 0 offen sc1
        L_pp:
        s_sleep {o.ppipe}
        buffer_load_dwordx2 v[42:43], v{VA}, s[{SRD_WS}:{SRD_WS+3}], 0 offen sc1
        s_waitcnt vmcnt(1)
        v_cmp_ne_u64 vcc, v[40:41], v[{VT}:{VT+1}]
        s_sub_u32 s{S_CNT}, s{S_CNT}, 1
        s_cmp_eq_u32 s{S_CNT}, 0
        s_cbranch_scc1 L_ppdone
        s_nop 1
        s_cbranch_vccz L_ppdone
        s_sleep {o.ppipe}
        buffer_load_dwordx2 v[40:41], v{VA}, s[{SRD_WS}:{SRD_WS+3}], 0 offen sc1
        s_waitcnt vmcnt(1)
        v_cmp_ne_u64 vcc, v[42:43], v[{VT}:{VT+1}]
        s_nop 4
        s_cbranch_vccnz L_pp
        L_ppdone:
        s_mov_b64 exec, -1
        """)
    else:
        _poll(e, o, "p", VA, 0, "0xffff", VT, 40, o.psleep)
    if o.stamps: e(f"s_memtime s[{S_STAMP+8}:{S_STAMP+9}]")
    if o.sent:
        e(f"s_cmp_eq_u32 s{S_U}, 2\ns_cbranch_scc1 L_gsent")
    if o.gsplit:
        e(f"s_lshl_b32 s56, s57, 3\ns_add_u32 s52, s52, s56\ns_mul_i32 s56, s57, 4608\ns_add_u32 s50, s50, s56")
    for p in range(8):
        if o.gsplit: e(f"buffer_load_dwordx2 v[{VD+4*p}:{VD+4*p+1}], v{VL}, s[{SRD_WS}:{SRD_WS+3}], s52 offen sc1")
        else: e(f"buffer_load_dwordx4 v[{VD+4*p}:{VD+4*p+3}], v{VL}, s[{SRD_WS}:{SRD_WS+3}], s52 offen sc1")
        if p < 7: e(f"s_add_u32 s52, s52, 3072")
    if o.sent:
        e(f"""
        s_branch L_gloaded
        L_gsent:
        s_mov_b32 s{S_CNT}, {SPIN_MAX}
        s_mov_b32 s55, {SENT:#x}
        L_gretry:
        s_mov_b32 s56, s52
        """)
        for p in range(8):
            e(f"buffer_load_dwordx4 v[{VD+4*p}:{VD+4*p+3}], v{VL}, s[{SRD_WS}:{SRD_WS+3}], s56 offen sc1")
            if p < 7: e(f"s_add_u32 s56, s56, 3072")
        e("s_mov_b64 s[58:59], 0")
        for p in range(8):
            e(f"s_waitcnt vmcnt({7-p})")
            e(f"v_cmp_eq_u32 vcc, s55, v{VD+4*p}\nv_cmp_eq_u32 s[60:61], s55, v{VD+4*p+3}")
            e(f"s_nop 0\ns_or_b64 s[58:59], s[58:59], vcc\ns_or_b64 s[58:59], s[58:59], s[60:61]")
        e(f"""
        s_sub_u32 s{S_CNT}, s{S_CNT}, 1
        s_cmp_eq_u32 s{S_CNT}, 0
        s_cbranch_scc1 L_gloaded
        s_cmp_eq_u64 s[58:59], 0
        s_cbranch_scc1 L_gloaded
        s_sleep {o.gsleep}
        s_branch L_gretry
        L_gloaded:
        """)
    e(f"""
    s_or_b32 s51, s{S_J}, s{S_G}
    s_or_b32 s51, s51, s{S_U}
    s_or_b32 s51, s51, s57
    s_cmp_lg_u32 s51, 0
    s_cbranch_scc1 L_noepoch
    s_lshl_b32 s51, s{S_MT}, 7
    v_mov_b32 v{VA}, s51
    s_mov_b64 exec, 1
    buffer_store_dwordx2 v[{VT}:{VT+1}], v{VA}, s[{SRD_WS}:{SRD_WS+3}], 0 offen sc1
    s_mov_b64 exec, -1
    s_waitcnt vmcnt(0)
    L_noepoch:
    """)
    ND = 2 if o.gsplit else 4
    for p in range(8):
        e(f"s_waitcnt vmcnt({7-p})")
        for d in range(ND):
            src = VD + 4 * p + d
            if p == 0:
                e(f"v_lshlrev_b32 v{VS+2*d}, 16, v{src}\nv_and_b32 v{VS+2*d+1}, s54, v{src}")
            else:
                e(f"v_lshlrev_b32 v{VS+8}, 16, v{src}\nv_and_b32 v{VS+9}, s54, v{src}")
                e(f"v_add_f32 v{VS+2*d}, v{VS+2*d}, v{VS+8}\nv_add_f32 v{VS+2*d+1}, v{VS+2*d+1}, v{VS+9}")
    for d in range(ND):
        e(f"v_cvt_pk_bf16_f32 v{VD+d}, v{VS+2*d}, v{VS+2*d+1}")
    if o.outx4:
        e(f"""
        s_lshl_b32 s51, s{S_U}, 10
        v_add_u32 v7, s51, v6
        v_lshl_add_u32 v{VA}, v0, 4, s51
        v_lshrrev_b32 v{VS+8}, 3, v0
        v_mul_u32_u24 v{VS+8}, 1152, v{VS+8}
        v_and_b32 v{VS+9}, 7, v0
        v_lshl_add_u32 v{VS+8}, v{VS+9}, 4, v{VS+8}
        """)
        for d in range(4):
            e(f"ds_write_b16 v7, v{VD+d} offset:{2*d*128}\nds_write_b16_d16_hi v7, v{VD+d} offset:{(2*d+1)*128}")
        e(f"""
        s_waitcnt lgkmcnt(0)
        ds_read_b128 v[{VD+4}:{VD+7}], v{VA}
        s_waitcnt lgkmcnt(0)
        buffer_store_dwordx4 v[{VD+4}:{VD+7}], v{VS+8}, s[{SRD_OUT}:{SRD_OUT+3}], s50 offen {"sc1" if o.outx4 == 2 else ""}
        """)
    else:
      for d in range(ND):
        so = "s50" if d < 2 else "s53"
        e(f"buffer_store_short v{VD+d}, v6, s[{SRD_OUT}:{SRD_OUT+3}], {so} offen offset:{(2*d % 4)*1152}")
        e(f"buffer_store_short_d16_hi v{VD+d}, v6, s[{SRD_OUT}:{SRD_OUT+3}], {so} offen offset:{((2*d+1) % 4)*1152}")
    if o.span:
        e(f"""
        s_waitcnt vmcnt(0)
        s_memrealtime s[{S_STAMP+2}:{S_STAMP+3}]
        s_waitcnt lgkmcnt(0)
        s_lshl_b32 s3, s{S_CU}, 6
        s_lshl_b32 s51, s{S_U}, 4
        s_add_u32 s3, s3, s51
        s_add_u32 s3, s3, {WS_ST}
        s_cmp_eq_u32 s57, 1
        s_cselect_b32 s3, {WS_ST + 192*64}, s3
        s_mov_b64 exec, 1
        v_mov_b32 v1, 0
        v_mov_b32 v4, s{S_STAMP}
        v_mov_b32 v5, s{S_STAMP+1}
        v_mov_b32 v6, s{S_STAMP+2}
        v_mov_b32 v7, s{S_STAMP+3}
        buffer_store_dwordx4 v[4:7], v1, s[{SRD_WS}:{SRD_WS+3}], s3 offen sc1
        """)
    if o.stamps:
        e(f"""
        s_cmp_lg_u32 s{S_WAVE}, 6
        s_cbranch_scc1 L_end
        s_waitcnt vmcnt(0)
        s_memtime s[{S_STAMP+10}:{S_STAMP+11}]
        s_memrealtime s[{S_STAMP+12}:{S_STAMP+13}]
        s_waitcnt lgkmcnt(0)
        s_lshl_b32 s3, s{S_CU}, 9
        s_add_u32 s3, s3, {WS_ST + 384}
        s_mov_b64 exec, 1
        v_mov_b32 v1, 0
        """)
        for k in range(0, 16, 4):
            for q in range(4): e(f"v_mov_b32 v{4+q}, s{S_STAMP+k+q}")
            e(f"buffer_store_dwordx4 v[4:7], v1, s[{SRD_WS}:{SRD_WS+3}], s3 offen offset:{k*4}\ns_nop 1")
        e("s_waitcnt vmcnt(0)")
    e("s_endpgm")

def prefetch2(e, o):
    NT = "nt" if o.pf_nt else ""; HNT = "nt" if o.ht_nt else ""
    e("L_prefetch:")
    e(f"""
    s_sub_u32 s52, s3, 24
    s_cmp_ge_u32 s{S_WAVE}, 4
    s_cbranch_scc1 L_pf_h
    v_min_u32 v1, 215, v0
    s_mov_b32 s{S_T0}, 21846
    v_mul_u32_u24 v2, s{S_T0}, v1
    v_lshrrev_b32 v2, 16, v2
    v_mul_u32_u24 v3, 3, v2
    v_sub_u32 v3, v1, v3
    v_mul_u32_u24 v4, 9216, v2
    v_mul_u32_u24 v3, 384, v3
    v_add_u32 v4, v4, v3
    s_mul_i32 s53, s52, {72*9216}
    s_mul_i32 s{S_T1}, s{S_J}, 1152
    s_add_u32 s53, s53, s{S_T1}
    s_add_u32 s53, s53, 128
    s_mov_b32 s{S_T0}, 7282
    v_mul_u32_u24 v5, s{S_T0}, v1
    v_lshrrev_b32 v5, 16, v5
    v_mul_u32_u24 v6, 9, v5
    v_sub_u32 v6, v1, v6
    s_mul_i32 s54, s52, 24
    v_add_u32 v5, s54, v5
    v_lshrrev_b32 v7, 6, v5
    v_and_b32 v5, 63, v5
    v_mul_u32_u24 v7, 192, v7
    v_add_u32 v5, v5, v7
    v_mul_u32_u24 v5, 1152, v5
    v_lshl_add_u32 v5, v6, 7, v5
    s_mul_i32 s55, s{S_J}, {576*1152}
    s_waitcnt lgkmcnt(0)
    """)
    srd(e, SRD_B, S_W1, 576*4608*2)
    srd(e, SRD_C, S_W2, 576*4608*2)
    for k in range(o.pfdelay):
        if o.probe1: e(f"s_sub_u32 s56, s53, 128\nv_and_b32 v9, 7, v1\nv_mul_u32_u24 v9, 9216, v9\nbuffer_load_dword v8, v9, s[{SRD_B}:{SRD_B+3}], s56 offen\ns_waitcnt vmcnt(0)")
        elif k == 0: e(f"s_sub_u32 s56, s53, 128\nbuffer_load_dword v8, v4, s[{SRD_B}:{SRD_B+3}], s56 offen {NT}\ns_waitcnt vmcnt(0)")
        else:
            srd(e, SRD_A, S_X, 512*576*2)
            e(f"s_mul_i32 s56, s52, {576*128}\ns_add_u32 s56, s56, {(k-1)*216*128}\nv_lshlrev_b32 v9, 7, v1\nbuffer_load_dword v8, v9, s[{SRD_A}:{SRD_A+3}], s56 offen\ns_waitcnt vmcnt(0)")
    e(f"""
    buffer_load_dword v8, v4, s[{SRD_B}:{SRD_B+3}], s53 offen {NT}
    s_waitcnt vmcnt(0)
    s_add_u32 s53, s53, 128
    buffer_load_dword v8, v4, s[{SRD_B}:{SRD_B+3}], s53 offen {NT}
    s_waitcnt vmcnt(0)
    buffer_load_dword v8, v5, s[{SRD_C}:{SRD_C+3}], s55 offen {NT}
    s_waitcnt vmcnt(0)
    s_add_u32 s55, s55, {64*1152}
    buffer_load_dword v8, v5, s[{SRD_C}:{SRD_C+3}], s55 offen {NT}
    s_waitcnt vmcnt(0)
    s_add_u32 s55, s55, {64*1152}
    buffer_load_dword v8, v5, s[{SRD_C}:{SRD_C+3}], s55 offen {NT}
    s_waitcnt vmcnt(0)
    s_endpgm
    L_pf_h:
    v_subrev_u32 v1, 256, v0
    v_min_u32 v1, 191, v1
    v_lshrrev_b32 v2, 6, v1
    v_and_b32 v3, 63, v1
    v_mul_u32_u24 v2, 24576, v2
    v_lshl_add_u32 v2, v3, 7, v2
    s_mul_i32 s53, s{S_J}, {24*24576}
    s_mul_i32 s54, s52, {3*24576}
    s_add_u32 s53, s53, s54
    s_add_u32 s53, s53, {WS_H}
    v_and_b32 v4, {7 if o.probe1 else 63}, v3
    v_mul_u32_u24 v4, 9216, v4
    s_mul_i32 s54, s52, {72*9216}
    s_mul_i32 s55, s{S_J}, 1152
    s_add_u32 s54, s54, s55
    s_waitcnt lgkmcnt(0)
    """)
    srd(e, SRD_B, S_W1, 576*4608*2)
    srd(e, SRD_WS, S_WS, WS_SIZE)
    if not o.ptouch:
        e("s_endpgm")
        return
    if o.bx:
        srd(e, SRD_A, S_X, 512*576*2)
        e(f"v_lshlrev_b32 v9, 7, v1\ns_mul_i32 s56, s52, {576*128}")
    for k in range(o.hdelay):
        if o.bx and k < 3:
            e(f"buffer_load_dword v8, v9, s[{SRD_A}:{SRD_A+3}], s56 offen\ns_waitcnt vmcnt(0)\ns_add_u32 s56, s56, {192*128}")
        else:
            e(f"buffer_load_dword v8, v4, s[{SRD_B}:{SRD_B+3}], s54 offen\ns_waitcnt vmcnt(0)\ns_add_u32 s54, s54, 384")
    for st in range(3):
        e(f"buffer_load_dword v8, v2, s[{SRD_WS}:{SRD_WS+3}], s53 offen {HNT}\ns_waitcnt vmcnt(0)")
        if st < 2: e(f"s_add_u32 s53, s53, {UNIT}")
    e("s_endpgm")

def prefetch(e, o):
    if o.pfv == 2: return prefetch2(e, o)
    e("L_prefetch:")
    e(f"""
    s_sub_u32 s3, s3, 24
    s_mov_b32 s52, s3
    s_mov_b32 s{S_T0}, 10923
    v_mul_u32_u24 v1, s{S_T0}, v0
    v_lshrrev_b32 v1, 16, v1
    v_mul_u32_u24 v2, 6, v1
    v_sub_u32 v2, v0, v2
    v_lshrrev_b32 v3, 1, v2
    v_and_b32 v2, 1, v2
    v_mul_u32_u24 v3, 384, v3
    v_lshl_add_u32 v3, v2, 7, v3
    v_mul_u32_u24 v1, 9216, v1
    v_add_u32 v1, v1, v3
    s_mul_i32 s{S_T0}, s3, {72*9216}
    s_mul_i32 s{S_T1}, s{S_J}, 1152
    s_add_u32 s{S_T0}, s{S_T0}, s{S_T1}
    s_add_u32 s{S_T0}, s{S_T0}, 128
    s_mul_i32 s{S_T1}, s{S_J}, {576*1152}
    s_mul_i32 s3, s3, {72*1152}
    s_add_u32 s{S_T1}, s{S_T1}, s3
    v_lshlrev_b32 v4, 7, v0
    v_add_u32 v5, 65536, v4
    v_min_u32 v5, {647*128}, v5
    v_cmp_gt_u32 vcc, 432, v0
    s_waitcnt lgkmcnt(0)
    """)
    srd(e, SRD_B, S_W1, 576*4608*2)
    srd(e, SRD_C, S_W2, 576*4608*2)
    e(f"""
    v_mov_b32 v6, 0
    v_cndmask_b32 v1, v6, v1, vcc
    """)
    if o.sent and o.clrpos == 0:
        srd(e, SRD_WS, S_WS, WS_SIZE)
        clear_inboxes(e, o)
    if o.pfdelay:
        e(f"""
        v_min_u32 v15, {o.pfdelay * 8 - 1}, v0
        v_mul_u32_u24 v15, 9216, v15
        s_sub_u32 s53, s{S_T0}, 128
        buffer_load_dword v16, v15, s[{SRD_B}:{SRD_B+3}], s53 offen
        s_waitcnt vmcnt(0)
        """)
    if o.pfsplit:
        e(f"""
        v_cmp_eq_u32 vcc, 0, v2
        s_nop 1
        s_and_saveexec_b64 s[54:55], vcc
        buffer_load_dword v8, v1, s[{SRD_B}:{SRD_B+3}], s{S_T0} offen
        s_waitcnt vmcnt(0)
        s_andn2_b64 exec, s[54:55], exec
        buffer_load_dword v8, v1, s[{SRD_B}:{SRD_B+3}], s{S_T0} offen
        s_mov_b64 exec, s[54:55]
        """)
    else:
        e(f"buffer_load_dword v8, v1, s[{SRD_B}:{SRD_B+3}], s{S_T0} offen")
    if o.ptouch:
        srd(e, SRD_WS, S_WS, WS_SIZE)
        e(f"""
        s_mul_i32 s50, s{S_J}, {24*24576}
        s_mul_i32 s51, s52, {576*128}
        s_add_u32 s50, s50, s51
        s_add_u32 s50, s50, {WS_H}
        v_min_u32 v11, 63, v0
        v_lshlrev_b32 v11, 7, v11
        v_add_u32 v11, 65536, v11
        """)
    if o.ptouch == 3:
        e(f"""
        v_lshrrev_b32 v12, 6, v0
        v_min_u32 v12, 2, v12
        v_mul_u32_u24 v12, 24576, v12
        v_and_b32 v13, 63, v0
        v_lshl_add_u32 v14, v13, 7, v12
        v_add_u32 v14, 16384, v14
        """)
    e("s_waitcnt vmcnt(0)")
    if o.ptouch == 2:
        e(f"buffer_load_dword v12, v4, s[{SRD_WS}:{SRD_WS+3}], s50 offen\nbuffer_load_dword v13, v11, s[{SRD_WS}:{SRD_WS+3}], s50 offen")
    e(f"""
    buffer_load_dword v9, v4, s[{SRD_C}:{SRD_C+3}], s{S_T1} offen
    buffer_load_dword v10, v5, s[{SRD_C}:{SRD_C+3}], s{S_T1} offen
    s_waitcnt vmcnt(0)
    """)
    if o.ptouch == 3:
        e(f"buffer_load_dword v12, v14, s[{SRD_WS}:{SRD_WS+3}], s50 offen\ns_waitcnt vmcnt(0)")
    if o.ptouch == 1:
        e(f"buffer_load_dword v12, v4, s[{SRD_WS}:{SRD_WS+3}], s50 offen\nbuffer_load_dword v13, v11, s[{SRD_WS}:{SRD_WS+3}], s50 offen\ns_waitcnt vmcnt(0)")
    if o.sent and o.clrpos == 1: clear_inboxes(e, o)
    e("s_endpgm")

def clear_inboxes(e, o):
    e(f"""
    s_lshl_b32 s3, s52, 7
    s_load_dwordx2 s[{S_TAG}:{S_TAG+1}], s[{S_WS}:{S_WS+1}], s3
    s_mul_i32 s56, s{S_J}, 24
    s_mul_i32 s57, s52, 3
    s_add_u32 s56, s56, s57
    v_lshrrev_b32 v20, 6, v0
    v_and_b32 v21, 63, v0
    v_mul_u32_u24 v20, 3072, v20
    v_lshl_add_u32 v20, v21, 4, v20
    s_mul_i32 s57, s56, 24576
    s_add_u32 s57, s57, {WS_P + 2048}
    v_mov_b32 v24, {SENT:#x}
    v_mov_b32 v25, {SENT:#x}
    v_mov_b32 v26, {SENT:#x}
    v_mov_b32 v27, {SENT:#x}
    buffer_store_dwordx4 v[24:27], v20, s[{SRD_WS}:{SRD_WS+3}], s57 offen sc1
    s_add_u32 s57, s57, 24576
    buffer_store_dwordx4 v[24:27], v20, s[{SRD_WS}:{SRD_WS+3}], s57 offen sc1
    s_add_u32 s57, s57, 24576
    buffer_store_dwordx4 v[24:27], v20, s[{SRD_WS}:{SRD_WS+3}], s57 offen sc1
    s_waitcnt vmcnt(0) lgkmcnt(0)
    s_barrier
    s_add_u32 s{S_TAG}, s{S_TAG}, {TAGC_LO:#x}
    s_addc_u32 s{S_TAG+1}, s{S_TAG+1}, {TAGC_HI:#x}
    s_lshl_b32 s56, s56, 7
    s_add_u32 s56, s56, {WS_CF}
    v_mov_b32 v22, s{S_TAG}
    v_mov_b32 v23, s{S_TAG+1}
    v_lshlrev_b32 v21, 7, v0
    v_cmp_gt_u32 vcc, 3, v0
    s_nop 1
    s_and_saveexec_b64 s[54:55], vcc
    s_cbranch_execz L_clr_done
    buffer_store_dwordx2 v[22:23], v21, s[{SRD_WS}:{SRD_WS+3}], s56 offen sc1
    L_clr_done:
    s_mov_b64 exec, s[54:55]
    """)

def build(o):
    if o.order: P2[:] = P2B
    FS[0] = o.pfs
    _uid[0] = 0; OUTLINE.clear(); NOST[0] = o.x_nost; NOST[1] = o.x_nodsw; NOST[2] = o.hsc1; NOST[3] = o.hnt
    e = E(); prologue(e, o)
    parts = []
    ls = E(); loader_start(ls, o)
    for lw in range(3):
        x = E(); loader(x, o, lw); parts.append(("loader%d" % lw, x))
    x = E(); control(x, o); parts.append(("control", x))
    x = E(); prefetch(x, o); parts.append(("prefetch", x))
    x = E(); compute(x, o); parts.append(("compute", x))
    eg = E(); gather(eg, o)
    for k, v in parts:
        pre = e.text() + "\n" + (ls.text() + "\n" if k.startswith("loader") else "")
        pr = hazard.check(pre + v.text() + "\n" + eg.text())
        if pr: raise SystemExit(f"hazards in {k}")
    body = "\n".join([e.text(), ls.text()] + [v.text() for k, v in parts] + [eg.text(), "\n".join(OUTLINE), "L_end:", "s_endpgm"])
    nsgpr = 100 if o.stamps else 72
    hdr = f"""; Fused FFN: out = silu(x @ w1) @ w2   (M=512, D=576, F=4608), one launch.
; 192 compute workgroups = 8 F-slices (j) x 8 row tiles (mt) x 3 column groups (g): 4 MFMA waves, 3 LDS-DMA loader waves, 1 control wave;
; @launch grid=({NWG + o.npf},1,1) block=(512,1,1) lds={LDS_BYTES}
.amdgcn_target "amdgcn-amd-amdhsa--gfx950"
.text
.globl {KNAME}
.p2align 8
.type {KNAME},@function
{KNAME}:
"""
    tail = f"""
.section .rodata,"a"
.p2align 6
.amdhsa_kernel {KNAME}
  .amdhsa_next_free_vgpr 256
  .amdhsa_next_free_sgpr {nsgpr}
  .amdhsa_accum_offset 256
  .amdhsa_group_segment_fixed_size 0
  .amdhsa_kernarg_size 48
  .amdhsa_user_sgpr_count 2
  .amdhsa_user_sgpr_kernarg_segment_ptr 1
  .amdhsa_system_sgpr_workgroup_id_x 1
.end_amdhsa_kernel
"""
    return hdr + body + tail

if __name__ == "__main__":
    o = Opt()
    out = sys.argv[1]
    for a in sys.argv[2:]:
        k, v = a.split("=")
        setattr(o, k, bool(int(v)) if isinstance(getattr(Opt, k), bool) else int(v))
    open(out, "w").write(build(o))
    print("wrote", out)
```

```python
import sys, os
sys.path.insert(0, os.path.dirname(__file__))
import hazard

KNAME = "standalone__dense_activation_silu__sampling_kernel"
NWG = 192
NPF = 64
XH = 0
RING = 73728
R = 11
UNIT = 8192
LDS_BYTES = 163840
WS_E, WS_ID, WS_HF, WS_PF, WS_H, WS_P, WS_ST = 0, 4096, 32768, 65536, 262144, 5242880, 16777216
WS_PFX = 12582912
FS = [8]
WS_CF = 163840
SENT = 0x7F817F81
WS_SIZE = 0x10000000
TAGC_LO, TAGC_HI = 0x7F4A7C15, 0x9E3779B9
SPIN_MAX = 100000
FASTW = XH + 3 * UNIT

P2 = [(0,0),(1,0),(2,0), (0,1),(1,1),(2,1), (0,2),(1,2),(2,2), (3,0),(4,0),(5,0), (3,1),(4,1),(5,1),
      (6,0),(7,0),(8,0), (6,1),(7,1),(8,1), (3,2),(4,2),(5,2), (6,2),(7,2),(8,2)]
P2B = [(0,0),(1,0),(2,0), (0,1),(1,1),(2,1), (0,2),(1,2),(2,2), (3,0),(4,0),(5,0), (3,1),(4,1),(5,1),
       (3,2),(4,2),(5,2), (6,0),(7,0),(8,0), (6,1),(7,1),(8,1), (6,2),(7,2),(8,2)]
PCH = [(p % 3, p // 3) for p in range(9)]

class Opt:
    stamps = False
    LP = 3
    pairw = True
    pub0 = 17
    pub1 = 11
    DRAIN = 2
    epb = 52
    epb2 = 110
    f1pos = 8
    h0b = 8
    h1b = 11
    h2b = 13
    fastb = 4
    gap0 = 5
    gap2 = 4
    tlbw = False
    ctouch = False
    ptouch = 1
    t0b = 3
    t1b = 5
    t2b = 7
    order = 0
    touch = 2
    wgap2 = True
    ppipe = 0
    epb0 = 80
    sent = False
    gsleep = 1
    pfmerge = 3
    pf_nt = False
    ht_nt = False
    bx = 0
    probe1 = False
    latew = False
    lprio = 0
    cprio = 0
    gsplit = False
    x_perm = 0
    pfs = 8
    pfv = 2
    hdelay = 4
    clrpos = 1
    clrb = 4
    cfb = 7
    chkb = 15
    span = False
    x_pad = 0
    ep2first = False
    hnt = True
    pfdelay = 2
    pfsplit = True
    outx4 = 0
    tlbb = 0
    wbl2 = 0
    hsc1 = 0
    early = 1
    astamp = 0
    ep2_rate = 9
    prefetch_code = True
    prio = 0
    npf = 64
    force_slow = False
    sleep = 1
    w_nt = True
    x_noep = False
    x_nodma = False
    x_nopub = False
    x_nost = False
    x_hplain = False
    x_nodsw = False
    psleep = 1
    stampset = 0

class E:
    def __init__(self): self.L = []
    def __call__(self, s):
        for l in s.split("\n"):
            l = l.strip()
            if l: self.L.append(l)
    def text(self): return "\n".join(self.L)

S_X, S_W1, S_W2, S_OUT, S_WS = 4, 6, 8, 10, 12
S_J, S_MT, S_G, S_WAVE, S_CU = 14, 15, 16, 17, 18
S_FAST = 19
S_TAG = 20
S_T0, S_T1 = 22, 23
SRD_A, SRD_B, SRD_C = 24, 28, 32
SRD_WS, SRD_OUT = 36, 40
S_G1, S_G2 = 44, 45
S_CNT = 46
S_STAMP = 64

def srd(e, d, base, size):
    e(f"s_mov_b32 s{d}, s{base}\ns_and_b32 s{d+1}, s{base+1}, 0xffff\ns_mov_b32 s{d+2}, {size}\ns_mov_b32 s{d+3}, 0x20000")

def prologue(e, o):
    e(f"""
    s_cmp_ge_u32 s2, {NWG + o.npf}
    s_cbranch_scc1 L_end
    s_load_dwordx4 s[4:7], s[0:1], 0
    s_load_dwordx4 s[8:11], s[0:1], 16
    s_load_dwordx2 s[12:13], s[0:1], 40
    """)
    if o.x_perm == 1:
        e("s_lshr_b32 s3, s2, 3\ns_and_b32 s3, s3, 7\ns_xor_b32 s2, s2, s3")
    if o.x_perm == 2:
        e("s_lshr_b32 s3, s2, 5\ns_and_b32 s3, s3, 1\ns_lshr_b32 s22, s2, 3\ns_and_b32 s3, s3, s22\ns_xor_b32 s2, s2, s3")
    if o.prefetch_code:
        e(f"""
        s_getpc_b64 s[{S_T0}:{S_T0+1}]
        L_pf:
        v_lshlrev_b32 v1, 7, v0
        v_min_u32 v1, L_end-L_pf, v1
        global_load_dword v31, v1, s[{S_T0}:{S_T0+1}]
        """)
    if o.stamps:
        e(f"s_memrealtime s[{S_STAMP}:{S_STAMP+1}]\ns_memtime s[{S_STAMP+2}:{S_STAMP+3}]")
    if o.span:
        e(f"s_memrealtime s[{S_STAMP}:{S_STAMP+1}]")
    e(f"""
    v_lshrrev_b32 v1, 6, v0
    s_and_b32 s{S_J}, s2, 7
    s_lshr_b32 s3, s2, 3
    v_readfirstlane_b32 s{S_WAVE}, v1
    s_cmp_ge_u32 s2, {NWG}
    s_cbranch_scc1 L_prefetch
    s_mul_i32 s{S_MT}, s3, 171
    s_lshr_b32 s{S_MT}, s{S_MT}, 9
    s_mul_i32 s{S_G}, s{S_MT}, 3
    s_sub_u32 s{S_G}, s3, s{S_G}
    v_and_b32 v0, 63, v0
    s_cmp_lt_u32 s{S_WAVE}, 4
    s_cbranch_scc1 L_compute
    s_cmp_eq_u32 s{S_WAVE}, 7
    s_cbranch_scc1 L_control
    """)

def common_ids(e):
    e(f"""
    s_add_u32 s{S_G1}, s{S_G}, 1
    s_cmp_eq_u32 s{S_G1}, 3
    s_cselect_b32 s{S_G1}, 0, s{S_G1}
    s_add_u32 s{S_G2}, s{S_G1}, 1
    s_cmp_eq_u32 s{S_G2}, 3
    s_cselect_b32 s{S_G2}, 0, s{S_G2}
    s_lshl_b32 s{S_CU}, s{S_J}, 3
    s_add_u32 s{S_CU}, s{S_CU}, s{S_MT}
    s_mul_i32 s{S_CU}, s{S_CU}, 3
    s_add_u32 s{S_CU}, s{S_CU}, s{S_G}
    s_lshl_b32 s3, s{S_MT}, 7
    """)

def load_epoch(e):
    e(f"s_load_dwordx2 s[{S_TAG}:{S_TAG+1}], s[{S_WS}:{S_WS+1}], s3")
    srd(e, SRD_WS, S_WS, WS_SIZE)
    srd(e, SRD_OUT, S_OUT, 512*576*2)

def finish_tag(e):
    e(f"""
    s_waitcnt lgkmcnt(0)
    s_add_u32 s{S_TAG}, s{S_TAG}, {TAGC_LO:#x}
    s_addc_u32 s{S_TAG+1}, s{S_TAG+1}, {TAGC_HI:#x}
    """)

def dma_unit(e, srd_r, vp, s_off, half_step, lds, flags="", s_tmp=61, s_lb=None):
    pats = vp if len(vp) == 4 else vp * 4
    m0 = (lambda c: f"s_mov_b32 m0, {c}") if s_lb is None else (lambda c: f"s_add_u32 m0, s{s_lb}, {c}")
    e(f"{m0(lds)}\ns_add_u32 s{s_tmp}, s{s_off}, {half_step}")
    for k in range(4):
        e(f"buffer_load_dwordx4 v{pats[k]}, s[{srd_r}:{srd_r+3}], s{s_off} offen offset:{1024*k} {flags} lds")
    e(f"{m0(lds + 4096)}\ns_nop 0")
    for k in range(4):
        e(f"buffer_load_dwordx4 v{pats[k]}, s[{srd_r}:{srd_r+3}], s{s_tmp} offen offset:{1024*k} {flags} lds")

def issue_barrier(n): return -1 if n < R else (n - R) // 3 + 1

V_LX, V_LW1, V_LW2 = 8, 12, 16
S_C = [48, 49, 50]; S_XO = [51, 52, 53]; S_WO = [54, 55, 56]; S_GB = [57, 58, 59]; S_OFF = 60
S_LW, S_LB = 62, 63
S_LH = 47
V_LIN = 20

def lstamp(e, o, k):
    if o.stamps and not o.astamp: e(f"s_memtime s[{S_STAMP+16+2*k}:{S_STAMP+17+2*k}]")

def loader_start(e, o):
    wf = "nt" if o.w_nt else ""
    if o.lprio: e(f"s_setprio {o.lprio}")
    e(f"""
    s_sub_u32 s{S_LW}, s{S_WAVE}, 4
    v_lshrrev_b32 v1, 3, v0
    v_and_b32 v2, 7, v0
    v_lshrrev_b32 v6, 1, v1
    v_mul_u32_u24 v5, 1152, v1
    v_xor_b32 v6, v2, v6
    v_lshlrev_b32 v7, 4, v6
    v_add_u32 v{V_LX}, v5, v7
    v_xor_b32 v7, 64, v7
    v_add_u32 v{V_LX+1}, v5, v7
    v_add_u32 v{V_LX+1}, {9216-1024}, v{V_LX+1}
    v_add_u32 v{V_LX+2}, {2*(9216-1024)}, v{V_LX}
    v_add_u32 v{V_LX+3}, {2*(9216-1024)}, v{V_LX+1}
    s_mul_i32 s{S_T0}, s{S_G}, 3
    s_add_u32 s{S_T0}, s{S_T0}, s{S_MT}
    s_add_u32 s{S_T0}, s{S_T0}, s{S_LW}
    s_cmp_ge_u32 s{S_T0}, 9
    s_cselect_b32 s{S_T1}, 9, 0
    s_sub_u32 s{S_C[0]}, s{S_T0}, s{S_T1}
    s_mul_i32 s{S_T0}, s{S_MT}, {64*1152}
    s_lshl_b32 s{S_XO[0]}, s{S_C[0]}, 7
    s_add_u32 s{S_XO[0]}, s{S_XO[0]}, s{S_T0}
    s_lshl_b32 s{S_LB}, s{S_LW}, 13
    v_and_b32 v3, 2, v1
    v_lshlrev_b32 v3, 1, v3
    v_xor_b32 v3, v2, v3
    v_lshlrev_b32 v3, 4, v3
    v_mul_u32_u24 v4, 9216, v1
    v_add_u32 v{V_LW1}, v4, v3
    v_add_u32 v{V_LW2}, v5, v3
    s_mul_i32 s{S_T1}, s{S_J}, 1152
    s_mul_i32 s3, s{S_G}, 384
    s_add_u32 s{S_T1}, s{S_T1}, s3
    s_mul_i32 s3, s{S_C[0]}, {64*9216}
    s_add_u32 s{S_WO[0]}, s{S_T1}, s3
    v_add_u32 v{V_LW1+1}, {1*(73728-1024)}, v{V_LW1}
    v_add_u32 v{V_LW1+2}, {2*(73728-1024)}, v{V_LW1}
    v_add_u32 v{V_LW1+3}, {3*(73728-1024)}, v{V_LW1}
    s_waitcnt lgkmcnt(0)
    """)
    lstamp(e, o, 0)
    srd(e, SRD_A, S_X, 512*576*2)
    XP = [V_LX, V_LX+1, V_LX+2, V_LX+3]; WP = [V_LW1, V_LW1+1, V_LW1+2, V_LW1+3]
    dma_unit(e, SRD_A, XP, S_XO[0], 4*9216, XH, s_lb=S_LB)
    srd(e, SRD_B, S_W1, 576*4608*2)
    dma_unit(e, SRD_B, WP, S_WO[0], 4*73728, RING, wf, s_lb=S_LB)
    lstamp(e, o, 1)
    for k in (1, 2):
        e(f"""
        s_add_u32 s3, s{S_C[k-1]}, 3
        s_cmp_ge_u32 s3, 9
        s_cselect_b32 s{S_C[k]}, 9, 0
        s_sub_u32 s{S_C[k]}, s3, s{S_C[k]}
        s_lshl_b32 s3, s{S_C[k]}, 7
        s_add_u32 s{S_XO[k]}, s{S_T0}, s3
        s_mul_i32 s3, s{S_C[k]}, {64*9216}
        s_add_u32 s{S_WO[k]}, s{S_T1}, s3
        """)
        if (k == 1 and o.early < 2) or not o.early:
            dma_unit(e, SRD_A, XP, S_XO[k], 4*9216, XH + 3*k*UNIT, s_lb=S_LB)
            dma_unit(e, SRD_B, WP, S_WO[k], 4*73728, RING + 3*k*UNIT, wf, s_lb=S_LB)
    if not o.early:
        e(f"s_cmp_eq_u32 s{S_LW}, 2\ns_cbranch_scc1 L_ld_no4")
        e(f"s_add_u32 s{S_OFF}, s{S_WO[0]}, 128")
        dma_unit(e, SRD_B, WP, S_OFF, 4*73728, RING + 9*UNIT, wf, s_lb=S_LB)
        e("L_ld_no4:")
    lstamp(e, o, 2)
    common_ids(e)
    srd(e, SRD_C, S_W2, 576*4608*2)
    for k in (1, 2, 3):
        e(f"v_add_u32 v{V_LW2+k}, {k*(9216-1024)}, v{V_LW2}")
    e(f"""
    s_mul_i32 s{S_T0}, s{S_J}, {576*1152}
    s_mul_i32 s{S_T1}, s{S_G}, 384
    s_add_u32 s{S_T0}, s{S_T0}, s{S_T1}
    """)
    for k, sg in enumerate((S_G, S_G1, S_G2)):
        e(f"s_mul_i32 s3, s{sg}, {192*1152}\ns_add_u32 s{S_GB[k]}, s{S_T0}, s3")
    e(f"""
    s_cmp_eq_u32 s{S_LW}, 1
    s_cselect_b32 s3, s{S_G1}, s{S_G}
    s_cmp_eq_u32 s{S_LW}, 2
    s_cselect_b32 s3, s{S_G2}, s3
    s_sub_u32 s{S_LH}, s{S_CU}, s{S_G}
    s_add_u32 s{S_LH}, s{S_LH}, s3
    s_mul_i32 s{S_LH}, s{S_LH}, 24576
    s_add_u32 s{S_LH}, s{S_LH}, {WS_H}
    v_lshlrev_b32 v{V_LIN}, 4, v0
    """)
    e(f"s_lshl_b32 s3, s{S_MT}, 7")
    load_epoch(e)
    finish_tag(e)
    e(f"""
    s_cmp_eq_u32 s{S_LW}, 1
    s_cbranch_scc1 L_loader1
    s_cmp_eq_u32 s{S_LW}, 2
    s_cbranch_scc1 L_loader2
    """)

def loader(e, o, lw):
    wf = "nt" if o.w_nt else ""
    WP = [V_LW1, V_LW1+1, V_LW1+2, V_LW1+3]; W2P = [V_LW2, V_LW2+1, V_LW2+2, V_LW2+3]
    e(f"L_loader{lw}:")
    XP = [V_LX, V_LX+1, V_LX+2, V_LX+3]
    if o.early == 2: seq = [("x", lw), ("w", lw)]
    elif o.early: seq = [("x", lw), ("w", lw), ("x", 3+lw), ("w", 3+lw)]
    else: seq = [("x", lw), ("w", lw), ("x", 3+lw), ("w", 3+lw), ("x", 6+lw), ("w", 6+lw)] + ([("w", 9+lw)] if 9 + lw < R else [])
    def issue_w(n):
        slot = n % R
        if n < 27:
            s, i = n // 9, n % 9
            t = i // 3
            e(f"s_add_u32 s{S_OFF}, s{S_WO[t]}, {128*s}")
            dma_unit(e, SRD_B, WP, S_OFF, 4*73728, RING + slot*UNIT, wf)
        else:
            p, u = P2[n - 27]
            k, s = PCH[p]
            e(f"s_add_u32 s{S_OFF}, s{S_GB[k]}, {73728*s + 128*u}")
            dma_unit(e, SRD_C, W2P, S_OFF, 4*9216, RING + slot*UNIT, wf)
        seq.append(("w", n))
    hb = {o.h0b: 0, o.h1b: 1, o.h2b: 2}
    hneed = {9: 0, 12: 1, (15 if o.order else 14): 2}
    for st in range(18):
        need = [("w", 3*st + lw)] + ([("x", 3*st + lw)] if st < 3 else []) + ([("h", hneed[st])] if st in hneed else [])
        last = max(seq.index(x) for x in need)
        n = 8 * (len(seq) - 1 - last)
        assert n <= 63
        e(f"s_waitcnt vmcnt({n})")
        if st == 0 and not o.astamp: lstamp(e, o, 3)
        if o.astamp and o.astamp <= st < o.astamp + 6: e(f"s_memtime s[{S_STAMP+16+2*(st-o.astamp)}:{S_STAMP+17+2*(st-o.astamp)}]")
        e("s_barrier")
        if st in hb:
            sg = hb[st]
            e(f"s_add_u32 s{S_OFF}, s{S_LH}, {sg*UNIT}")
            dma_unit(e, SRD_WS, [V_LIN], S_OFF, 4096, XH + (3*sg + lw)*UNIT, "" if o.x_hplain else "sc1"); seq.append(("h", sg))
        if o.early == 2 and st == 0:
            dma_unit(e, SRD_A, XP, S_XO[1], 4*9216, XH + (3 + lw)*UNIT); seq.append(("x", 3 + lw))
            issue_w(3 + lw)
        if o.early and st == 0:
            dma_unit(e, SRD_A, XP, S_XO[2], 4*9216, XH + (6 + lw)*UNIT); seq.append(("x", 6 + lw))
            issue_w(6 + lw)
        if o.early and st == 1 and 9 + lw < R: issue_w(9 + lw)
        for nn in range(R, 54):
            if nn % 3 == lw and issue_barrier(nn) == st:
                if o.x_nodma: seq.append(('w', nn))
                else: issue_w(nn)
    if o.stamps and (lw == 0 or o.astamp):
        base = WS_ST + 192 if not o.astamp else WS_ST + 192*512 + (1 + lw)*64
        e(f"s_waitcnt lgkmcnt(0)\ns_lshl_b32 s3, s{S_CU}, 9\ns_add_u32 s3, s3, {base}\ns_mov_b64 exec, 1\nv_mov_b32 v1, 0")
        for k, r0 in enumerate((S_STAMP, S_STAMP+16, S_STAMP+20, S_STAMP+24)):
            for q in range(4): e(f"v_mov_b32 v{4+q}, s{r0+q}")
            e(f"buffer_store_dwordx4 v[4:7], v1, s[{SRD_WS}:{SRD_WS+3}], s3 offen offset:{k*16}\ns_nop 1")
        e("s_mov_b64 exec, -1")
    e("s_branch L_gather")

def _poll(e, o, name, vaddr, imm, mask, vtag, vtmp, sleep=None):
    sleep = o.sleep if sleep is None else sleep
    e(f"""
    s_mov_b64 exec, {mask}
    s_mov_b32 s{S_CNT}, {SPIN_MAX}
    L_poll_{name}:
    buffer_load_dwordx2 v[{vtmp}:{vtmp+1}], v{vaddr}, s[{SRD_WS}:{SRD_WS+3}], 0 offen offset:{imm} sc1
    s_waitcnt vmcnt(0)
    v_cmp_ne_u64 vcc, v[{vtmp}:{vtmp+1}], v[{vtag}:{vtag+1}]
    s_sub_u32 s{S_CNT}, s{S_CNT}, 1
    s_cmp_eq_u32 s{S_CNT}, 0
    s_cbranch_scc1 L_polldone_{name}
    s_nop 1
    s_cbranch_vccz L_polldone_{name}
    """)
    if sleep: e(f"s_sleep {sleep}")
    e(f"""
    s_branch L_poll_{name}
    L_polldone_{name}:
    s_mov_b64 exec, -1
    """)

def control(e, o):
    V_LIN, V_POLL, V_TAG, V_TMP, V_ID = 8, 9, 10, 12, 14
    S_OFF, S_H1, S_H2, S_XCC, S_H0 = 60, 48, 49, 50, 51
    e("L_control:")
    if o.cprio: e(f"s_setprio {o.cprio}")
    common_ids(e)
    e("s_waitcnt lgkmcnt(0)")
    load_epoch(e)
    def tlb_warm():
        e(f"""
        v_min_u32 v26, 39, v0
        v_lshlrev_b32 v26, 18, v26
        buffer_load_dword v29, v26, s[{SRD_WS}:{SRD_WS+3}], 0 offen offset:2048 sc1
        v_min_u32 v27, 8, v0
        v_lshlrev_b32 v27, 16, v27
        buffer_load_dword v28, v27, s[{SRD_OUT}:{SRD_OUT+3}], 0 offen sc1
        """)
    if o.tlbw and not o.tlbb: tlb_warm()
    e(f"""
    s_getreg_b32 s{S_XCC}, hwreg(HW_REG_XCC_ID, 0, 4)
    v_lshlrev_b32 v{V_LIN}, 4, v0
    s_sub_u32 s{S_T0}, s{S_CU}, s{S_G}
    s_add_u32 s{S_H1}, s{S_T0}, s{S_G1}
    s_add_u32 s{S_H2}, s{S_T0}, s{S_G2}
    s_lshl_b32 s{S_T0}, s{S_H1}, 7
    s_lshl_b32 s{S_T1}, s{S_H2}, 7
    v_mov_b32 v1, s{S_T0}
    v_mov_b32 v2, s{S_T1}
    s_lshl_b32 s{S_OFF}, s{S_CU}, 7
    v_mov_b32 v7, s{S_OFF}
    v_lshrrev_b32 v3, 2, v0
    v_cmp_eq_u32 vcc, 1, v3
    v_and_b32 v6, 3, v0
    v_lshlrev_b32 v6, 3, v6
    v_cndmask_b32 v4, v7, v1, vcc
    v_cmp_eq_u32 vcc, 2, v3
    s_mul_i32 s{S_H1}, s{S_H1}, 24576
    s_mul_i32 s{S_H2}, s{S_H2}, 24576
    v_cndmask_b32 v4, v4, v2, vcc
    v_add_u32 v4, {WS_HF}, v4
    v_add_u32 v{V_POLL}, v4, v6
    v_cmp_eq_u32 vcc, 0, v0
    s_mul_i32 s{S_H0}, s{S_CU}, 24576
    s_add_u32 s{S_H0}, s{S_H0}, {WS_H}
    v_cndmask_b32 v4, v2, v1, vcc
    v_add_u32 v{V_ID}, {WS_ID}, v4
    s_add_u32 s{S_H1}, s{S_H1}, {WS_H}
    s_add_u32 s{S_H2}, s{S_H2}, {WS_H}
    """)
    finish_tag(e)
    e(f"""
    s_add_u32 s{S_T0}, s{S_XCC}, 16
    s_add_u32 s{S_T0}, s{S_TAG}, s{S_T0}
    s_addc_u32 s{S_T1}, s{S_TAG+1}, 0
    v_mov_b32 v4, s{S_T0}
    v_mov_b32 v5, s{S_T1}
    s_lshl_b32 s3, s{S_CU}, 7
    s_add_u32 s3, s3, {WS_ID}
    v_mov_b32 v6, s3
    v_mov_b32 v{V_TAG}, s{S_TAG}
    v_mov_b32 v{V_TAG+1}, s{S_TAG+1}
    s_mov_b64 exec, 1
    buffer_store_dwordx2 v[4:5], v6, s[{SRD_WS}:{SRD_WS+3}], 0 offen sc1
    s_mov_b64 exec, -1
    """)
    def hdma(s):
        for k, sh in enumerate((S_H0, S_H1, S_H2)):
            p = 3 * s + k
            e(f"s_add_u32 s{S_OFF}, s{sh}, {s*UNIT}")
            dma_unit(e, SRD_WS, [V_LIN], S_OFF, 4096, XH + p * UNIT, "sc1")
    def stamp(k):
        if o.stamps: e(f"s_memtime s[{S_STAMP+4+2*k}:{S_STAMP+5+2*k}]\ns_waitcnt lgkmcnt(0)")
    bl = [0,1,2,3,6,9,10,11,12,13,14,15,16,17] if o.stampset == 0 else [0,2,3,4,5,6,7,8,9,10,11,12,14,17]
    slots = {b: i for i, b in enumerate(bl)}
    for st in range(18):
        if st == o.fastb - 2:
            e(f"s_mov_b64 exec, 3\nbuffer_load_dwordx2 v[{V_TMP}:{V_TMP+1}], v{V_ID}, s[{SRD_WS}:{SRD_WS+3}], 0 offen sc1\ns_mov_b64 exec, -1")
        if o.touch and st == o.fastb - 2:
            e(f"""
            v_lshlrev_b32 v20, 7, v0
            s_mul_i32 s{S_OFF}, s{S_CU}, {48*FS[0]}
            s_add_u32 s{S_OFF}, s{S_OFF}, {WS_PF if FS[0] == 8 else WS_PFX}
            s_mov_b64 exec, {"7" if FS[0] == 8 else "-1"}
            buffer_load_dword v24, v20, s[{SRD_WS}:{SRD_WS+3}], s{S_OFF} offen sc1
            s_lshl_b32 s{S_OFF}, s{S_CU}, 7
            s_add_u32 s{S_OFF}, s{S_OFF}, {WS_HF}
            s_mov_b64 exec, 1
            buffer_load_dword v25, v20, s[{SRD_WS}:{SRD_WS+3}], s{S_OFF} offen
            s_mov_b64 exec, -1
            """)
        for sg, tb in enumerate((o.t0b, o.t1b, o.t2b)):
            if o.ctouch and st == tb:
                e(f"""
                s_mul_i32 s{S_OFF}, s{S_CU}, 24576
                s_add_u32 s{S_OFF}, s{S_OFF}, {WS_H + sg*UNIT}
                buffer_load_dword v{21+sg}, v20, s[{SRD_WS}:{SRD_WS+3}], s{S_OFF} offen
                """)
        if st == o.fastb: e("s_waitcnt lgkmcnt(0)")
        if st == o.fastb - 1:
            e(f"""
            s_mov_b64 exec, 3
            s_mov_b32 s{S_CNT}, {SPIN_MAX}
            s_waitcnt vmcnt({(2 + (o.ctouch and o.fastb - 2 <= o.t0b <= o.fastb - 1)) if o.touch else 0})
            s_branch L_check_id
            L_poll_id:
            buffer_load_dwordx2 v[{V_TMP}:{V_TMP+1}], v{V_ID}, s[{SRD_WS}:{SRD_WS+3}], 0 offen sc1
            s_waitcnt vmcnt(0)
            L_check_id:
            v_subrev_co_u32 v4, vcc, s{S_TAG}, v{V_TMP}
            v_mov_b32 v6, s{S_TAG+1}
            s_nop 0
            v_subb_co_u32 v5, vcc, v{V_TMP+1}, v6, vcc
            v_subrev_u32 v4, 16, v4
            v_lshrrev_b32 v6, 4, v4
            v_or_b32 v6, v6, v5
            v_cmp_ne_u32 vcc, 0, v6
            s_sub_u32 s{S_CNT}, s{S_CNT}, 1
            s_cmp_eq_u32 s{S_CNT}, 0
            s_cbranch_scc1 L_id_done
            s_nop 1
            s_cbranch_vccz L_id_done
            s_sleep 1
            s_branch L_poll_id
            L_id_done:
            v_cmp_ne_u32 vcc, s{S_XCC}, v4
            s_mov_b32 s{S_FAST}, {0 if o.force_slow else 1}
            s_nop 1
            s_cmp_eq_u64 vcc, 0
            s_cselect_b32 s{S_FAST}, s{S_FAST}, 0
            s_mov_b64 exec, 1
            v_mov_b32 v4, s{S_FAST}
            v_mov_b32 v5, {FASTW}
            ds_write_b32 v5, v4
            s_mov_b64 exec, -1
            """)
        if o.sent and st == o.h0b - 1:
            e(f"""
            s_mul_i32 s3, s{S_MT}, 3
            s_add_u32 s3, s3, s{S_G}
            s_lshl_b32 s3, s3, 7
            s_add_u32 s3, s3, {WS_CF}
            v_mul_u32_u24 v37, {24*128}, v0
            v_add_u32 v37, s3, v37
            """)
        if st == o.h0b: _poll(e, o, "h0", V_POLL, 0, "0xfff", V_TAG, V_TMP)
        if o.sent and st == o.h0b:
            e(f"s_mov_b64 exec, 0xff\nbuffer_load_dwordx2 v[38:39], v37, s[{SRD_WS}:{SRD_WS+3}], 0 offen sc1\ns_mov_b64 exec, -1")
        if st == o.h1b: _poll(e, o, "h1", V_POLL, 32, "0xfff", V_TAG, V_TMP)
        if o.sent and st == o.h1b:
            e(f"""
            s_mov_b64 exec, 0xff
            v_cmp_ne_u64 vcc, v[38:39], v[{V_TAG}:{V_TAG+1}]
            s_nop 4
            s_mov_b64 exec, -1
            s_cbranch_vccz L_cf_ok
            """)
            _poll(e, o, "cf", 37, 0, "0xff", V_TAG, V_TMP)
            e("L_cf_ok:")
        if st == o.h2b: _poll(e, o, "h2", V_POLL, 64, "0xfff", V_TAG, V_TMP)
        e("s_barrier")
        if o.tlbw and o.tlbb and st == o.tlbb: tlb_warm()
        if o.wbl2 and st == o.wbl2:
            e(f"""
            s_or_b32 s3, s{S_MT}, s{S_G}
            s_cmp_lg_u32 s3, 0
            s_cbranch_scc1 L_nowb
            buffer_wbl2 sc1
            L_nowb:
            """)
        if st in slots: stamp(slots[st])
    if o.stamps:
        e(f"s_waitcnt lgkmcnt(0)")
        e(f"s_lshl_b32 s3, s{S_CU}, 9\ns_add_u32 s3, s3, {WS_ST}")
        e("s_mov_b64 exec, 1\nv_mov_b32 v1, 0")
        for k in range(0, 32, 4):
            for q in range(4): e(f"v_mov_b32 v{4+q}, s{S_STAMP+k+q}")
            e(f"buffer_store_dwordx4 v[4:7], v1, s[{SRD_WS}:{SRD_WS+3}], s3 offen offset:{k*4}\ns_nop 1")
        e(f"v_mov_b32 v4, s{S_FAST}\nbuffer_store_dword v4, v1, s[{SRD_WS}:{SRD_WS+3}], s3 offen offset:128")
        e("s_mov_b64 exec, -1")
    e("s_branch L_gather")

V_T1, V_T1B, V_T2, V_T2B = 2, 3, 4, 5
V_X = 6; V_X8 = 10
V_PF, V_PV = 6, 7
V_H, V_H8, V_FW, V_HG = 14, 15, 16, 17
V_HF = 1
V_TAG = 18
V_EP = 20
V_P = 24
V_WF = 32
V_ACC1 = 64
V_XF = 112
S_MH, S_NH, S_HST, S_NL2E = 48, 49, 50, 51
S_PO = 52
S_PFB = 54

class Stream:
    def __init__(self, e): self.e = e; self.nlds = 0; self.done = 0; self.count = 0; self.fast_ok = False; self.flags = set(); self.hold_silu = 0
    def emit(self, s):
        for l in s.split("\n"):
            l = l.strip()
            if l:
                self.e(l)
                if not l.endswith(":"): self.count += 1
    def lds(self, s):
        self.emit(s); self.nlds += 1; return self.nlds
    def wait_lds(self, opid):
        if opid <= self.done: return
        n = min(self.nlds - opid, 15)
        self.emit(f"s_waitcnt lgkmcnt({n})"); self.done = self.nlds - n

_uid = [0]
OUTLINE = []
NOST = [False, False, 0, False]
def dual(txt, force_sc1=False):
    if force_sc1: return txt + " sc1"
    _uid[0] += 1; k = _uid[0]
    OUTLINE.append(f"L_ds{k}:\n{txt} sc1\ns_branch L_dd{k}")
    nt = " nt" if (NOST[3] and "dwordx4" in txt) else ""
    return (f"s_cmp_eq_u32 s{S_FAST}, 0\ns_cbranch_scc1 L_ds{k}\n{txt}{nt}\nL_dd{k}:")

def silu_ops(acc, s, noep=False):
    ops = []
    for q in range(4):
        v = [acc + 4 * q + r for r in range(4)]
        t = [V_EP + r for r in range(4)]
        if not noep:
            for r in range(4): ops.append(("silu", f"v_mul_f32 v{t[r]}, s{S_NL2E}, v{v[r]}"))
            for r in range(4): ops.append(("v", f"v_exp_f32 v{t[r]}, v{t[r]}"))
            for r in range(4): ops.append(("v", f"v_add_f32 v{t[r]}, 1.0, v{t[r]}"))
            for r in range(4): ops.append(("v", f"v_rcp_f32 v{t[r]}, v{t[r]}"))
            for r in range(4): ops.append(("silu", f"v_mul_f32 v{v[r]}, v{v[r]}, v{t[r]}"))
        ops.append(("silu", f"v_cvt_pk_bf16_f32 v{V_P+2*q}, v{v[0]}, v{v[1]}"))
        ops.append(("silu", f"v_cvt_pk_bf16_f32 v{V_P+2*q+1}, v{v[2]}, v{v[3]}"))
    sts = [("st", "s_nop 0" if NOST[0] else dual(f"buffer_store_dwordx4 v[{V_P+4*tt}:{V_P+4*tt+3}], v{V_HG}, s[{SRD_WS}:{SRD_WS+3}], s{S_HST} offen offset:{tt*1024}", s < NOST[2])) for tt in range(2)]
    if s < NOST[2] or s == 2:
        k = [i for i, x in enumerate(ops) if x[1].startswith(f"v_cvt_pk_bf16_f32 v{V_P+3},")]
        if k: ops.insert(k[0] + 1, sts[0]); ops.append(sts[1])
        else: ops += sts
    else: ops += sts
    if s < 2: ops.append(("v", f"s_add_u32 s{S_HST}, s{S_HST}, {UNIT}"))
    return ops

def hflag_ops(s, n):
    return [("v", f"s_waitcnt vmcnt({n})\ns_mov_b64 exec, 1"),
            ("st", dual(f"buffer_store_dwordx2 v[{V_TAG}:{V_TAG+1}], v{V_HF}, s[{SRD_WS}:{SRD_WS+3}], 0 offen offset:{s*32}")),
            ("flag%d" % s, "s_mov_b64 exec, -1")]

def pflag(e, u, n):
    e(f"""
    s_mov_b32 s60, {u*16*FS[0]}
    s_waitcnt vmcnt({n})
    s_mov_b64 exec, 0xf
    buffer_store_dwordx2 v[{V_TAG}:{V_TAG+1}], v{V_PF}, s[{SRD_WS}:{SRD_WS+3}], s60 offen sc1
    s_mov_b64 exec, -1
    """)

def compute(e, o):
    e("L_compute:")
    if o.prio: e(f"s_setprio {o.prio}")
    common_ids(e)
    e(f"""
    s_lshr_b32 s{S_MH}, s{S_WAVE}, 1
    s_and_b32 s{S_NH}, s{S_WAVE}, 1
    s_mov_b32 s{S_NL2E}, 0xbfb8aa3b
    v_lshrrev_b32 v20, 5, v0
    v_lshrrev_b32 v21, 4, v0
    v_and_b32 v21, 1, v21
    v_and_b32 v22, 15, v0
    v_lshrrev_b32 v23, 2, v22
    v_and_b32 v22, 3, v22
    v_lshrrev_b32 v24, 1, v22
    v_lshl_add_u32 v24, v21, 1, v24
    s_lshl_b32 s{S_T0}, s{S_NH}, 2
    v_add_u32 v24, s{S_T0}, v24
    v_and_b32 v25, 2, v23
    v_lshlrev_b32 v25, 1, v25
    v_xor_b32 v24, v24, v25
    v_lshlrev_b32 v24, 4, v24
    v_and_b32 v22, 1, v22
    v_lshl_add_u32 v24, v22, 3, v24
    v_lshl_add_u32 v24, v23, 7, v24
    v_add_u32 v24, {RING}, v24
    v_lshl_add_u32 v{V_T1}, v20, 10, v24
    v_lshl_add_u32 v{V_T2}, v20, 9, v24
    v_add_u32 v{V_T1B}, {8*UNIT}, v{V_T1}
    v_add_u32 v{V_T2B}, {8*UNIT}, v{V_T2}
    v_and_b32 v25, 31, v0
    v_lshrrev_b32 v26, 1, v25
    v_and_b32 v26, 7, v26
    v_xor_b32 v26, v20, v26
    v_lshlrev_b32 v26, 4, v26
    s_lshl_b32 s{S_T1}, s{S_MH}, 12
    v_lshl_add_u32 v26, v25, 7, v26
    v_add_u32 v{V_X}, s{S_T1}, v26
    v_xor_b32 v{V_X+1}, 32, v{V_X}
    v_xor_b32 v{V_X+2}, 64, v{V_X}
    v_xor_b32 v{V_X+3}, 96, v{V_X}
    """)
    for ks in range(4): e(f"v_add_u32 v{V_X8+ks}, {8*UNIT}, v{V_X+ks}")
    e(f"""
    v_lshlrev_b32 v27, 4, v0
    v_add_u32 v{V_H}, s{S_T1}, v27
    v_add_u32 v{V_H8}, {8*UNIT}, v{V_H}
    s_lshl_b32 s{S_T0}, s{S_NH}, 11
    v_add_u32 v{V_HG}, s{S_T0}, v{V_H}
    s_mul_i32 s{S_HST}, s{S_CU}, 24576
    s_add_u32 s{S_HST}, s{S_HST}, {WS_H}
    s_lshl_b32 s{S_T0}, s{S_CU}, 7
    s_lshl_b32 s{S_T1}, s{S_WAVE}, 3
    s_add_u32 s{S_T0}, s{S_T0}, s{S_T1}
    s_add_u32 s{S_T0}, s{S_T0}, {WS_HF}
    v_mov_b32 v{V_HF}, s{S_T0}
    s_mul_i32 s{S_T0}, s{S_MT}, 3
    s_add_u32 s{S_T0}, s{S_T0}, s{S_G}
    s_lshl_b32 s{S_T1}, s{S_MH}, 2
    s_mul_i32 s{S_T1}, s{S_T1}, 24
    s_add_u32 s{S_T0}, s{S_T0}, s{S_T1}
    s_mul_i32 s{S_PO}, s{S_T0}, 24576
    s_mul_i32 s{S_T1}, s{S_J}, 3072
    s_add_u32 s{S_PO}, s{S_PO}, s{S_T1}
    s_lshl_b32 s{S_T1}, s{S_NH}, 9
    s_add_u32 s{S_PO}, s{S_PO}, s{S_T1}
    s_add_u32 s{S_PO}, s{S_PO}, {WS_P}
    s_add_u32 s{S_PO+1}, s{S_PO}, {2*24*24576}
    s_mul_i32 s{S_T0}, s{S_T0}, {48*FS[0]}
    s_lshl_b32 s{S_T1}, s{S_J}, 1
    s_add_u32 s{S_T1}, s{S_T1}, s{S_NH}
    s_mul_i32 s{S_T1}, s{S_T1}, {FS[0]}
    s_add_u32 s{S_T0}, s{S_T0}, s{S_T1}
    s_add_u32 s{S_PFB}, s{S_T0}, {WS_PF if FS[0] == 8 else WS_PFX}
    v_mov_b32 v{V_FW}, {FASTW}
    s_waitcnt lgkmcnt(0)
    """)
    load_epoch(e)
    finish_tag(e)
    e(f"v_mov_b32 v{V_TAG}, s{S_TAG}\nv_mov_b32 v{V_TAG+1}, s{S_TAG+1}")
    if not o.latew: e("s_waitcnt vmcnt(0)")

    tasks = []
    def ringbase(n, vA, vB):
        slot = n % R
        return (vA, slot * UNIT) if slot < 8 else (vB, (slot - 8) * UNIT)
    for n in range(27):
        st = n // 3; s = n // 9; i = n % 9
        base, so = ringbase(n, V_T1, V_T1B)
        for ks in range(4):
            t = dict(step=st, first=(n % 3 == 0 and ks == 0), idx=len(tasks))
            t["wr"] = [(base, so + (16 * ks + 4 * b) * 128) for b in range(2)]
            xf = V_XF + (i * 4 + ks) * 4
            t["pre"] = []
            if s == 0:
                xb = (V_X8 + ks) if i == 8 else (V_X + ks)
                t["pre"] = [f"ds_read_b128 v[{xf}:{xf+3}], v{xb} offset:{0 if i == 8 else i*UNIT}"]
            acc = V_ACC1 + 16 * (s & 1)
            t["mf"] = lambda wf, acc=acc, xf=xf, z=(i == 0 and ks == 0): f"v_mfma_f32_32x32x16_bf16 v[{acc}:{acc+15}], v[{wf}:{wf+3}], v[{xf}:{xf+3}], " + ("0" if z else f"v[{acc}:{acc+15}]")
            tasks.append(t)
    seen_p, seen_u, last_u = set(), set(), {}
    ACCU = {0: V_ACC1 + 16, 1: V_ACC1 + 32, 2: V_ACC1}
    for q, (p, u) in enumerate(P2):
        n = 27 + q; st = n // 3
        base, so = ringbase(n, V_T2, V_T2B)
        for ks in range(4):
            t = dict(step=st, first=(n % 3 == 0 and ks == 0), idx=len(tasks))
            t["wr"] = [(base, so + (16 * ks + 8 * b) * 128) for b in range(2)]
            hf = V_XF + (p * 4 + ks) * 4
            t["pre"] = []
            if p not in seen_p:
                hb = V_H8 if p == 8 else V_H
                t["pre"] = [f"ds_read_b128 v[{hf}:{hf+3}], v{hb} offset:{(0 if p == 8 else p*UNIT) + ks*1024}"]
            acc = ACCU[u]
            t["mf"] = lambda wf, acc=acc, hf=hf, z=(u not in seen_u and ks == 0): f"v_mfma_f32_32x32x16_bf16 v[{acc}:{acc+15}], v[{hf}:{hf+3}], v[{wf}:{wf+3}], " + ("0" if z else f"v[{acc}:{acc+15}]")
            tasks.append(t); last_u[u] = t["idx"]
        seen_p.add(p); seen_u.add(u)
    global PUBACC
    n = len(tasks)
    S = Stream(e)
    NP = n // 2
    side = []; side_start = [0]; hold = [0]; cur = [0]
    last_of_step = {}
    for t in tasks: last_of_step[t["step"]] = t["idx"]
    def pubops(u):
        ops = []
        a = ACCU[u]
        for q in range(8): ops.append(("v", f"v_cvt_pk_bf16_f32 v{V_P+q}, v{a+2*q}, v{a+2*q+1}"))
        ops.append(("v", "s_nop 0"))
        for q in range(2):
            d = V_P + 4 * q
            ops.append(("v", f"v_permlane32_swap_b32 v{d}, v{d+2}"))
            ops.append(("v", f"v_permlane32_swap_b32 v{d+1}, v{d+3}"))
        if not o.x_nopub:
            for q in range(2):
                d = V_P + 4 * q
                ops.append(("st", f"buffer_store_dwordx4 v[{d}:{d+3}], v{V_PV}, s[{SRD_WS}:{SRD_WS+3}], s{S_PO+q} offen offset:{u*1024} sc1"))
            ops.append(("v", "s_nop 0"))
        return ops
    def cost(kind, txt):
        if kind == "lds": return 24
        if kind == "st": return 16
        if txt.startswith(("v_exp", "v_rcp")): return 8
        if txt.startswith("s_") and not txt.startswith(("s_waitcnt", "s_nop")): return 2
        return 4
    def pop_side(budget):
        used = 0
        while side and S.count >= side_start[0] and cur[0] >= hold[0]:
            kind, txt = side[0]
            if kind == "gap": side.pop(0); hold[0] = cur[0] + txt; continue
            if kind == "st" and "L_ds" in txt and not S.fast_ok: break
            if kind == "silu" and S.count < S.hold_silu: break
            c = cost(kind, txt)
            if used and used + c > budget: break
            side.pop(0)
            if kind == "lds": S.lds(txt)
            else: S.emit(txt)
            if kind.startswith("flag"): S.flags.add(int(kind[4:]))
            used += c
    NR = o.LP + 1
    def tr_reads(q):
        for h in range(2):
            t = tasks[2*q + h]
            wf = V_WF + 8 * (q % NR) + 4 * h
            t["wf"] = wf
            for b, (base, off) in enumerate(t["wr"]):
                t["last"] = S.lds(f"ds_read_b64_tr_b16 v[{wf+2*b}:{wf+2*b+1}], v{base} offset:{off}")
    def pre_reads(q):
        k = 0
        for h in range(2):
            t = tasks[2*q + h]
            for x in t["pre"]:
                t["last"] = S.lds(x); k += 1
        return k
    def barrier(step):
        for fs, fb in ((0, o.h0b), (1, o.h1b), (2, o.h2b)):
            if step == fb: assert fs in S.flags, f"flag {fs} must be sent before B_{fb} (the control wave waits for it there)"
        if o.astamp and o.astamp <= step < o.astamp + 6: S.emit(f"s_memtime s[{S_STAMP+16+2*(step-o.astamp)}:{S_STAMP+17+2*(step-o.astamp)}]")
        S.emit("s_waitcnt lgkmcnt(0)"); S.done = S.nlds
        S.emit("s_barrier")
    late_addr = [("v", f"v_and_b32 v{V_PV}, 31, v0"), ("v", f"v_lshrrev_b32 v{V_PF}, 5, v0"), ("v", f"v_lshlrev_b32 v{V_PV}, 4, v{V_PV}"),
                 ("v", f"v_mul_u32_u24 v{V_PF}, {24*24576}, v{V_PF}"), ("v", f"v_add_u32 v{V_PV}, v{V_PV}, v{V_PF}"),
                 ("v", f"v_mul_u32_u24 v{V_PF}, {24*48*FS[0]}, v0"), ("v", f"v_add_u32 v{V_PF}, s{S_PFB}, v{V_PF}")]
    budget = o.epb
    pubq = []
    fast_known = False
    barrier(0)
    for q0 in range(o.LP):
        tr_reads(q0); pre_reads(q0)
    for q in range(NP):
        cur[0] = q
        A, B = tasks[2*q], tasks[2*q+1]
        nq = q + o.LP
        deferred = False
        f9 = 6 * 9
        if o.ep2first and q == f9:
            S.emit("s_nop 7\ns_nop 3")
            side_start[0] = 0; S.hold_silu = 0
            pop_side(10**6)
            barrier(9)
            for q0 in range(f9, f9 + o.LP): tr_reads(q0); pre_reads(q0)
        if nq < NP and not (o.ep2first and f9 <= nq < f9 + o.LP):
            if tasks[2*nq]["first"]:
                barrier(tasks[2*nq]["step"]); deferred = True
            else:
                tr_reads(nq)
        skip_pre = o.ep2first and f9 <= nq < f9 + o.LP
        if A["first"] and A["step"] == 11:
            assert not any(x[0] == "silu" for x in side), "acc of sub-tile 2 still in use"
        S.wait_lds(max(A["last"], B["last"]))
        S.emit(A["mf"](A["wf"]))
        if deferred:
            if tasks[2*nq]["step"] == o.fastb: S.lds(f"ds_read_b32 v{V_FW}, v{V_FW}")
            tr_reads(nq); pre_reads(nq)
        else:
            k = pre_reads(nq) if (nq < NP and not skip_pre) else 0
            if not (o.ep2first and q >= f9 - 0 and side and side[0][0] == 'silu' and False): pop_side(budget if k == 0 else max(budget - 24, 4))
            if o.wgap2 and q + 1 < NP and k == 0 and "last" in tasks[2*q+2] and "last" in tasks[2*q+3]:
                S.wait_lds(max(tasks[2*q+2]["last"], tasks[2*q+3]["last"]))
        S.emit(B["mf"](B["wf"]))
        if A["first"] and A["step"] == o.fastb:
            S.emit(f"v_readfirstlane_b32 s{S_FAST}, v{V_FW}"); S.fast_ok = True
        im = B["idx"]
        if im == last_of_step.get(2):
            if o.latew: side.append(("v", "s_waitcnt vmcnt(0)"))
            side += silu_ops(V_ACC1, 0, o.x_noep) + [("gap", o.gap0)] + hflag_ops(0, 0); side_start[0] = S.count + 12; budget = o.epb0
        if im == last_of_step.get(5):
            assert not any(x[0] == "silu" or x[0] == "st" and "x4" in x[1] for x in side), len(side)
            side += silu_ops(V_ACC1 + 16, 1, o.x_noep); budget = o.epb
            S.hold_silu = S.count + 12
        if im == last_of_step.get(8):
            assert not side, len(side)
            ops2 = silu_ops(V_ACC1, 2, o.x_noep)
            k1 = min(o.f1pos, len(ops2) - 2)
            ops2 = ops2[:k1] + hflag_ops(1, 0) + ops2[k1:]
            side += ops2 + late_addr + [("gap", o.gap2)] + hflag_ops(2, 0); side_start[0] = S.count + 12; budget = o.epb2
        for u, at in ((0, o.pub0), (1, o.pub1)):
            if at and q >= NP - at and im >= last_u[u] + 4 and u not in pubq and not side:
                pubq.append(u); side += pubops(u); side_start[0] = S.count; budget = 24
    assert not side
    if o.x_pad:
        e(f"s_mov_b32 s60, {o.x_pad}\nL_xpad:\nv_mov_b32 v20, v21\nv_mov_b32 v22, v21\nv_mov_b32 v20, v21\nv_mov_b32 v22, v21\ns_sub_u32 s60, s60, 1\ns_cmp_lg_u32 s60, 0\ns_cbranch_scc1 L_xpad")
    e("s_nop 7")
    if o.stamps: e(f"s_memtime s[{S_STAMP+4}:{S_STAMP+5}]")
    e("s_nop 3")
    rest = [u for u in (0, 1, 2) if u not in pubq]
    order = pubq + rest
    for u in rest:
        for k, x in pubops(u): e(x)
    for i, u in enumerate(order):
        younger = 2 * (len(order) - 1 - i) + i
        if o.x_nopub: younger = i
        if o.stamps and i == 2: e(f"s_memtime s[{S_STAMP+14}:{S_STAMP+15}]")
        if o.sent and u == 2: continue
        pflag(e, u, younger)
    if o.stamps:
        e(f"s_memtime s[{S_STAMP+6}:{S_STAMP+7}]")
        e(f"s_cmp_lg_u32 s{S_WAVE}, 0\ns_cbranch_scc1 L_end\ns_waitcnt lgkmcnt(0)")
        e(f"s_lshl_b32 s3, s{S_CU}, 9\ns_add_u32 s3, s3, {WS_ST + 256}\ns_mov_b64 exec, 1\nv_mov_b32 v1, 0")
        for k in range(0, 16, 4):
            for q in range(4): e(f"v_mov_b32 v{4+q}, s{S_STAMP+k+q}")
            e(f"buffer_store_dwordx4 v[4:7], v1, s[{SRD_WS}:{SRD_WS+3}], s3 offen offset:{k*4}\ns_nop 1")
        if o.astamp:
            e(f"s_lshl_b32 s3, s{S_CU}, 9\ns_add_u32 s3, s3, {WS_ST + 192*512}")
            for k, r0 in enumerate((S_STAMP, S_STAMP+16, S_STAMP+20, S_STAMP+24)):
                for q in range(4): e(f"v_mov_b32 v{4+q}, s{r0+q}")
                e(f"buffer_store_dwordx4 v[4:7], v1, s[{SRD_WS}:{SRD_WS+3}], s3 offen offset:{k*16}\ns_nop 1")
        e("s_waitcnt vmcnt(0)")
    if o.gsplit:
        e(f"s_cmp_lt_u32 s{S_WAVE}, 3\ns_cbranch_scc1 L_gather")
    e("s_endpgm")

def gather(e, o):
    VT, VA, VL, VD, VS = 2, 4, 5, 8, 44
    S_U = 48
    e("L_gather:")
    e(f"""
    s_cmp_eq_u32 s{S_WAVE}, 7
    s_cbranch_scc1 L_end
    s_and_b32 s{S_U}, s{S_WAVE}, 3
    s_cmp_lt_u32 s{S_WAVE}, 4
    s_cselect_b32 s57, 1, 0
    s_mul_i32 s3, s{S_CU}, {48*FS[0]}
    s_min_u32 s50, s{S_U}, {1 if o.sent else 2}
    s_mul_i32 s50, s50, {16*FS[0]}
    s_add_u32 s3, s3, s50
    s_add_u32 s3, s3, {WS_PF if FS[0] == 8 else WS_PFX}
    v_mul_u32_u24 v{VA}, {FS[0]}, v0
    v_add_u32 v{VA}, s3, v{VA}
    v_lshlrev_b32 v{VL}, 4, v0
    v_mov_b32 v{VT}, s{S_TAG}
    v_mov_b32 v{VT+1}, s{S_TAG+1}
    s_mul_i32 s52, s{S_CU}, 24576
    s_lshl_b32 s53, s{S_U}, 10
    s_add_u32 s52, s52, s53
    s_add_u32 s52, s52, {WS_P}
    v_lshlrev_b32 v6, 1, v0
    s_lshl_b32 s50, s{S_MT}, 6
    s_lshl_b32 s51, s{S_J}, 3
    s_add_u32 s50, s50, s51
    s_mul_i32 s50, s50, 1152
    s_mul_i32 s51, s{S_G}, 384
    s_add_u32 s50, s50, s51
    s_lshl_b32 s51, s{S_U}, 7
    s_add_u32 s50, s50, s51
    s_add_u32 s53, s50, 4608
    s_mov_b32 s54, 0xffff0000
    """)
    if o.ppipe:
        e(f"""
        s_mov_b64 exec, 0xffff
        s_mov_b32 s{S_CNT}, {SPIN_MAX}
        buffer_load_dwordx2 v[40:41], v{VA}, s[{SRD_WS}:{SRD_WS+3}], 0 offen sc1
        L_pp:
        s_sleep {o.ppipe}
        buffer_load_dwordx2 v[42:43], v{VA}, s[{SRD_WS}:{SRD_WS+3}], 0 offen sc1
        s_waitcnt vmcnt(1)
        v_cmp_ne_u64 vcc, v[40:41], v[{VT}:{VT+1}]
        s_sub_u32 s{S_CNT}, s{S_CNT}, 1
        s_cmp_eq_u32 s{S_CNT}, 0
        s_cbranch_scc1 L_ppdone
        s_nop 1
        s_cbranch_vccz L_ppdone
        s_sleep {o.ppipe}
        buffer_load_dwordx2 v[40:41], v{VA}, s[{SRD_WS}:{SRD_WS+3}], 0 offen sc1
        s_waitcnt vmcnt(1)
        v_cmp_ne_u64 vcc, v[42:43], v[{VT}:{VT+1}]
        s_nop 4
        s_cbranch_vccnz L_pp
        L_ppdone:
        s_mov_b64 exec, -1
        """)
    else:
        _poll(e, o, "p", VA, 0, "0xffff", VT, 40, o.psleep)
    if o.stamps: e(f"s_memtime s[{S_STAMP+8}:{S_STAMP+9}]")
    if o.sent:
        e(f"s_cmp_eq_u32 s{S_U}, 2\ns_cbranch_scc1 L_gsent")
    if o.gsplit:
        e(f"s_lshl_b32 s56, s57, 3\ns_add_u32 s52, s52, s56\ns_mul_i32 s56, s57, 4608\ns_add_u32 s50, s50, s56")
    for p in range(8):
        if o.gsplit: e(f"buffer_load_dwordx2 v[{VD+4*p}:{VD+4*p+1}], v{VL}, s[{SRD_WS}:{SRD_WS+3}], s52 offen sc1")
        else: e(f"buffer_load_dwordx4 v[{VD+4*p}:{VD+4*p+3}], v{VL}, s[{SRD_WS}:{SRD_WS+3}], s52 offen sc1")
        if p < 7: e(f"s_add_u32 s52, s52, 3072")
    if o.sent:
        e(f"""
        s_branch L_gloaded
        L_gsent:
        s_mov_b32 s{S_CNT}, {SPIN_MAX}
        s_mov_b32 s55, {SENT:#x}
        L_gretry:
        s_mov_b32 s56, s52
        """)
        for p in range(8):
            e(f"buffer_load_dwordx4 v[{VD+4*p}:{VD+4*p+3}], v{VL}, s[{SRD_WS}:{SRD_WS+3}], s56 offen sc1")
            if p < 7: e(f"s_add_u32 s56, s56, 3072")
        e("s_mov_b64 s[58:59], 0")
        for p in range(8):
            e(f"s_waitcnt vmcnt({7-p})")
            e(f"v_cmp_eq_u32 vcc, s55, v{VD+4*p}\nv_cmp_eq_u32 s[60:61], s55, v{VD+4*p+3}")
            e(f"s_nop 0\ns_or_b64 s[58:59], s[58:59], vcc\ns_or_b64 s[58:59], s[58:59], s[60:61]")
        e(f"""
        s_sub_u32 s{S_CNT}, s{S_CNT}, 1
        s_cmp_eq_u32 s{S_CNT}, 0
        s_cbranch_scc1 L_gloaded
        s_cmp_eq_u64 s[58:59], 0
        s_cbranch_scc1 L_gloaded
        s_sleep {o.gsleep}
        s_branch L_gretry
        L_gloaded:
        """)
    e(f"""
    s_or_b32 s51, s{S_J}, s{S_G}
    s_or_b32 s51, s51, s{S_U}
    s_or_b32 s51, s51, s57
    s_cmp_lg_u32 s51, 0
    s_cbranch_scc1 L_noepoch
    s_lshl_b32 s51, s{S_MT}, 7
    v_mov_b32 v{VA}, s51
    s_mov_b64 exec, 1
    buffer_store_dwordx2 v[{VT}:{VT+1}], v{VA}, s[{SRD_WS}:{SRD_WS+3}], 0 offen sc1
    s_mov_b64 exec, -1
    s_waitcnt vmcnt(0)
    L_noepoch:
    """)
    ND = 2 if o.gsplit else 4
    for p in range(8):
        e(f"s_waitcnt vmcnt({7-p})")
        for d in range(ND):
            src = VD + 4 * p + d
            if p == 0:
                e(f"v_lshlrev_b32 v{VS+2*d}, 16, v{src}\nv_and_b32 v{VS+2*d+1}, s54, v{src}")
            else:
                e(f"v_lshlrev_b32 v{VS+8}, 16, v{src}\nv_and_b32 v{VS+9}, s54, v{src}")
                e(f"v_add_f32 v{VS+2*d}, v{VS+2*d}, v{VS+8}\nv_add_f32 v{VS+2*d+1}, v{VS+2*d+1}, v{VS+9}")
    for d in range(ND):
        e(f"v_cvt_pk_bf16_f32 v{VD+d}, v{VS+2*d}, v{VS+2*d+1}")
    if o.outx4:
        e(f"""
        s_lshl_b32 s51, s{S_U}, 10
        v_add_u32 v7, s51, v6
        v_lshl_add_u32 v{VA}, v0, 4, s51
        v_lshrrev_b32 v{VS+8}, 3, v0
        v_mul_u32_u24 v{VS+8}, 1152, v{VS+8}
        v_and_b32 v{VS+9}, 7, v0
        v_lshl_add_u32 v{VS+8}, v{VS+9}, 4, v{VS+8}
        """)
        for d in range(4):
            e(f"ds_write_b16 v7, v{VD+d} offset:{2*d*128}\nds_write_b16_d16_hi v7, v{VD+d} offset:{(2*d+1)*128}")
        e(f"""
        s_waitcnt lgkmcnt(0)
        ds_read_b128 v[{VD+4}:{VD+7}], v{VA}
        s_waitcnt lgkmcnt(0)
        buffer_store_dwordx4 v[{VD+4}:{VD+7}], v{VS+8}, s[{SRD_OUT}:{SRD_OUT+3}], s50 offen {"sc1" if o.outx4 == 2 else ""}
        """)
    else:
      for d in range(ND):
        so = "s50" if d < 2 else "s53"
        e(f"buffer_store_short v{VD+d}, v6, s[{SRD_OUT}:{SRD_OUT+3}], {so} offen offset:{(2*d % 4)*1152}")
        e(f"buffer_store_short_d16_hi v{VD+d}, v6, s[{SRD_OUT}:{SRD_OUT+3}], {so} offen offset:{((2*d+1) % 4)*1152}")
    if o.span:
        e(f"""
        s_waitcnt vmcnt(0)
        s_memrealtime s[{S_STAMP+2}:{S_STAMP+3}]
        s_waitcnt lgkmcnt(0)
        s_lshl_b32 s3, s{S_CU}, 6
        s_lshl_b32 s51, s{S_U}, 4
        s_add_u32 s3, s3, s51
        s_add_u32 s3, s3, {WS_ST}
        s_cmp_eq_u32 s57, 1
        s_cselect_b32 s3, {WS_ST + 192*64}, s3
        s_mov_b64 exec, 1
        v_mov_b32 v1, 0
        v_mov_b32 v4, s{S_STAMP}
        v_mov_b32 v5, s{S_STAMP+1}
        v_mov_b32 v6, s{S_STAMP+2}
        v_mov_b32 v7, s{S_STAMP+3}
        buffer_store_dwordx4 v[4:7], v1, s[{SRD_WS}:{SRD_WS+3}], s3 offen sc1
        """)
    if o.stamps:
        e(f"""
        s_cmp_lg_u32 s{S_WAVE}, 6
        s_cbranch_scc1 L_end
        s_waitcnt vmcnt(0)
        s_memtime s[{S_STAMP+10}:{S_STAMP+11}]
        s_memrealtime s[{S_STAMP+12}:{S_STAMP+13}]
        s_waitcnt lgkmcnt(0)
        s_lshl_b32 s3, s{S_CU}, 9
        s_add_u32 s3, s3, {WS_ST + 384}
        s_mov_b64 exec, 1
        v_mov_b32 v1, 0
        """)
        for k in range(0, 16, 4):
            for q in range(4): e(f"v_mov_b32 v{4+q}, s{S_STAMP+k+q}")
            e(f"buffer_store_dwordx4 v[4:7], v1, s[{SRD_WS}:{SRD_WS+3}], s3 offen offset:{k*4}\ns_nop 1")
        e("s_waitcnt vmcnt(0)")
    e("s_endpgm")

def prefetch2(e, o):
    NT = "nt" if o.pf_nt else ""; HNT = "nt" if o.ht_nt else ""
    e("L_prefetch:")
    e(f"""
    s_sub_u32 s52, s3, 24
    s_cmp_ge_u32 s{S_WAVE}, 4
    s_cbranch_scc1 L_pf_h
    v_min_u32 v1, 215, v0
    s_mov_b32 s{S_T0}, 21846
    v_mul_u32_u24 v2, s{S_T0}, v1
    v_lshrrev_b32 v2, 16, v2
    v_mul_u32_u24 v3, 3, v2
    v_sub_u32 v3, v1, v3
    v_mul_u32_u24 v4, 9216, v2
    v_mul_u32_u24 v3, 384, v3
    v_add_u32 v4, v4, v3
    s_mul_i32 s53, s52, {72*9216}
    s_mul_i32 s{S_T1}, s{S_J}, 1152
    s_add_u32 s53, s53, s{S_T1}
    s_add_u32 s53, s53, 128
    s_mov_b32 s{S_T0}, 7282
    v_mul_u32_u24 v5, s{S_T0}, v1
    v_lshrrev_b32 v5, 16, v5
    v_mul_u32_u24 v6, 9, v5
    v_sub_u32 v6, v1, v6
    s_mul_i32 s54, s52, 24
    v_add_u32 v5, s54, v5
    v_lshrrev_b32 v7, 6, v5
    v_and_b32 v5, 63, v5
    v_mul_u32_u24 v7, 192, v7
    v_add_u32 v5, v5, v7
    v_mul_u32_u24 v5, 1152, v5
    v_lshl_add_u32 v5, v6, 7, v5
    s_mul_i32 s55, s{S_J}, {576*1152}
    s_waitcnt lgkmcnt(0)
    """)
    srd(e, SRD_B, S_W1, 576*4608*2)
    srd(e, SRD_C, S_W2, 576*4608*2)
    for k in range(o.pfdelay):
        if o.probe1: e(f"s_sub_u32 s56, s53, 128\nv_and_b32 v9, 7, v1\nv_mul_u32_u24 v9, 9216, v9\nbuffer_load_dword v8, v9, s[{SRD_B}:{SRD_B+3}], s56 offen\ns_waitcnt vmcnt(0)")
        elif k == 0: e(f"s_sub_u32 s56, s53, 128\nbuffer_load_dword v8, v4, s[{SRD_B}:{SRD_B+3}], s56 offen {NT}\ns_waitcnt vmcnt(0)")
        else:
            srd(e, SRD_A, S_X, 512*576*2)
            e(f"s_mul_i32 s56, s52, {576*128}\ns_add_u32 s56, s56, {(k-1)*216*128}\nv_lshlrev_b32 v9, 7, v1\nbuffer_load_dword v8, v9, s[{SRD_A}:{SRD_A+3}], s56 offen\ns_waitcnt vmcnt(0)")
    loads = {"s1": (SRD_B, 4, "s53", 0), "s2": (SRD_B, 4, "s53", 128), "t0": (SRD_C, 5, "s55", 0), "t1": (SRD_C, 5, "s55", 64*1152), "t2": (SRD_C, 5, "s55", 128*1152)}
    rounds = {0: [["s1"], ["s2"], ["t0"], ["t1"], ["t2"]],
              1: [["s1"], ["s2", "t0"], ["t1", "t2"]],
              2: [["s1", "s2"], ["t0", "t1", "t2"]],
              3: [["s1"], ["s2"], ["t0", "t1"], ["t2"]],
              4: [["s1"], ["s2", "t0", "t1", "t2"]]}[o.pfmerge]
    for rnd in rounds:
        for k, nm in enumerate(rnd):
            sr, vv, sb, add = loads[nm]
            e(f"s_add_u32 s56, {sb}, {add}\nbuffer_load_dword v{8+k}, v{vv}, s[{sr}:{sr+3}], s56 offen {NT}")
        e("s_waitcnt vmcnt(0)")
    e(f"""
    s_endpgm
    L_pf_h:
    v_subrev_u32 v1, 256, v0
    v_min_u32 v1, 191, v1
    v_lshrrev_b32 v2, 6, v1
    v_and_b32 v3, 63, v1
    v_mul_u32_u24 v2, 24576, v2
    v_lshl_add_u32 v2, v3, 7, v2
    s_mul_i32 s53, s{S_J}, {24*24576}
    s_mul_i32 s54, s52, {3*24576}
    s_add_u32 s53, s53, s54
    s_add_u32 s53, s53, {WS_H}
    v_and_b32 v4, {7 if o.probe1 else 63}, v3
    v_mul_u32_u24 v4, 9216, v4
    s_mul_i32 s54, s52, {72*9216}
    s_mul_i32 s55, s{S_J}, 1152
    s_add_u32 s54, s54, s55
    s_waitcnt lgkmcnt(0)
    """)
    srd(e, SRD_B, S_W1, 576*4608*2)
    srd(e, SRD_WS, S_WS, WS_SIZE)
    if not o.ptouch:
        e("s_endpgm")
        return
    if o.bx:
        srd(e, SRD_A, S_X, 512*576*2)
        e(f"v_lshlrev_b32 v9, 7, v1\ns_mul_i32 s56, s52, {576*128}")
    for k in range(o.hdelay):
        if o.bx and k < 3:
            e(f"buffer_load_dword v8, v9, s[{SRD_A}:{SRD_A+3}], s56 offen\ns_waitcnt vmcnt(0)\ns_add_u32 s56, s56, {192*128}")
        else:
            e(f"buffer_load_dword v8, v4, s[{SRD_B}:{SRD_B+3}], s54 offen\ns_waitcnt vmcnt(0)\ns_add_u32 s54, s54, 384")
    for st in range(3):
        e(f"buffer_load_dword v8, v2, s[{SRD_WS}:{SRD_WS+3}], s53 offen {HNT}\ns_waitcnt vmcnt(0)")
        if st < 2: e(f"s_add_u32 s53, s53, {UNIT}")
    e("s_endpgm")

def prefetch(e, o):
    if o.pfv == 2: return prefetch2(e, o)
    e("L_prefetch:")
    e(f"""
    s_sub_u32 s3, s3, 24
    s_mov_b32 s52, s3
    s_mov_b32 s{S_T0}, 10923
    v_mul_u32_u24 v1, s{S_T0}, v0
    v_lshrrev_b32 v1, 16, v1
    v_mul_u32_u24 v2, 6, v1
    v_sub_u32 v2, v0, v2
    v_lshrrev_b32 v3, 1, v2
    v_and_b32 v2, 1, v2
    v_mul_u32_u24 v3, 384, v3
    v_lshl_add_u32 v3, v2, 7, v3
    v_mul_u32_u24 v1, 9216, v1
    v_add_u32 v1, v1, v3
    s_mul_i32 s{S_T0}, s3, {72*9216}
    s_mul_i32 s{S_T1}, s{S_J}, 1152
    s_add_u32 s{S_T0}, s{S_T0}, s{S_T1}
    s_add_u32 s{S_T0}, s{S_T0}, 128
    s_mul_i32 s{S_T1}, s{S_J}, {576*1152}
    s_mul_i32 s3, s3, {72*1152}
    s_add_u32 s{S_T1}, s{S_T1}, s3
    v_lshlrev_b32 v4, 7, v0
    v_add_u32 v5, 65536, v4
    v_min_u32 v5, {647*128}, v5
    v_cmp_gt_u32 vcc, 432, v0
    s_waitcnt lgkmcnt(0)
    """)
    srd(e, SRD_B, S_W1, 576*4608*2)
    srd(e, SRD_C, S_W2, 576*4608*2)
    e(f"""
    v_mov_b32 v6, 0
    v_cndmask_b32 v1, v6, v1, vcc
    """)
    if o.sent and o.clrpos == 0:
        srd(e, SRD_WS, S_WS, WS_SIZE)
        clear_inboxes(e, o)
    if o.pfdelay:
        e(f"""
        v_min_u32 v15, {o.pfdelay * 8 - 1}, v0
        v_mul_u32_u24 v15, 9216, v15
        s_sub_u32 s53, s{S_T0}, 128
        buffer_load_dword v16, v15, s[{SRD_B}:{SRD_B+3}], s53 offen
        s_waitcnt vmcnt(0)
        """)
    if o.pfsplit:
        e(f"""
        v_cmp_eq_u32 vcc, 0, v2
        s_nop 1
        s_and_saveexec_b64 s[54:55], vcc
        buffer_load_dword v8, v1, s[{SRD_B}:{SRD_B+3}], s{S_T0} offen
        s_waitcnt vmcnt(0)
        s_andn2_b64 exec, s[54:55], exec
        buffer_load_dword v8, v1, s[{SRD_B}:{SRD_B+3}], s{S_T0} offen
        s_mov_b64 exec, s[54:55]
        """)
    else:
        e(f"buffer_load_dword v8, v1, s[{SRD_B}:{SRD_B+3}], s{S_T0} offen")
    if o.ptouch:
        srd(e, SRD_WS, S_WS, WS_SIZE)
        e(f"""
        s_mul_i32 s50, s{S_J}, {24*24576}
        s_mul_i32 s51, s52, {576*128}
        s_add_u32 s50, s50, s51
        s_add_u32 s50, s50, {WS_H}
        v_min_u32 v11, 63, v0
        v_lshlrev_b32 v11, 7, v11
        v_add_u32 v11, 65536, v11
        """)
    if o.ptouch == 3:
        e(f"""
        v_lshrrev_b32 v12, 6, v0
        v_min_u32 v12, 2, v12
        v_mul_u32_u24 v12, 24576, v12
        v_and_b32 v13, 63, v0
        v_lshl_add_u32 v14, v13, 7, v12
        v_add_u32 v14, 16384, v14
        """)
    e("s_waitcnt vmcnt(0)")
    if o.ptouch == 2:
        e(f"buffer_load_dword v12, v4, s[{SRD_WS}:{SRD_WS+3}], s50 offen\nbuffer_load_dword v13, v11, s[{SRD_WS}:{SRD_WS+3}], s50 offen")
    e(f"""
    buffer_load_dword v9, v4, s[{SRD_C}:{SRD_C+3}], s{S_T1} offen
    buffer_load_dword v10, v5, s[{SRD_C}:{SRD_C+3}], s{S_T1} offen
    s_waitcnt vmcnt(0)
    """)
    if o.ptouch == 3:
        e(f"buffer_load_dword v12, v14, s[{SRD_WS}:{SRD_WS+3}], s50 offen\ns_waitcnt vmcnt(0)")
    if o.ptouch == 1:
        e(f"buffer_load_dword v12, v4, s[{SRD_WS}:{SRD_WS+3}], s50 offen\nbuffer_load_dword v13, v11, s[{SRD_WS}:{SRD_WS+3}], s50 offen\ns_waitcnt vmcnt(0)")
    if o.sent and o.clrpos == 1: clear_inboxes(e, o)
    e("s_endpgm")

def clear_inboxes(e, o):
    e(f"""
    s_lshl_b32 s3, s52, 7
    s_load_dwordx2 s[{S_TAG}:{S_TAG+1}], s[{S_WS}:{S_WS+1}], s3
    s_mul_i32 s56, s{S_J}, 24
    s_mul_i32 s57, s52, 3
    s_add_u32 s56, s56, s57
    v_lshrrev_b32 v20, 6, v0
    v_and_b32 v21, 63, v0
    v_mul_u32_u24 v20, 3072, v20
    v_lshl_add_u32 v20, v21, 4, v20
    s_mul_i32 s57, s56, 24576
    s_add_u32 s57, s57, {WS_P + 2048}
    v_mov_b32 v24, {SENT:#x}
    v_mov_b32 v25, {SENT:#x}
    v_mov_b32 v26, {SENT:#x}
    v_mov_b32 v27, {SENT:#x}
    buffer_store_dwordx4 v[24:27], v20, s[{SRD_WS}:{SRD_WS+3}], s57 offen sc1
    s_add_u32 s57, s57, 24576
    buffer_store_dwordx4 v[24:27], v20, s[{SRD_WS}:{SRD_WS+3}], s57 offen sc1
    s_add_u32 s57, s57, 24576
    buffer_store_dwordx4 v[24:27], v20, s[{SRD_WS}:{SRD_WS+3}], s57 offen sc1
    s_waitcnt vmcnt(0) lgkmcnt(0)
    s_barrier
    s_add_u32 s{S_TAG}, s{S_TAG}, {TAGC_LO:#x}
    s_addc_u32 s{S_TAG+1}, s{S_TAG+1}, {TAGC_HI:#x}
    s_lshl_b32 s56, s56, 7
    s_add_u32 s56, s56, {WS_CF}
    v_mov_b32 v22, s{S_TAG}
    v_mov_b32 v23, s{S_TAG+1}
    v_lshlrev_b32 v21, 7, v0
    v_cmp_gt_u32 vcc, 3, v0
    s_nop 1
    s_and_saveexec_b64 s[54:55], vcc
    s_cbranch_execz L_clr_done
    buffer_store_dwordx2 v[22:23], v21, s[{SRD_WS}:{SRD_WS+3}], s56 offen sc1
    L_clr_done:
    s_mov_b64 exec, s[54:55]
    """)

def build(o):
    if o.order: P2[:] = P2B
    FS[0] = o.pfs
    _uid[0] = 0; OUTLINE.clear(); NOST[0] = o.x_nost; NOST[1] = o.x_nodsw; NOST[2] = o.hsc1; NOST[3] = o.hnt
    e = E(); prologue(e, o)
    parts = []
    ls = E(); loader_start(ls, o)
    for lw in range(3):
        x = E(); loader(x, o, lw); parts.append(("loader%d" % lw, x))
    x = E(); control(x, o); parts.append(("control", x))
    x = E(); prefetch(x, o); parts.append(("prefetch", x))
    x = E(); compute(x, o); parts.append(("compute", x))
    eg = E(); gather(eg, o)
    for k, v in parts:
        pre = e.text() + "\n" + (ls.text() + "\n" if k.startswith("loader") else "")
        pr = hazard.check(pre + v.text() + "\n" + eg.text())
        if pr: raise SystemExit(f"hazards in {k}")
    body = "\n".join([e.text(), ls.text()] + [v.text() for k, v in parts] + [eg.text(), "\n".join(OUTLINE), "L_end:", "s_endpgm"])
    nsgpr = 100 if o.stamps else 72
    hdr = f"""; Fused FFN: out = silu(x @ w1) @ w2   (M=512, D=576, F=4608), one launch.
; 192 compute workgroups = 8 F-slices (j) x 8 row tiles (mt) x 3 column groups (g): 4 MFMA waves, 3 LDS-DMA loader waves, 1 control wave;
; @launch grid=({NWG + o.npf},1,1) block=(512,1,1) lds={LDS_BYTES}
.amdgcn_target "amdgcn-amd-amdhsa--gfx950"
.text
.globl {KNAME}
.p2align 8
.type {KNAME},@function
{KNAME}:
"""
    tail = f"""
.section .rodata,"a"
.p2align 6
.amdhsa_kernel {KNAME}
  .amdhsa_next_free_vgpr 256
  .amdhsa_next_free_sgpr {nsgpr}
  .amdhsa_accum_offset 256
  .amdhsa_group_segment_fixed_size 0
  .amdhsa_kernarg_size 48
  .amdhsa_user_sgpr_count 2
  .amdhsa_user_sgpr_kernarg_segment_ptr 1
  .amdhsa_system_sgpr_workgroup_id_x 1
.end_amdhsa_kernel
"""
    return hdr + body + tail

if __name__ == "__main__":
    o = Opt()
    out = sys.argv[1]
    for a in sys.argv[2:]:
        k, v = a.split("=")
        setattr(o, k, bool(int(v)) if isinstance(getattr(Opt, k), bool) else int(v))
    open(out, "w").write(build(o))
    print("wrote", out)
```

```python
import sys, os
sys.path.insert(0, os.path.dirname(__file__))
import hazard

KNAME = "standalone__dense_activation_silu__sampling_kernel"
NWG = 192
NPF = 64
XH = 0
RING = 73728
R = 11
UNIT = 8192
LDS_BYTES = 163840
WS_E, WS_ID, WS_HF, WS_PF, WS_H, WS_P, WS_ST = 0, 4096, 32768, 65536, 262144, 5242880, 16777216
WS_PFX = 12582912
FS = [8]
WS_CF = 163840
SENT = 0x7F817F81
WS_SIZE = 0x10000000
TAGC_LO, TAGC_HI = 0x7F4A7C15, 0x9E3779B9
SPIN_MAX = 1000000
FASTW = XH + 3 * UNIT

P2 = [(0,0),(1,0),(2,0), (0,1),(1,1),(2,1), (0,2),(1,2),(2,2), (3,0),(4,0),(5,0), (3,1),(4,1),(5,1),
      (6,0),(7,0),(8,0), (6,1),(7,1),(8,1), (3,2),(4,2),(5,2), (6,2),(7,2),(8,2)]
P2B = [(0,0),(1,0),(2,0), (0,1),(1,1),(2,1), (0,2),(1,2),(2,2), (3,0),(4,0),(5,0), (3,1),(4,1),(5,1),
       (3,2),(4,2),(5,2), (6,0),(7,0),(8,0), (6,1),(7,1),(8,1), (6,2),(7,2),(8,2)]
PCH = [(p % 3, p // 3) for p in range(9)]

class Opt:
    stamps = False
    LP = 3
    pairw = True
    pub0 = 17
    pub1 = 11
    DRAIN = 2
    epb = 52
    epb2 = 110
    f1pos = 8
    h0b = 8
    h1b = 11
    h2b = 13
    fastb = 4
    gap0 = 5
    gap2 = 4
    tlbw = True
    ctouch = False
    ptouch = 1
    t0b = 3
    t1b = 5
    t2b = 7
    order = 0
    touch = 2
    wgap2 = True
    ppipe = 0
    epb0 = 80
    sent = False
    gsleep = 1
    gdot = False
    clrA = 0
    clrB = 2
    pfl = 0
    wdefer = 0
    pfmerge = 3
    pf_nt = False
    ht_nt = False
    bx = 0
    probe1 = False
    latew = False
    lprio = 0
    cprio = 0
    gsplit = False
    x_perm = 0
    pfs = 8
    pfv = 2
    hdelay = 4
    clrpos = 1
    clrb = 4
    cfb = 7
    chkb = 15
    span = False
    x_pad = 0
    ep2first = False
    hnt = True
    pfdelay = 2
    pfsplit = True
    outx4 = 0
    tlbb = 0
    wbl2 = 0
    hsc1 = 0
    early = 1
    astamp = 0
    ep2_rate = 9
    prefetch_code = True
    prio = 0
    npf = 64
    force_slow = False
    sleep = 1
    w_nt = True
    x_noep = False
    x_nodma = False
    x_nopub = False
    x_nost = False
    x_hplain = False
    x_nodsw = False
    psleep = 1
    stampset = 0

class E:
    def __init__(self): self.L = []
    def __call__(self, s):
        for l in s.split("\n"):
            l = l.strip()
            if l: self.L.append(l)
    def text(self): return "\n".join(self.L)

S_X, S_W1, S_W2, S_OUT, S_WS = 4, 6, 8, 10, 12
S_J, S_MT, S_G, S_WAVE, S_CU = 14, 15, 16, 17, 18
S_FAST = 19
S_TAG = 20
S_T0, S_T1 = 22, 23
SRD_A, SRD_B, SRD_C = 24, 28, 32
SRD_WS, SRD_OUT = 36, 40
S_G1, S_G2 = 44, 45
S_CNT = 46
S_STAMP = 64

def srd(e, d, base, size):
    e(f"s_mov_b32 s{d}, s{base}\ns_and_b32 s{d+1}, s{base+1}, 0xffff\ns_mov_b32 s{d+2}, {size}\ns_mov_b32 s{d+3}, 0x20000")

def prologue(e, o):
    e(f"""
    s_cmp_ge_u32 s2, {NWG + o.npf}
    s_cbranch_scc1 L_end
    s_load_dwordx4 s[4:7], s[0:1], 0
    s_load_dwordx4 s[8:11], s[0:1], 16
    s_load_dwordx2 s[12:13], s[0:1], 40
    """)
    if o.x_perm == 1:
        e("s_lshr_b32 s3, s2, 3\ns_and_b32 s3, s3, 7\ns_xor_b32 s2, s2, s3")
    if o.x_perm == 2:
        e("s_lshr_b32 s3, s2, 5\ns_and_b32 s3, s3, 1\ns_lshr_b32 s22, s2, 3\ns_and_b32 s3, s3, s22\ns_xor_b32 s2, s2, s3")
    if o.prefetch_code:
        e(f"""
        s_getpc_b64 s[{S_T0}:{S_T0+1}]
        L_pf:
        v_lshlrev_b32 v1, 7, v0
        v_min_u32 v1, L_end-L_pf, v1
        global_load_dword v31, v1, s[{S_T0}:{S_T0+1}]
        """)
    if o.stamps:
        e(f"s_memrealtime s[{S_STAMP}:{S_STAMP+1}]\ns_memtime s[{S_STAMP+2}:{S_STAMP+3}]")
    if o.span:
        e(f"s_memrealtime s[{S_STAMP}:{S_STAMP+1}]")
    e(f"""
    v_lshrrev_b32 v1, 6, v0
    s_and_b32 s{S_J}, s2, 7
    s_lshr_b32 s3, s2, 3
    v_readfirstlane_b32 s{S_WAVE}, v1
    s_cmp_ge_u32 s2, {NWG}
    s_cbranch_scc1 L_prefetch
    s_mul_i32 s{S_MT}, s3, 171
    s_lshr_b32 s{S_MT}, s{S_MT}, 9
    s_mul_i32 s{S_G}, s{S_MT}, 3
    s_sub_u32 s{S_G}, s3, s{S_G}
    v_and_b32 v0, 63, v0
    s_cmp_lt_u32 s{S_WAVE}, 4
    s_cbranch_scc1 L_compute
    s_cmp_eq_u32 s{S_WAVE}, 7
    s_cbranch_scc1 L_control
    """)

def common_ids(e):
    e(f"""
    s_add_u32 s{S_G1}, s{S_G}, 1
    s_cmp_eq_u32 s{S_G1}, 3
    s_cselect_b32 s{S_G1}, 0, s{S_G1}
    s_add_u32 s{S_G2}, s{S_G1}, 1
    s_cmp_eq_u32 s{S_G2}, 3
    s_cselect_b32 s{S_G2}, 0, s{S_G2}
    s_lshl_b32 s{S_CU}, s{S_J}, 3
    s_add_u32 s{S_CU}, s{S_CU}, s{S_MT}
    s_mul_i32 s{S_CU}, s{S_CU}, 3
    s_add_u32 s{S_CU}, s{S_CU}, s{S_G}
    s_lshl_b32 s3, s{S_MT}, 7
    """)

def load_epoch(e):
    e(f"s_load_dwordx2 s[{S_TAG}:{S_TAG+1}], s[{S_WS}:{S_WS+1}], s3")
    srd(e, SRD_WS, S_WS, WS_SIZE)
    srd(e, SRD_OUT, S_OUT, 512*576*2)

def finish_tag(e):
    e(f"""
    s_waitcnt lgkmcnt(0)
    s_add_u32 s{S_TAG}, s{S_TAG}, {TAGC_LO:#x}
    s_addc_u32 s{S_TAG+1}, s{S_TAG+1}, {TAGC_HI:#x}
    """)

def dma_unit(e, srd_r, vp, s_off, half_step, lds, flags="", s_tmp=61, s_lb=None):
    pats = vp if len(vp) == 4 else vp * 4
    m0 = (lambda c: f"s_mov_b32 m0, {c}") if s_lb is None else (lambda c: f"s_add_u32 m0, s{s_lb}, {c}")
    e(f"{m0(lds)}\ns_add_u32 s{s_tmp}, s{s_off}, {half_step}")
    for k in range(4):
        e(f"buffer_load_dwordx4 v{pats[k]}, s[{srd_r}:{srd_r+3}], s{s_off} offen offset:{1024*k} {flags} lds")
    e(f"{m0(lds + 4096)}\ns_nop 0")
    for k in range(4):
        e(f"buffer_load_dwordx4 v{pats[k]}, s[{srd_r}:{srd_r+3}], s{s_tmp} offen offset:{1024*k} {flags} lds")

def issue_barrier(n): return -1 if n < R else (n - R) // 3 + 1

V_LX, V_LW1, V_LW2 = 8, 12, 16
S_C = [48, 49, 50]; S_XO = [51, 52, 53]; S_WO = [54, 55, 56]; S_GB = [57, 58, 59]; S_OFF = 60
S_LW, S_LB = 62, 63
S_LH = 47
V_LIN = 20

def lstamp(e, o, k):
    if o.stamps and not o.astamp: e(f"s_memtime s[{S_STAMP+16+2*k}:{S_STAMP+17+2*k}]")

def loader_start(e, o):
    wf = "nt" if o.w_nt else ""
    if o.lprio: e(f"s_setprio {o.lprio}")
    e(f"""
    s_sub_u32 s{S_LW}, s{S_WAVE}, 4
    v_lshrrev_b32 v1, 3, v0
    v_and_b32 v2, 7, v0
    v_lshrrev_b32 v6, 1, v1
    v_mul_u32_u24 v5, 1152, v1
    v_xor_b32 v6, v2, v6
    v_lshlrev_b32 v7, 4, v6
    v_add_u32 v{V_LX}, v5, v7
    v_xor_b32 v7, 64, v7
    v_add_u32 v{V_LX+1}, v5, v7
    v_add_u32 v{V_LX+1}, {9216-1024}, v{V_LX+1}
    v_add_u32 v{V_LX+2}, {2*(9216-1024)}, v{V_LX}
    v_add_u32 v{V_LX+3}, {2*(9216-1024)}, v{V_LX+1}
    s_mul_i32 s{S_T0}, s{S_G}, 3
    s_add_u32 s{S_T0}, s{S_T0}, s{S_MT}
    s_add_u32 s{S_T0}, s{S_T0}, s{S_LW}
    s_cmp_ge_u32 s{S_T0}, 9
    s_cselect_b32 s{S_T1}, 9, 0
    s_sub_u32 s{S_C[0]}, s{S_T0}, s{S_T1}
    s_mul_i32 s{S_T0}, s{S_MT}, {64*1152}
    s_lshl_b32 s{S_XO[0]}, s{S_C[0]}, 7
    s_add_u32 s{S_XO[0]}, s{S_XO[0]}, s{S_T0}
    s_lshl_b32 s{S_LB}, s{S_LW}, 13
    v_and_b32 v3, 2, v1
    v_lshlrev_b32 v3, 1, v3
    v_xor_b32 v3, v2, v3
    v_lshlrev_b32 v3, 4, v3
    v_mul_u32_u24 v4, 9216, v1
    v_add_u32 v{V_LW1}, v4, v3
    v_add_u32 v{V_LW2}, v5, v3
    s_mul_i32 s{S_T1}, s{S_J}, 1152
    s_mul_i32 s3, s{S_G}, 384
    s_add_u32 s{S_T1}, s{S_T1}, s3
    s_mul_i32 s3, s{S_C[0]}, {64*9216}
    s_add_u32 s{S_WO[0]}, s{S_T1}, s3
    v_add_u32 v{V_LW1+1}, {1*(73728-1024)}, v{V_LW1}
    v_add_u32 v{V_LW1+2}, {2*(73728-1024)}, v{V_LW1}
    v_add_u32 v{V_LW1+3}, {3*(73728-1024)}, v{V_LW1}
    s_waitcnt lgkmcnt(0)
    """)
    lstamp(e, o, 0)
    srd(e, SRD_A, S_X, 512*576*2)
    XP = [V_LX, V_LX+1, V_LX+2, V_LX+3]; WP = [V_LW1, V_LW1+1, V_LW1+2, V_LW1+3]
    dma_unit(e, SRD_A, XP, S_XO[0], 4*9216, XH, s_lb=S_LB)
    srd(e, SRD_B, S_W1, 576*4608*2)
    dma_unit(e, SRD_B, WP, S_WO[0], 4*73728, RING, wf, s_lb=S_LB)
    lstamp(e, o, 1)
    for k in (1, 2):
        e(f"""
        s_add_u32 s3, s{S_C[k-1]}, 3
        s_cmp_ge_u32 s3, 9
        s_cselect_b32 s{S_C[k]}, 9, 0
        s_sub_u32 s{S_C[k]}, s3, s{S_C[k]}
        s_lshl_b32 s3, s{S_C[k]}, 7
        s_add_u32 s{S_XO[k]}, s{S_T0}, s3
        s_mul_i32 s3, s{S_C[k]}, {64*9216}
        s_add_u32 s{S_WO[k]}, s{S_T1}, s3
        """)
        if (k == 1 and o.early < 2) or not o.early:
            dma_unit(e, SRD_A, XP, S_XO[k], 4*9216, XH + 3*k*UNIT, s_lb=S_LB)
            dma_unit(e, SRD_B, WP, S_WO[k], 4*73728, RING + 3*k*UNIT, wf, s_lb=S_LB)
    if not o.early:
        e(f"s_cmp_eq_u32 s{S_LW}, 2\ns_cbranch_scc1 L_ld_no4")
        e(f"s_add_u32 s{S_OFF}, s{S_WO[0]}, 128")
        dma_unit(e, SRD_B, WP, S_OFF, 4*73728, RING + 9*UNIT, wf, s_lb=S_LB)
        e("L_ld_no4:")
    lstamp(e, o, 2)
    common_ids(e)
    srd(e, SRD_C, S_W2, 576*4608*2)
    for k in (1, 2, 3):
        e(f"v_add_u32 v{V_LW2+k}, {k*(9216-1024)}, v{V_LW2}")
    e(f"""
    s_mul_i32 s{S_T0}, s{S_J}, {576*1152}
    s_mul_i32 s{S_T1}, s{S_G}, 384
    s_add_u32 s{S_T0}, s{S_T0}, s{S_T1}
    """)
    for k, sg in enumerate((S_G, S_G1, S_G2)):
        e(f"s_mul_i32 s3, s{sg}, {192*1152}\ns_add_u32 s{S_GB[k]}, s{S_T0}, s3")
    e(f"""
    s_cmp_eq_u32 s{S_LW}, 1
    s_cselect_b32 s3, s{S_G1}, s{S_G}
    s_cmp_eq_u32 s{S_LW}, 2
    s_cselect_b32 s3, s{S_G2}, s3
    s_sub_u32 s{S_LH}, s{S_CU}, s{S_G}
    s_add_u32 s{S_LH}, s{S_LH}, s3
    s_mul_i32 s{S_LH}, s{S_LH}, 24576
    s_add_u32 s{S_LH}, s{S_LH}, {WS_H}
    v_lshlrev_b32 v{V_LIN}, 4, v0
    """)
    e(f"s_lshl_b32 s3, s{S_MT}, 7")
    load_epoch(e)
    finish_tag(e)
    e(f"""
    s_cmp_eq_u32 s{S_LW}, 1
    s_cbranch_scc1 L_loader1
    s_cmp_eq_u32 s{S_LW}, 2
    s_cbranch_scc1 L_loader2
    """)

def loader(e, o, lw):
    wf = "nt" if o.w_nt else ""
    WP = [V_LW1, V_LW1+1, V_LW1+2, V_LW1+3]; W2P = [V_LW2, V_LW2+1, V_LW2+2, V_LW2+3]
    e(f"L_loader{lw}:")
    XP = [V_LX, V_LX+1, V_LX+2, V_LX+3]
    if o.early == 2: seq = [("x", lw), ("w", lw)]
    elif o.early: seq = [("x", lw), ("w", lw), ("x", 3+lw), ("w", 3+lw)]
    else: seq = [("x", lw), ("w", lw), ("x", 3+lw), ("w", 3+lw), ("x", 6+lw), ("w", 6+lw)] + ([("w", 9+lw)] if 9 + lw < R else [])
    def issue_w(n):
        slot = n % R
        if n < 27:
            s, i = n // 9, n % 9
            t = i // 3
            e(f"s_add_u32 s{S_OFF}, s{S_WO[t]}, {128*s}")
            dma_unit(e, SRD_B, WP, S_OFF, 4*73728, RING + slot*UNIT, wf)
        else:
            p, u = P2[n - 27]
            k, s = PCH[p]
            e(f"s_add_u32 s{S_OFF}, s{S_GB[k]}, {73728*s + 128*u}")
            dma_unit(e, SRD_C, W2P, S_OFF, 4*9216, RING + slot*UNIT, wf)
        seq.append(("w", n))
    hb = {o.h0b: 0, o.h1b: 1, o.h2b: 2}
    hneed = {9: 0, 12: 1, (15 if o.order else 14): 2}
    for st in range(18):
        need = [("w", 3*st + lw)] + ([("x", 3*st + lw)] if st < 3 else []) + ([("h", hneed[st])] if st in hneed else [])
        last = max(seq.index(x) for x in need)
        n = 8 * (len(seq) - 1 - last)
        assert n <= 63
        e(f"s_waitcnt vmcnt({n})")
        if st == 0 and not o.astamp: lstamp(e, o, 3)
        if o.astamp and (o.astamp % 100) <= st < (o.astamp % 100) + 6: e(f"s_memtime s[{S_STAMP+16+2*(st-o.astamp%100)}:{S_STAMP+17+2*(st-o.astamp%100)}]")
        e("s_barrier")
        if st in hb:
            sg = hb[st]
            e(f"s_add_u32 s{S_OFF}, s{S_LH}, {sg*UNIT}")
            dma_unit(e, SRD_WS, [V_LIN], S_OFF, 4096, XH + (3*sg + lw)*UNIT, "" if o.x_hplain else "sc1"); seq.append(("h", sg))
        if o.early == 2 and st == 0:
            dma_unit(e, SRD_A, XP, S_XO[1], 4*9216, XH + (3 + lw)*UNIT); seq.append(("x", 3 + lw))
            issue_w(3 + lw)
        if o.early and st == 0:
            dma_unit(e, SRD_A, XP, S_XO[2], 4*9216, XH + (6 + lw)*UNIT); seq.append(("x", 6 + lw))
            issue_w(6 + lw)
        if o.early and st == 1 and 9 + lw < R: issue_w(9 + lw)
        for nn in range(R, 54):
            ib = issue_barrier(nn)
            if o.wdefer and ib in hb and nn // 3 > ib + 1 + (o.wdefer == 2): ib += 1
            if nn % 3 == lw and ib == st:
                if o.x_nodma: seq.append(('w', nn))
                else: issue_w(nn)
    if o.stamps and (lw == 0 or o.astamp):
        base = WS_ST + 192 if not o.astamp else WS_ST + 192*512 + (1 + lw)*64
        e(f"s_waitcnt lgkmcnt(0)\ns_lshl_b32 s3, s{S_CU}, 9\ns_add_u32 s3, s3, {base}\ns_mov_b64 exec, 1\nv_mov_b32 v1, 0")
        for k, r0 in enumerate((S_STAMP, S_STAMP+16, S_STAMP+20, S_STAMP+24)):
            for q in range(4): e(f"v_mov_b32 v{4+q}, s{r0+q}")
            e(f"buffer_store_dwordx4 v[4:7], v1, s[{SRD_WS}:{SRD_WS+3}], s3 offen offset:{k*16}\ns_nop 1")
        e("s_mov_b64 exec, -1")
    e("s_branch L_gather")

def _poll(e, o, name, vaddr, imm, mask, vtag, vtmp, sleep=None, fl="sc1"):
    sleep = o.sleep if sleep is None else sleep
    e(f"""
    s_mov_b64 exec, {mask}
    s_mov_b32 s{S_CNT}, {SPIN_MAX}
    L_poll_{name}:
    buffer_load_dwordx2 v[{vtmp}:{vtmp+1}], v{vaddr}, s[{SRD_WS}:{SRD_WS+3}], 0 offen offset:{imm} {fl}
    s_waitcnt vmcnt(0)
    v_cmp_ne_u64 vcc, v[{vtmp}:{vtmp+1}], v[{vtag}:{vtag+1}]
    s_sub_u32 s{S_CNT}, s{S_CNT}, 1
    s_cmp_eq_u32 s{S_CNT}, 0
    s_cbranch_scc1 L_polldone_{name}
    s_nop 1
    s_cbranch_vccz L_polldone_{name}
    """)
    if sleep: e(f"s_sleep {sleep}")
    e(f"""
    s_branch L_poll_{name}
    L_polldone_{name}:
    s_mov_b64 exec, -1
    """)

def control(e, o):
    V_LIN, V_POLL, V_TAG, V_TMP, V_ID = 8, 9, 10, 12, 14
    S_OFF, S_H1, S_H2, S_XCC, S_H0 = 60, 48, 49, 50, 51
    e("L_control:")
    if o.cprio: e(f"s_setprio {o.cprio}")
    common_ids(e)
    e("s_waitcnt lgkmcnt(0)")
    load_epoch(e)
    def tlb_warm():
        e(f"""
        v_min_u32 v26, 39, v0
        v_lshlrev_b32 v26, 18, v26
        buffer_load_dword v29, v26, s[{SRD_WS}:{SRD_WS+3}], 0 offen offset:2048 sc1
        v_min_u32 v27, 8, v0
        v_lshlrev_b32 v27, 16, v27
        buffer_load_dword v28, v27, s[{SRD_OUT}:{SRD_OUT+3}], 0 offen sc1
        """)
    if o.tlbw and not o.tlbb: tlb_warm()
    e(f"""
    s_getreg_b32 s{S_XCC}, hwreg(HW_REG_XCC_ID, 0, 4)
    v_lshlrev_b32 v{V_LIN}, 4, v0
    s_sub_u32 s{S_T0}, s{S_CU}, s{S_G}
    s_add_u32 s{S_H1}, s{S_T0}, s{S_G1}
    s_add_u32 s{S_H2}, s{S_T0}, s{S_G2}
    s_lshl_b32 s{S_T0}, s{S_H1}, 7
    s_lshl_b32 s{S_T1}, s{S_H2}, 7
    v_mov_b32 v1, s{S_T0}
    v_mov_b32 v2, s{S_T1}
    s_lshl_b32 s{S_OFF}, s{S_CU}, 7
    v_mov_b32 v7, s{S_OFF}
    v_lshrrev_b32 v3, 2, v0
    v_cmp_eq_u32 vcc, 1, v3
    v_and_b32 v6, 3, v0
    v_lshlrev_b32 v6, 3, v6
    v_cndmask_b32 v4, v7, v1, vcc
    v_cmp_eq_u32 vcc, 2, v3
    s_mul_i32 s{S_H1}, s{S_H1}, 24576
    s_mul_i32 s{S_H2}, s{S_H2}, 24576
    v_cndmask_b32 v4, v4, v2, vcc
    v_add_u32 v4, {WS_HF}, v4
    v_add_u32 v{V_POLL}, v4, v6
    v_cmp_eq_u32 vcc, 0, v0
    s_mul_i32 s{S_H0}, s{S_CU}, 24576
    s_add_u32 s{S_H0}, s{S_H0}, {WS_H}
    v_cndmask_b32 v4, v2, v1, vcc
    v_add_u32 v{V_ID}, {WS_ID}, v4
    s_add_u32 s{S_H1}, s{S_H1}, {WS_H}
    s_add_u32 s{S_H2}, s{S_H2}, {WS_H}
    """)
    finish_tag(e)
    e(f"""
    s_add_u32 s{S_T0}, s{S_XCC}, 16
    s_add_u32 s{S_T0}, s{S_TAG}, s{S_T0}
    s_addc_u32 s{S_T1}, s{S_TAG+1}, 0
    v_mov_b32 v4, s{S_T0}
    v_mov_b32 v5, s{S_T1}
    s_lshl_b32 s3, s{S_CU}, 7
    s_add_u32 s3, s3, {WS_ID}
    v_mov_b32 v6, s3
    v_mov_b32 v{V_TAG}, s{S_TAG}
    v_mov_b32 v{V_TAG+1}, s{S_TAG+1}
    s_mov_b64 exec, 1
    buffer_store_dwordx2 v[4:5], v6, s[{SRD_WS}:{SRD_WS+3}], 0 offen sc1
    s_mov_b64 exec, -1
    """)
    def hdma(s):
        for k, sh in enumerate((S_H0, S_H1, S_H2)):
            p = 3 * s + k
            e(f"s_add_u32 s{S_OFF}, s{sh}, {s*UNIT}")
            dma_unit(e, SRD_WS, [V_LIN], S_OFF, 4096, XH + p * UNIT, "sc1")
    def stamp(k):
        if o.stamps: e(f"s_memtime s[{S_STAMP+4+2*k}:{S_STAMP+5+2*k}]\ns_waitcnt lgkmcnt(0)")
    bl = [0,1,2,3,6,9,10,11,12,13,14,15,16,17] if o.stampset == 0 else [0,2,3,4,5,6,7,8,9,10,11,12,14,17]
    slots = {b: i for i, b in enumerate(bl)}
    for st in range(18):
        if st == o.fastb - 2:
            e(f"s_mov_b64 exec, 3\nbuffer_load_dwordx2 v[{V_TMP}:{V_TMP+1}], v{V_ID}, s[{SRD_WS}:{SRD_WS+3}], 0 offen sc1\ns_mov_b64 exec, -1")
        if o.touch and st == o.fastb - 2:
            e(f"""
            v_lshlrev_b32 v20, 7, v0
            s_mul_i32 s{S_OFF}, s{S_CU}, {48*FS[0]}
            s_add_u32 s{S_OFF}, s{S_OFF}, {WS_PF if FS[0] == 8 else WS_PFX}
            s_mov_b64 exec, {"7" if FS[0] == 8 else "-1"}
            buffer_load_dword v24, v20, s[{SRD_WS}:{SRD_WS+3}], s{S_OFF} offen sc1
            s_lshl_b32 s{S_OFF}, s{S_CU}, 7
            s_add_u32 s{S_OFF}, s{S_OFF}, {WS_HF}
            s_mov_b64 exec, 1
            buffer_load_dword v25, v20, s[{SRD_WS}:{SRD_WS+3}], s{S_OFF} offen
            s_mov_b64 exec, -1
            """)
        for sg, tb in enumerate((o.t0b, o.t1b, o.t2b)):
            if o.ctouch and st == tb:
                e(f"""
                s_mul_i32 s{S_OFF}, s{S_CU}, 24576
                s_add_u32 s{S_OFF}, s{S_OFF}, {WS_H + sg*UNIT}
                buffer_load_dword v{21+sg}, v20, s[{SRD_WS}:{SRD_WS+3}], s{S_OFF} offen
                """)
        if st == o.fastb: e("s_waitcnt lgkmcnt(0)")
        if st == o.fastb - 1:
            e(f"""
            s_mov_b64 exec, 3
            s_mov_b32 s{S_CNT}, {SPIN_MAX}
            s_waitcnt vmcnt({(2 + (o.ctouch and o.fastb - 2 <= o.t0b <= o.fastb - 1)) if o.touch else 0})
            s_branch L_check_id
            L_poll_id:
            buffer_load_dwordx2 v[{V_TMP}:{V_TMP+1}], v{V_ID}, s[{SRD_WS}:{SRD_WS+3}], 0 offen sc1
            s_waitcnt vmcnt(0)
            L_check_id:
            v_subrev_co_u32 v4, vcc, s{S_TAG}, v{V_TMP}
            v_mov_b32 v6, s{S_TAG+1}
            s_nop 0
            v_subb_co_u32 v5, vcc, v{V_TMP+1}, v6, vcc
            v_subrev_u32 v4, 16, v4
            v_lshrrev_b32 v6, 4, v4
            v_or_b32 v6, v6, v5
            v_cmp_ne_u32 vcc, 0, v6
            s_sub_u32 s{S_CNT}, s{S_CNT}, 1
            s_cmp_eq_u32 s{S_CNT}, 0
            s_cbranch_scc1 L_id_done
            s_nop 1
            s_cbranch_vccz L_id_done
            s_sleep 1
            s_branch L_poll_id
            L_id_done:
            v_cmp_ne_u32 vcc, s{S_XCC}, v4
            s_mov_b32 s{S_FAST}, {0 if o.force_slow else 1}
            s_nop 1
            s_cmp_eq_u64 vcc, 0
            s_cselect_b32 s{S_FAST}, s{S_FAST}, 0
            s_mov_b64 exec, 1
            v_mov_b32 v4, s{S_FAST}
            v_mov_b32 v5, {FASTW}
            ds_write_b32 v5, v4
            s_mov_b64 exec, -1
            """)
        if o.sent and st == o.h0b - 1:
            e(f"""
            s_mul_i32 s3, s{S_MT}, 3
            s_add_u32 s3, s3, s{S_G}
            s_lshl_b32 s3, s3, 7
            s_add_u32 s3, s3, {WS_CF}
            v_mul_u32_u24 v37, {24*128}, v0
            v_add_u32 v37, s3, v37
            """)
        if st == o.h0b: _poll(e, o, "h0", V_POLL, 0, "0xfff", V_TAG, V_TMP)
        if o.sent and st == o.h0b:
            e(f"s_mov_b64 exec, 0xff\nbuffer_load_dwordx2 v[38:39], v37, s[{SRD_WS}:{SRD_WS+3}], 0 offen sc1\ns_mov_b64 exec, -1")
        if st == o.h1b: _poll(e, o, "h1", V_POLL, 32, "0xfff", V_TAG, V_TMP)
        if o.sent and st == o.h1b:
            e(f"""
            s_mov_b64 exec, 0xff
            v_cmp_ne_u64 vcc, v[38:39], v[{V_TAG}:{V_TAG+1}]
            s_nop 4
            s_mov_b64 exec, -1
            s_cbranch_vccz L_cf_ok
            """)
            _poll(e, o, "cf", 37, 0, "0xff", V_TAG, V_TMP)
            e("L_cf_ok:")
        if st == o.h2b: _poll(e, o, "h2", V_POLL, 64, "0xfff", V_TAG, V_TMP)
        e("s_barrier")
        if o.tlbw and o.tlbb and st == o.tlbb: tlb_warm()
        if o.wbl2 and st == o.wbl2:
            e(f"""
            s_or_b32 s3, s{S_MT}, s{S_G}
            s_cmp_lg_u32 s3, 0
            s_cbranch_scc1 L_nowb
            buffer_wbl2 sc1
            L_nowb:
            """)
        if st in slots: stamp(slots[st])
    if o.stamps:
        e(f"s_waitcnt lgkmcnt(0)")
        e(f"s_lshl_b32 s3, s{S_CU}, 9\ns_add_u32 s3, s3, {WS_ST}")
        e("s_mov_b64 exec, 1\nv_mov_b32 v1, 0")
        for k in range(0, 32, 4):
            for q in range(4): e(f"v_mov_b32 v{4+q}, s{S_STAMP+k+q}")
            e(f"buffer_store_dwordx4 v[4:7], v1, s[{SRD_WS}:{SRD_WS+3}], s3 offen offset:{k*4}\ns_nop 1")
        e(f"v_mov_b32 v4, s{S_FAST}\nbuffer_store_dword v4, v1, s[{SRD_WS}:{SRD_WS+3}], s3 offen offset:128")
        e("s_mov_b64 exec, -1")
    e("s_branch L_gather")

V_T1, V_T1B, V_T2, V_T2B = 2, 3, 4, 5
V_X = 6; V_X8 = 10
V_PF, V_PV = 6, 7
V_H, V_H8, V_FW, V_HG = 14, 15, 16, 17
V_HF = 1
V_TAG = 18
V_EP = 20
V_P = 24
V_WF = 32
V_ACC1 = 64
V_XF = 112
S_MH, S_NH, S_HST, S_NL2E = 48, 49, 50, 51
S_PO = 52
S_PFB = 54

class Stream:
    def __init__(self, e): self.e = e; self.nlds = 0; self.done = 0; self.count = 0; self.fast_ok = False; self.flags = set(); self.hold_silu = 0
    def emit(self, s):
        for l in s.split("\n"):
            l = l.strip()
            if l:
                self.e(l)
                if not l.endswith(":"): self.count += 1
    def lds(self, s):
        self.emit(s); self.nlds += 1; return self.nlds
    def wait_lds(self, opid):
        if opid <= self.done: return
        n = min(self.nlds - opid, 15)
        self.emit(f"s_waitcnt lgkmcnt({n})"); self.done = self.nlds - n

_uid = [0]
OUTLINE = []
NOST = [False, False, 0, False]
def dual(txt, force_sc1=False):
    if force_sc1: return txt + " sc1"
    _uid[0] += 1; k = _uid[0]
    OUTLINE.append(f"L_ds{k}:\n{txt} sc1\ns_branch L_dd{k}")
    nt = " nt" if (NOST[3] and "dwordx4" in txt) else ""
    return (f"s_cmp_eq_u32 s{S_FAST}, 0\ns_cbranch_scc1 L_ds{k}\n{txt}{nt}\nL_dd{k}:")

def silu_ops(acc, s, noep=False):
    ops = []
    for q in range(4):
        v = [acc + 4 * q + r for r in range(4)]
        t = [V_EP + r for r in range(4)]
        if not noep:
            for r in range(4): ops.append(("silu", f"v_mul_f32 v{t[r]}, s{S_NL2E}, v{v[r]}"))
            for r in range(4): ops.append(("v", f"v_exp_f32 v{t[r]}, v{t[r]}"))
            for r in range(4): ops.append(("v", f"v_add_f32 v{t[r]}, 1.0, v{t[r]}"))
            for r in range(4): ops.append(("v", f"v_rcp_f32 v{t[r]}, v{t[r]}"))
            for r in range(4): ops.append(("silu", f"v_mul_f32 v{v[r]}, v{v[r]}, v{t[r]}"))
        ops.append(("silu", f"v_cvt_pk_bf16_f32 v{V_P+2*q}, v{v[0]}, v{v[1]}"))
        ops.append(("silu", f"v_cvt_pk_bf16_f32 v{V_P+2*q+1}, v{v[2]}, v{v[3]}"))
    sts = [("st", "s_nop 0" if NOST[0] else dual(f"buffer_store_dwordx4 v[{V_P+4*tt}:{V_P+4*tt+3}], v{V_HG}, s[{SRD_WS}:{SRD_WS+3}], s{S_HST} offen offset:{tt*1024}", s < NOST[2])) for tt in range(2)]
    if s < NOST[2] or s == 2:
        k = [i for i, x in enumerate(ops) if x[1].startswith(f"v_cvt_pk_bf16_f32 v{V_P+3},")]
        if k: ops.insert(k[0] + 1, sts[0]); ops.append(sts[1])
        else: ops += sts
    else: ops += sts
    if s < 2: ops.append(("v", f"s_add_u32 s{S_HST}, s{S_HST}, {UNIT}"))
    return ops

def hflag_ops(s, n):
    return [("v", f"s_waitcnt vmcnt({n})\ns_mov_b64 exec, 1"),
            ("st", dual(f"buffer_store_dwordx2 v[{V_TAG}:{V_TAG+1}], v{V_HF}, s[{SRD_WS}:{SRD_WS+3}], 0 offen offset:{s*32}")),
            ("flag%d" % s, "s_mov_b64 exec, -1")]

def pflag(e, u, n):
    e(f"""
    s_mov_b32 s60, {u*16*FS[0]}
    s_waitcnt vmcnt({n})
    s_mov_b64 exec, 0xf
    buffer_store_dwordx2 v[{V_TAG}:{V_TAG+1}], v{V_PF}, s[{SRD_WS}:{SRD_WS+3}], s60 offen sc1
    s_mov_b64 exec, -1
    """)

def compute(e, o):
    e("L_compute:")
    if o.prio: e(f"s_setprio {o.prio}")
    common_ids(e)
    e(f"""
    s_lshr_b32 s{S_MH}, s{S_WAVE}, 1
    s_and_b32 s{S_NH}, s{S_WAVE}, 1
    s_mov_b32 s{S_NL2E}, 0xbfb8aa3b
    v_lshrrev_b32 v20, 5, v0
    v_lshrrev_b32 v21, 4, v0
    v_and_b32 v21, 1, v21
    v_and_b32 v22, 15, v0
    v_lshrrev_b32 v23, 2, v22
    v_and_b32 v22, 3, v22
    v_lshrrev_b32 v24, 1, v22
    v_lshl_add_u32 v24, v21, 1, v24
    s_lshl_b32 s{S_T0}, s{S_NH}, 2
    v_add_u32 v24, s{S_T0}, v24
    v_and_b32 v25, 2, v23
    v_lshlrev_b32 v25, 1, v25
    v_xor_b32 v24, v24, v25
    v_lshlrev_b32 v24, 4, v24
    v_and_b32 v22, 1, v22
    v_lshl_add_u32 v24, v22, 3, v24
    v_lshl_add_u32 v24, v23, 7, v24
    v_add_u32 v24, {RING}, v24
    v_lshl_add_u32 v{V_T1}, v20, 10, v24
    v_lshl_add_u32 v{V_T2}, v20, 9, v24
    v_add_u32 v{V_T1B}, {8*UNIT}, v{V_T1}
    v_add_u32 v{V_T2B}, {8*UNIT}, v{V_T2}
    v_and_b32 v25, 31, v0
    v_lshrrev_b32 v26, 1, v25
    v_and_b32 v26, 7, v26
    v_xor_b32 v26, v20, v26
    v_lshlrev_b32 v26, 4, v26
    s_lshl_b32 s{S_T1}, s{S_MH}, 12
    v_lshl_add_u32 v26, v25, 7, v26
    v_add_u32 v{V_X}, s{S_T1}, v26
    v_xor_b32 v{V_X+1}, 32, v{V_X}
    v_xor_b32 v{V_X+2}, 64, v{V_X}
    v_xor_b32 v{V_X+3}, 96, v{V_X}
    """)
    for ks in range(4): e(f"v_add_u32 v{V_X8+ks}, {8*UNIT}, v{V_X+ks}")
    e(f"""
    v_lshlrev_b32 v27, 4, v0
    v_add_u32 v{V_H}, s{S_T1}, v27
    v_add_u32 v{V_H8}, {8*UNIT}, v{V_H}
    s_lshl_b32 s{S_T0}, s{S_NH}, 11
    v_add_u32 v{V_HG}, s{S_T0}, v{V_H}
    s_mul_i32 s{S_HST}, s{S_CU}, 24576
    s_add_u32 s{S_HST}, s{S_HST}, {WS_H}
    s_lshl_b32 s{S_T0}, s{S_CU}, 7
    s_lshl_b32 s{S_T1}, s{S_WAVE}, 3
    s_add_u32 s{S_T0}, s{S_T0}, s{S_T1}
    s_add_u32 s{S_T0}, s{S_T0}, {WS_HF}
    v_mov_b32 v{V_HF}, s{S_T0}
    s_mul_i32 s{S_T0}, s{S_MT}, 3
    s_add_u32 s{S_T0}, s{S_T0}, s{S_G}
    s_lshl_b32 s{S_T1}, s{S_MH}, 2
    s_mul_i32 s{S_T1}, s{S_T1}, 24
    s_add_u32 s{S_T0}, s{S_T0}, s{S_T1}
    s_mul_i32 s{S_PO}, s{S_T0}, 24576
    s_mul_i32 s{S_T1}, s{S_J}, 3072
    s_add_u32 s{S_PO}, s{S_PO}, s{S_T1}
    s_lshl_b32 s{S_T1}, s{S_NH}, 9
    s_add_u32 s{S_PO}, s{S_PO}, s{S_T1}
    s_add_u32 s{S_PO}, s{S_PO}, {WS_P}
    s_add_u32 s{S_PO+1}, s{S_PO}, {2*24*24576}
    s_mul_i32 s{S_T0}, s{S_T0}, {48*FS[0]}
    s_lshl_b32 s{S_T1}, s{S_J}, 1
    s_add_u32 s{S_T1}, s{S_T1}, s{S_NH}
    s_mul_i32 s{S_T1}, s{S_T1}, {FS[0]}
    s_add_u32 s{S_T0}, s{S_T0}, s{S_T1}
    s_add_u32 s{S_PFB}, s{S_T0}, {WS_PF if FS[0] == 8 else WS_PFX}
    v_mov_b32 v{V_FW}, {FASTW}
    s_waitcnt lgkmcnt(0)
    """)
    load_epoch(e)
    finish_tag(e)
    e(f"v_mov_b32 v{V_TAG}, s{S_TAG}\nv_mov_b32 v{V_TAG+1}, s{S_TAG+1}")
    if not o.latew: e("s_waitcnt vmcnt(0)")

    tasks = []
    def ringbase(n, vA, vB):
        slot = n % R
        return (vA, slot * UNIT) if slot < 8 else (vB, (slot - 8) * UNIT)
    for n in range(27):
        st = n // 3; s = n // 9; i = n % 9
        base, so = ringbase(n, V_T1, V_T1B)
        for ks in range(4):
            t = dict(step=st, first=(n % 3 == 0 and ks == 0), idx=len(tasks))
            t["wr"] = [(base, so + (16 * ks + 4 * b) * 128) for b in range(2)]
            xf = V_XF + (i * 4 + ks) * 4
            t["pre"] = []
            if s == 0:
                xb = (V_X8 + ks) if i == 8 else (V_X + ks)
                t["pre"] = [f"ds_read_b128 v[{xf}:{xf+3}], v{xb} offset:{0 if i == 8 else i*UNIT}"]
            acc = V_ACC1 + 16 * (s & 1)
            t["mf"] = lambda wf, acc=acc, xf=xf, z=(i == 0 and ks == 0): f"v_mfma_f32_32x32x16_bf16 v[{acc}:{acc+15}], v[{wf}:{wf+3}], v[{xf}:{xf+3}], " + ("0" if z else f"v[{acc}:{acc+15}]")
            tasks.append(t)
    seen_p, seen_u, last_u = set(), set(), {}
    ACCU = {0: V_ACC1 + 16, 1: V_ACC1 + 32, 2: V_ACC1}
    for q, (p, u) in enumerate(P2):
        n = 27 + q; st = n // 3
        base, so = ringbase(n, V_T2, V_T2B)
        for ks in range(4):
            t = dict(step=st, first=(n % 3 == 0 and ks == 0), idx=len(tasks))
            t["wr"] = [(base, so + (16 * ks + 8 * b) * 128) for b in range(2)]
            hf = V_XF + (p * 4 + ks) * 4
            t["pre"] = []
            if p not in seen_p:
                hb = V_H8 if p == 8 else V_H
                t["pre"] = [f"ds_read_b128 v[{hf}:{hf+3}], v{hb} offset:{(0 if p == 8 else p*UNIT) + ks*1024}"]
            acc = ACCU[u]
            t["mf"] = lambda wf, acc=acc, hf=hf, z=(u not in seen_u and ks == 0): f"v_mfma_f32_32x32x16_bf16 v[{acc}:{acc+15}], v[{hf}:{hf+3}], v[{wf}:{wf+3}], " + ("0" if z else f"v[{acc}:{acc+15}]")
            tasks.append(t); last_u[u] = t["idx"]
        seen_p.add(p); seen_u.add(u)
    global PUBACC
    n = len(tasks)
    S = Stream(e)
    NP = n // 2
    side = []; side_start = [0]; hold = [0]; cur = [0]
    last_of_step = {}
    for t in tasks: last_of_step[t["step"]] = t["idx"]
    def pubops(u):
        ops = []
        a = ACCU[u]
        for q in range(8): ops.append(("v", f"v_cvt_pk_bf16_f32 v{V_P+q}, v{a+2*q}, v{a+2*q+1}"))
        ops.append(("v", "s_nop 0"))
        for q in range(2):
            d = V_P + 4 * q
            ops.append(("v", f"v_permlane32_swap_b32 v{d}, v{d+2}"))
            ops.append(("v", f"v_permlane32_swap_b32 v{d+1}, v{d+3}"))
        if not o.x_nopub:
            for q in range(2):
                d = V_P + 4 * q
                ops.append(("st", f"buffer_store_dwordx4 v[{d}:{d+3}], v{V_PV}, s[{SRD_WS}:{SRD_WS+3}], s{S_PO+q} offen offset:{u*1024} sc1"))
            ops.append(("v", "s_nop 0"))
        return ops
    def cost(kind, txt):
        if kind == "lds": return 24
        if kind == "st": return 16
        if txt.startswith(("v_exp", "v_rcp")): return 8
        if txt.startswith("s_") and not txt.startswith(("s_waitcnt", "s_nop")): return 2
        return 4
    def pop_side(budget):
        used = 0
        while side and S.count >= side_start[0] and cur[0] >= hold[0]:
            kind, txt = side[0]
            if kind == "gap": side.pop(0); hold[0] = cur[0] + txt; continue
            if kind == "st" and "L_ds" in txt and not S.fast_ok: break
            if kind == "silu" and S.count < S.hold_silu: break
            c = cost(kind, txt)
            if used and used + c > budget: break
            side.pop(0)
            if kind == "lds": S.lds(txt)
            else: S.emit(txt)
            if kind.startswith("flag"): S.flags.add(int(kind[4:]))
            used += c
    NR = o.LP + 1
    def tr_reads(q):
        for h in range(2):
            t = tasks[2*q + h]
            wf = V_WF + 8 * (q % NR) + 4 * h
            t["wf"] = wf
            for b, (base, off) in enumerate(t["wr"]):
                t["last"] = S.lds(f"ds_read_b64_tr_b16 v[{wf+2*b}:{wf+2*b+1}], v{base} offset:{off}")
    def pre_reads(q):
        k = 0
        for h in range(2):
            t = tasks[2*q + h]
            for x in t["pre"]:
                t["last"] = S.lds(x); k += 1
        return k
    def barrier(step):
        for fs, fb in ((0, o.h0b), (1, o.h1b), (2, o.h2b)):
            if step == fb: assert fs in S.flags, f"flag {fs} must be sent before B_{fb} (the control wave waits for it there)"
        if o.astamp and (o.astamp % 100) <= step < (o.astamp % 100) + 6: S.emit(f"s_memtime s[{S_STAMP+16+2*(step-o.astamp%100)}:{S_STAMP+17+2*(step-o.astamp%100)}]")
        S.emit("s_waitcnt lgkmcnt(0)"); S.done = S.nlds
        S.emit("s_barrier")
    late_addr = [("v", f"v_and_b32 v{V_PV}, 31, v0"), ("v", f"v_lshrrev_b32 v{V_PF}, 5, v0"), ("v", f"v_lshlrev_b32 v{V_PV}, 4, v{V_PV}"),
                 ("v", f"v_mul_u32_u24 v{V_PF}, {24*24576}, v{V_PF}"), ("v", f"v_add_u32 v{V_PV}, v{V_PV}, v{V_PF}"),
                 ("v", f"v_mul_u32_u24 v{V_PF}, {24*48*FS[0]}, v0"), ("v", f"v_add_u32 v{V_PF}, s{S_PFB}, v{V_PF}")]
    budget = o.epb
    pubq = []
    fast_known = False
    barrier(0)
    for q0 in range(o.LP):
        tr_reads(q0); pre_reads(q0)
    for q in range(NP):
        cur[0] = q
        A, B = tasks[2*q], tasks[2*q+1]
        nq = q + o.LP
        deferred = False
        f9 = 6 * 9
        if o.ep2first and q == f9:
            S.emit("s_nop 7\ns_nop 3")
            side_start[0] = 0; S.hold_silu = 0
            pop_side(10**6)
            barrier(9)
            for q0 in range(f9, f9 + o.LP): tr_reads(q0); pre_reads(q0)
        if nq < NP and not (o.ep2first and f9 <= nq < f9 + o.LP):
            if tasks[2*nq]["first"]:
                barrier(tasks[2*nq]["step"]); deferred = True
            else:
                tr_reads(nq)
        skip_pre = o.ep2first and f9 <= nq < f9 + o.LP
        if A["first"] and A["step"] == 11:
            assert not any(x[0] == "silu" for x in side), "acc of sub-tile 2 still in use"
        S.wait_lds(max(A["last"], B["last"]))
        S.emit(A["mf"](A["wf"]))
        if deferred:
            if tasks[2*nq]["step"] == o.fastb: S.lds(f"ds_read_b32 v{V_FW}, v{V_FW}")
            tr_reads(nq); pre_reads(nq)
        else:
            k = pre_reads(nq) if (nq < NP and not skip_pre) else 0
            if not (o.ep2first and q >= f9 - 0 and side and side[0][0] == 'silu' and False): pop_side(budget if k == 0 else max(budget - 24, 4))
            if o.wgap2 and q + 1 < NP and k == 0 and "last" in tasks[2*q+2] and "last" in tasks[2*q+3]:
                S.wait_lds(max(tasks[2*q+2]["last"], tasks[2*q+3]["last"]))
        S.emit(B["mf"](B["wf"]))
        if A["first"] and A["step"] == o.fastb:
            S.emit(f"v_readfirstlane_b32 s{S_FAST}, v{V_FW}"); S.fast_ok = True
        im = B["idx"]
        if im == last_of_step.get(2):
            if o.latew: side.append(("v", "s_waitcnt vmcnt(0)"))
            side += silu_ops(V_ACC1, 0, o.x_noep) + [("gap", o.gap0)] + hflag_ops(0, 0); side_start[0] = S.count + 12; budget = o.epb0
        if im == last_of_step.get(5):
            assert not any(x[0] == "silu" or x[0] == "st" and "x4" in x[1] for x in side), len(side)
            side += silu_ops(V_ACC1 + 16, 1, o.x_noep); budget = o.epb
            S.hold_silu = S.count + 12
        if im == last_of_step.get(8):
            assert not side, len(side)
            ops2 = silu_ops(V_ACC1, 2, o.x_noep)
            k1 = min(o.f1pos, len(ops2) - 2)
            ops2 = ops2[:k1] + hflag_ops(1, 0) + ops2[k1:]
            side += ops2 + late_addr + [("gap", o.gap2)] + hflag_ops(2, 0); side_start[0] = S.count + 12; budget = o.epb2
        for u, at in ((0, o.pub0), (1, o.pub1)):
            if at and q >= NP - at and im >= last_u[u] + 4 and u not in pubq and not side:
                pubq.append(u); side += pubops(u); side_start[0] = S.count; budget = 24
    assert not side
    if o.x_pad:
        e(f"s_mov_b32 s60, {o.x_pad}\nL_xpad:\nv_mov_b32 v20, v21\nv_mov_b32 v22, v21\nv_mov_b32 v20, v21\nv_mov_b32 v22, v21\ns_sub_u32 s60, s60, 1\ns_cmp_lg_u32 s60, 0\ns_cbranch_scc1 L_xpad")
    e("s_nop 7")
    if o.stamps: e(f"s_memtime s[{S_STAMP+4}:{S_STAMP+5}]")
    e("s_nop 3")
    rest = [u for u in (0, 1, 2) if u not in pubq]
    order = pubq + rest
    for u in rest:
        for k, x in pubops(u): e(x)
    for i, u in enumerate(order):
        younger = 2 * (len(order) - 1 - i) + i
        if o.x_nopub: younger = i
        if o.stamps and i == 2: e(f"s_memtime s[{S_STAMP+14}:{S_STAMP+15}]")
        if o.sent and u == 2: continue
        pflag(e, u, younger)
    if o.stamps:
        e(f"s_memtime s[{S_STAMP+6}:{S_STAMP+7}]")
        e(f"s_cmp_lg_u32 s{S_WAVE}, 0\ns_cbranch_scc1 L_end\ns_waitcnt lgkmcnt(0)")
        e(f"s_lshl_b32 s3, s{S_CU}, 9\ns_add_u32 s3, s3, {WS_ST + 256}\ns_mov_b64 exec, 1\nv_mov_b32 v1, 0")
        for k in range(0, 16, 4):
            for q in range(4): e(f"v_mov_b32 v{4+q}, s{S_STAMP+k+q}")
            e(f"buffer_store_dwordx4 v[4:7], v1, s[{SRD_WS}:{SRD_WS+3}], s3 offen offset:{k*4}\ns_nop 1")
        if o.astamp:
            e(f"s_lshl_b32 s3, s{S_CU}, 9\ns_add_u32 s3, s3, {WS_ST + 192*512}")
            for k, r0 in enumerate((S_STAMP, S_STAMP+16, S_STAMP+20, S_STAMP+24)):
                for q in range(4): e(f"v_mov_b32 v{4+q}, s{r0+q}")
                e(f"buffer_store_dwordx4 v[4:7], v1, s[{SRD_WS}:{SRD_WS+3}], s3 offen offset:{k*16}\ns_nop 1")
        e("s_waitcnt vmcnt(0)")
    if o.gsplit:
        e(f"s_cmp_lt_u32 s{S_WAVE}, 3\ns_cbranch_scc1 L_gather")
    e("s_endpgm")

def gather(e, o):
    VT, VA, VL, VD, VS = 2, 4, 5, 8, 44
    S_U = 48
    e("L_gather:")
    e(f"""
    s_cmp_eq_u32 s{S_WAVE}, 7
    s_cbranch_scc1 L_end
    s_and_b32 s{S_U}, s{S_WAVE}, 3
    s_cmp_lt_u32 s{S_WAVE}, 4
    s_cselect_b32 s57, 1, 0
    s_mul_i32 s3, s{S_CU}, {48*FS[0]}
    s_min_u32 s50, s{S_U}, {1 if o.sent else 2}
    s_mul_i32 s50, s50, {16*FS[0]}
    s_add_u32 s3, s3, s50
    s_add_u32 s3, s3, {WS_PF if FS[0] == 8 else WS_PFX}
    v_mul_u32_u24 v{VA}, {FS[0]}, v0
    v_add_u32 v{VA}, s3, v{VA}
    v_lshlrev_b32 v{VL}, 4, v0
    v_mov_b32 v{VT}, s{S_TAG}
    v_mov_b32 v{VT+1}, s{S_TAG+1}
    s_mul_i32 s52, s{S_CU}, 24576
    s_lshl_b32 s53, s{S_U}, 10
    s_add_u32 s52, s52, s53
    s_add_u32 s52, s52, {WS_P}
    v_lshlrev_b32 v6, 1, v0
    s_lshl_b32 s50, s{S_MT}, 6
    s_lshl_b32 s51, s{S_J}, 3
    s_add_u32 s50, s50, s51
    s_mul_i32 s50, s50, 1152
    s_mul_i32 s51, s{S_G}, 384
    s_add_u32 s50, s50, s51
    s_lshl_b32 s51, s{S_U}, 7
    s_add_u32 s50, s50, s51
    s_add_u32 s53, s50, 4608
    s_mov_b32 s54, 0xffff0000
    """)
    if o.ppipe:
        e(f"""
        s_mov_b64 exec, 0xffff
        s_mov_b32 s{S_CNT}, {SPIN_MAX}
        buffer_load_dwordx2 v[40:41], v{VA}, s[{SRD_WS}:{SRD_WS+3}], 0 offen sc1
        L_pp:
        s_sleep {o.ppipe}
        buffer_load_dwordx2 v[42:43], v{VA}, s[{SRD_WS}:{SRD_WS+3}], 0 offen sc1
        s_waitcnt vmcnt(1)
        v_cmp_ne_u64 vcc, v[40:41], v[{VT}:{VT+1}]
        s_sub_u32 s{S_CNT}, s{S_CNT}, 1
        s_cmp_eq_u32 s{S_CNT}, 0
        s_cbranch_scc1 L_ppdone
        s_nop 1
        s_cbranch_vccz L_ppdone
        s_sleep {o.ppipe}
        buffer_load_dwordx2 v[40:41], v{VA}, s[{SRD_WS}:{SRD_WS+3}], 0 offen sc1
        s_waitcnt vmcnt(1)
        v_cmp_ne_u64 vcc, v[42:43], v[{VT}:{VT+1}]
        s_nop 4
        s_cbranch_vccnz L_pp
        L_ppdone:
        s_mov_b64 exec, -1
        """)
    else:
        _poll(e, o, "p", VA, 0, "0xffff", VT, 40, o.psleep, ["sc1", "sc0 sc1", "nt sc1", "sc0 nt sc1"][o.pfl])
    if o.stamps: e(f"s_memtime s[{S_STAMP+8}:{S_STAMP+9}]")
    if o.sent:
        e(f"s_cmp_eq_u32 s{S_U}, 2\ns_cbranch_scc1 L_gsent")
    if o.gsplit:
        e(f"s_lshl_b32 s56, s57, 3\ns_add_u32 s52, s52, s56\ns_mul_i32 s56, s57, 4608\ns_add_u32 s50, s50, s56")
    for p in range(8):
        if o.gsplit: e(f"buffer_load_dwordx2 v[{VD+4*p}:{VD+4*p+1}], v{VL}, s[{SRD_WS}:{SRD_WS+3}], s52 offen sc1")
        else: e(f"buffer_load_dwordx4 v[{VD+4*p}:{VD+4*p+3}], v{VL}, s[{SRD_WS}:{SRD_WS+3}], s52 offen sc1")
        if p < 7: e(f"s_add_u32 s52, s52, 3072")
    if o.sent:
        e(f"""
        s_branch L_gloaded
        L_gsent:
        s_mov_b32 s{S_CNT}, {SPIN_MAX}
        s_mov_b32 s55, {SENT:#x}
        L_gretry:
        s_mov_b32 s56, s52
        """)
        for p in range(8):
            e(f"buffer_load_dwordx4 v[{VD+4*p}:{VD+4*p+3}], v{VL}, s[{SRD_WS}:{SRD_WS+3}], s56 offen sc1")
            if p < 7: e(f"s_add_u32 s56, s56, 3072")
        e("s_mov_b64 s[58:59], 0")
        for p in range(8):
            e(f"s_waitcnt vmcnt({7-p})")
            e(f"v_cmp_eq_u32 vcc, s55, v{VD+4*p}\nv_cmp_eq_u32 s[60:61], s55, v{VD+4*p+3}")
            e(f"s_nop 0\ns_or_b64 s[58:59], s[58:59], vcc\ns_or_b64 s[58:59], s[58:59], s[60:61]")
        e(f"""
        s_sub_u32 s{S_CNT}, s{S_CNT}, 1
        s_cmp_eq_u32 s{S_CNT}, 0
        s_cbranch_scc1 L_gloaded
        s_cmp_eq_u64 s[58:59], 0
        s_cbranch_scc1 L_gloaded
        s_sleep {o.gsleep}
        s_branch L_gretry
        L_gloaded:
        """)
    e(f"""
    s_or_b32 s51, s{S_J}, s{S_G}
    s_or_b32 s51, s51, s{S_U}
    s_or_b32 s51, s51, s57
    s_cmp_lg_u32 s51, 0
    s_cbranch_scc1 L_noepoch
    s_lshl_b32 s51, s{S_MT}, 7
    v_mov_b32 v{VA}, s51
    s_mov_b64 exec, 1
    buffer_store_dwordx2 v[{VT}:{VT+1}], v{VA}, s[{SRD_WS}:{SRD_WS+3}], 0 offen sc1
    s_mov_b64 exec, -1
    s_waitcnt vmcnt(0)
    L_noepoch:
    """)
    ND = 2 if o.gsplit else 4
    if o.gdot:
        e("s_mov_b32 s55, 0x05040100\ns_mov_b32 s56, 0x07060302\ns_mov_b32 s59, 0x3f803f80")
        for p in range(0, 8, 2):
            e(f"s_waitcnt vmcnt({6-p})")
            for d in range(ND):
                a, b = VD + 4 * p + d, VD + 4 * (p + 1) + d
                e(f"v_perm_b32 v{VS+8}, v{b}, v{a}, s55\nv_perm_b32 v{VS+9}, v{b}, v{a}, s56")
                c0 = "0" if p == 0 else f"v{VS+2*d}"; c1 = "0" if p == 0 else f"v{VS+2*d+1}"
                e(f"v_dot2_f32_bf16 v{VS+2*d}, v{VS+8}, s59, {c0}\nv_dot2_f32_bf16 v{VS+2*d+1}, v{VS+9}, s59, {c1}")
    else:
      for p in range(8):
        e(f"s_waitcnt vmcnt({7-p})")
        for d in range(ND):
            src = VD + 4 * p + d
            if p == 0:
                e(f"v_lshlrev_b32 v{VS+2*d}, 16, v{src}\nv_and_b32 v{VS+2*d+1}, s54, v{src}")
            else:
                e(f"v_lshlrev_b32 v{VS+8}, 16, v{src}\nv_and_b32 v{VS+9}, s54, v{src}")
                e(f"v_add_f32 v{VS+2*d}, v{VS+2*d}, v{VS+8}\nv_add_f32 v{VS+2*d+1}, v{VS+2*d+1}, v{VS+9}")
    for d in range(ND):
        e(f"v_cvt_pk_bf16_f32 v{VD+d}, v{VS+2*d}, v{VS+2*d+1}")
    if o.outx4:
        e(f"""
        s_lshl_b32 s51, s{S_U}, 10
        v_add_u32 v7, s51, v6
        v_lshl_add_u32 v{VA}, v0, 4, s51
        v_lshrrev_b32 v{VS+8}, 3, v0
        v_mul_u32_u24 v{VS+8}, 1152, v{VS+8}
        v_and_b32 v{VS+9}, 7, v0
        v_lshl_add_u32 v{VS+8}, v{VS+9}, 4, v{VS+8}
        """)
        for d in range(4):
            e(f"ds_write_b16 v7, v{VD+d} offset:{2*d*128}\nds_write_b16_d16_hi v7, v{VD+d} offset:{(2*d+1)*128}")
        e(f"""
        s_waitcnt lgkmcnt(0)
        ds_read_b128 v[{VD+4}:{VD+7}], v{VA}
        s_waitcnt lgkmcnt(0)
        buffer_store_dwordx4 v[{VD+4}:{VD+7}], v{VS+8}, s[{SRD_OUT}:{SRD_OUT+3}], s50 offen {"sc1" if o.outx4 == 2 else ""}
        """)
    else:
      for d in range(ND):
        so = "s50" if d < 2 else "s53"
        e(f"buffer_store_short v{VD+d}, v6, s[{SRD_OUT}:{SRD_OUT+3}], {so} offen offset:{(2*d % 4)*1152}")
        e(f"buffer_store_short_d16_hi v{VD+d}, v6, s[{SRD_OUT}:{SRD_OUT+3}], {so} offen offset:{((2*d+1) % 4)*1152}")
    if o.span:
        e(f"""
        s_waitcnt vmcnt(0)
        s_memrealtime s[{S_STAMP+2}:{S_STAMP+3}]
        s_waitcnt lgkmcnt(0)
        s_lshl_b32 s3, s{S_CU}, 6
        s_lshl_b32 s51, s{S_U}, 4
        s_add_u32 s3, s3, s51
        s_add_u32 s3, s3, {WS_ST}
        s_cmp_eq_u32 s57, 1
        s_cselect_b32 s3, {WS_ST + 192*64}, s3
        s_mov_b64 exec, 1
        v_mov_b32 v1, 0
        v_mov_b32 v4, s{S_STAMP}
        v_mov_b32 v5, s{S_STAMP+1}
        v_mov_b32 v6, s{S_STAMP+2}
        v_mov_b32 v7, s{S_STAMP+3}
        buffer_store_dwordx4 v[4:7], v1, s[{SRD_WS}:{SRD_WS+3}], s3 offen sc1
        """)
    if o.stamps:
        e(f"""
        s_cmp_lg_u32 s{S_WAVE}, 6
        s_cbranch_scc1 L_end
        s_waitcnt vmcnt(0)
        s_memtime s[{S_STAMP+10}:{S_STAMP+11}]
        s_memrealtime s[{S_STAMP+12}:{S_STAMP+13}]
        s_waitcnt lgkmcnt(0)
        s_lshl_b32 s3, s{S_CU}, 9
        s_add_u32 s3, s3, {WS_ST + 384}
        s_mov_b64 exec, 1
        v_mov_b32 v1, 0
        """)
        for k in range(0, 16, 4):
            for q in range(4): e(f"v_mov_b32 v{4+q}, s{S_STAMP+k+q}")
            e(f"buffer_store_dwordx4 v[4:7], v1, s[{SRD_WS}:{SRD_WS+3}], s3 offen offset:{k*4}\ns_nop 1")
        e("s_waitcnt vmcnt(0)")
    e("s_endpgm")

def clear_issue(e, o):
    srd(e, SRD_WS, S_WS, WS_SIZE)
    e(f"""
    s_lshl_b32 s3, s52, 7
    s_load_dwordx2 s[{S_TAG}:{S_TAG+1}], s[{S_WS}:{S_WS+1}], s3
    s_mul_i32 s58, s{S_J}, 24
    s_mul_i32 s57, s52, 3
    s_add_u32 s58, s58, s57
    v_lshrrev_b32 v20, 6, v0
    v_and_b32 v21, 63, v0
    v_mul_u32_u24 v20, 3072, v20
    v_lshl_add_u32 v20, v21, 4, v20
    s_mul_i32 s57, s58, 24576
    s_add_u32 s57, s57, {WS_P + 2048}
    v_mov_b32 v24, {SENT:#x}
    v_mov_b32 v25, {SENT:#x}
    v_mov_b32 v26, {SENT:#x}
    v_mov_b32 v27, {SENT:#x}
    buffer_store_dwordx4 v[24:27], v20, s[{SRD_WS}:{SRD_WS+3}], s57 offen sc1
    s_add_u32 s57, s57, 24576
    buffer_store_dwordx4 v[24:27], v20, s[{SRD_WS}:{SRD_WS+3}], s57 offen sc1
    s_add_u32 s57, s57, 24576
    buffer_store_dwordx4 v[24:27], v20, s[{SRD_WS}:{SRD_WS+3}], s57 offen sc1
    """)

def clear_finish(e, o, name):
    e(f"""
    s_waitcnt lgkmcnt(0)
    s_barrier
    s_cmp_lg_u32 s{S_WAVE}, 0
    s_cbranch_scc1 L_clr_{name}
    s_add_u32 s{S_TAG}, s{S_TAG}, {TAGC_LO:#x}
    s_addc_u32 s{S_TAG+1}, s{S_TAG+1}, {TAGC_HI:#x}
    s_lshl_b32 s58, s58, 7
    s_add_u32 s58, s58, {WS_CF}
    v_mov_b32 v22, s{S_TAG}
    v_mov_b32 v23, s{S_TAG+1}
    v_lshlrev_b32 v21, 7, v0
    s_mov_b64 exec, 7
    buffer_store_dwordx2 v[22:23], v21, s[{SRD_WS}:{SRD_WS+3}], s58 offen sc1
    s_mov_b64 exec, -1
    L_clr_{name}:
    """)

def prefetch2(e, o):
    NT = "nt" if o.pf_nt else ""; HNT = "nt" if o.ht_nt else ""
    e("L_prefetch:")
    e(f"""
    s_sub_u32 s52, s3, 24
    s_cmp_ge_u32 s{S_WAVE}, 4
    s_cbranch_scc1 L_pf_h
    v_min_u32 v1, 215, v0
    s_mov_b32 s{S_T0}, 21846
    v_mul_u32_u24 v2, s{S_T0}, v1
    v_lshrrev_b32 v2, 16, v2
    v_mul_u32_u24 v3, 3, v2
    v_sub_u32 v3, v1, v3
    v_mul_u32_u24 v4, 9216, v2
    v_mul_u32_u24 v3, 384, v3
    v_add_u32 v4, v4, v3
    s_mul_i32 s53, s52, {72*9216}
    s_mul_i32 s{S_T1}, s{S_J}, 1152
    s_add_u32 s53, s53, s{S_T1}
    s_add_u32 s53, s53, 128
    s_mov_b32 s{S_T0}, 7282
    v_mul_u32_u24 v5, s{S_T0}, v1
    v_lshrrev_b32 v5, 16, v5
    v_mul_u32_u24 v6, 9, v5
    v_sub_u32 v6, v1, v6
    s_mul_i32 s54, s52, 24
    v_add_u32 v5, s54, v5
    v_lshrrev_b32 v7, 6, v5
    v_and_b32 v5, 63, v5
    v_mul_u32_u24 v7, 192, v7
    v_add_u32 v5, v5, v7
    v_mul_u32_u24 v5, 1152, v5
    v_lshl_add_u32 v5, v6, 7, v5
    s_mul_i32 s55, s{S_J}, {576*1152}
    s_waitcnt lgkmcnt(0)
    """)
    srd(e, SRD_B, S_W1, 576*4608*2)
    srd(e, SRD_C, S_W2, 576*4608*2)
    for k in range(o.pfdelay):
        if o.probe1: e(f"s_sub_u32 s56, s53, 128\nv_and_b32 v9, 7, v1\nv_mul_u32_u24 v9, 9216, v9\nbuffer_load_dword v8, v9, s[{SRD_B}:{SRD_B+3}], s56 offen\ns_waitcnt vmcnt(0)")
        elif k == 0: e(f"s_sub_u32 s56, s53, 128\nbuffer_load_dword v8, v4, s[{SRD_B}:{SRD_B+3}], s56 offen {NT}\ns_waitcnt vmcnt(0)")
        else:
            srd(e, SRD_A, S_X, 512*576*2)
            e(f"s_mul_i32 s56, s52, {576*128}\ns_add_u32 s56, s56, {(k-1)*216*128}\nv_lshlrev_b32 v9, 7, v1\nbuffer_load_dword v8, v9, s[{SRD_A}:{SRD_A+3}], s56 offen\ns_waitcnt vmcnt(0)")
    loads = {"s1": (SRD_B, 4, "s53", 0), "s2": (SRD_B, 4, "s53", 128), "t0": (SRD_C, 5, "s55", 0), "t1": (SRD_C, 5, "s55", 64*1152), "t2": (SRD_C, 5, "s55", 128*1152)}
    rounds = {0: [["s1"], ["s2"], ["t0"], ["t1"], ["t2"]],
              1: [["s1"], ["s2", "t0"], ["t1", "t2"]],
              2: [["s1", "s2"], ["t0", "t1", "t2"]],
              3: [["s1"], ["s2"], ["t0", "t1"], ["t2"]],
              4: [["s1"], ["s2", "t0", "t1", "t2"]]}[o.pfmerge]
    for ri, rnd in enumerate(rounds):
        if o.sent and o.clrpos == 2 and ri == o.clrA: clear_issue(e, o)
        for k, nm in enumerate(rnd):
            sr, vv, sb, add = loads[nm]
            e(f"s_add_u32 s56, {sb}, {add}\nbuffer_load_dword v{8+k}, v{vv}, s[{sr}:{sr+3}], s56 offen {NT}")
        e("s_waitcnt vmcnt(0)")
        if o.sent and o.clrpos == 2 and ri == o.clrA: clear_finish(e, o, "a")
    e(f"""
    s_endpgm
    L_pf_h:
    v_subrev_u32 v1, 256, v0
    v_min_u32 v1, 191, v1
    v_lshrrev_b32 v2, 6, v1
    v_and_b32 v3, 63, v1
    v_mul_u32_u24 v2, 24576, v2
    v_lshl_add_u32 v2, v3, 7, v2
    s_mul_i32 s53, s{S_J}, {24*24576}
    s_mul_i32 s54, s52, {3*24576}
    s_add_u32 s53, s53, s54
    s_add_u32 s53, s53, {WS_H}
    v_and_b32 v4, {7 if o.probe1 else 63}, v3
    v_mul_u32_u24 v4, 9216, v4
    s_mul_i32 s54, s52, {72*9216}
    s_mul_i32 s55, s{S_J}, 1152
    s_add_u32 s54, s54, s55
    s_waitcnt lgkmcnt(0)
    """)
    srd(e, SRD_B, S_W1, 576*4608*2)
    srd(e, SRD_WS, S_WS, WS_SIZE)
    if not o.ptouch:
        e("s_endpgm")
        return
    if o.bx:
        srd(e, SRD_A, S_X, 512*576*2)
        e(f"v_lshlrev_b32 v9, 7, v1\ns_mul_i32 s56, s52, {576*128}")
    for k in range(o.hdelay):
        if o.sent and o.clrpos == 2 and k == o.clrB: clear_issue(e, o)
        if o.bx and k < 3:
            e(f"buffer_load_dword v8, v9, s[{SRD_A}:{SRD_A+3}], s56 offen\ns_waitcnt vmcnt(0)\ns_add_u32 s56, s56, {192*128}")
        else:
            e(f"buffer_load_dword v8, v4, s[{SRD_B}:{SRD_B+3}], s54 offen\ns_waitcnt vmcnt(0)\ns_add_u32 s54, s54, 384")
        if o.sent and o.clrpos == 2 and k == o.clrB: clear_finish(e, o, "b")
    for st in range(3):
        e(f"buffer_load_dword v8, v2, s[{SRD_WS}:{SRD_WS+3}], s53 offen {HNT}\ns_waitcnt vmcnt(0)")
        if st < 2: e(f"s_add_u32 s53, s53, {UNIT}")
    e("s_endpgm")

def prefetch(e, o):
    if o.pfv == 2: return prefetch2(e, o)
    e("L_prefetch:")
    e(f"""
    s_sub_u32 s3, s3, 24
    s_mov_b32 s52, s3
    s_mov_b32 s{S_T0}, 10923
    v_mul_u32_u24 v1, s{S_T0}, v0
    v_lshrrev_b32 v1, 16, v1
    v_mul_u32_u24 v2, 6, v1
    v_sub_u32 v2, v0, v2
    v_lshrrev_b32 v3, 1, v2
    v_and_b32 v2, 1, v2
    v_mul_u32_u24 v3, 384, v3
    v_lshl_add_u32 v3, v2, 7, v3
    v_mul_u32_u24 v1, 9216, v1
    v_add_u32 v1, v1, v3
    s_mul_i32 s{S_T0}, s3, {72*9216}
    s_mul_i32 s{S_T1}, s{S_J}, 1152
    s_add_u32 s{S_T0}, s{S_T0}, s{S_T1}
    s_add_u32 s{S_T0}, s{S_T0}, 128
    s_mul_i32 s{S_T1}, s{S_J}, {576*1152}
    s_mul_i32 s3, s3, {72*1152}
    s_add_u32 s{S_T1}, s{S_T1}, s3
    v_lshlrev_b32 v4, 7, v0
    v_add_u32 v5, 65536, v4
    v_min_u32 v5, {647*128}, v5
    v_cmp_gt_u32 vcc, 432, v0
    s_waitcnt lgkmcnt(0)
    """)
    srd(e, SRD_B, S_W1, 576*4608*2)
    srd(e, SRD_C, S_W2, 576*4608*2)
    e(f"""
    v_mov_b32 v6, 0
    v_cndmask_b32 v1, v6, v1, vcc
    """)
    if o.sent and o.clrpos == 0:
        srd(e, SRD_WS, S_WS, WS_SIZE)
        clear_inboxes(e, o)
    if o.pfdelay:
        e(f"""
        v_min_u32 v15, {o.pfdelay * 8 - 1}, v0
        v_mul_u32_u24 v15, 9216, v15
        s_sub_u32 s53, s{S_T0}, 128
        buffer_load_dword v16, v15, s[{SRD_B}:{SRD_B+3}], s53 offen
        s_waitcnt vmcnt(0)
        """)
    if o.pfsplit:
        e(f"""
        v_cmp_eq_u32 vcc, 0, v2
        s_nop 1
        s_and_saveexec_b64 s[54:55], vcc
        buffer_load_dword v8, v1, s[{SRD_B}:{SRD_B+3}], s{S_T0} offen
        s_waitcnt vmcnt(0)
        s_andn2_b64 exec, s[54:55], exec
        buffer_load_dword v8, v1, s[{SRD_B}:{SRD_B+3}], s{S_T0} offen
        s_mov_b64 exec, s[54:55]
        """)
    else:
        e(f"buffer_load_dword v8, v1, s[{SRD_B}:{SRD_B+3}], s{S_T0} offen")
    if o.ptouch:
        srd(e, SRD_WS, S_WS, WS_SIZE)
        e(f"""
        s_mul_i32 s50, s{S_J}, {24*24576}
        s_mul_i32 s51, s52, {576*128}
        s_add_u32 s50, s50, s51
        s_add_u32 s50, s50, {WS_H}
        v_min_u32 v11, 63, v0
        v_lshlrev_b32 v11, 7, v11
        v_add_u32 v11, 65536, v11
        """)
    if o.ptouch == 3:
        e(f"""
        v_lshrrev_b32 v12, 6, v0
        v_min_u32 v12, 2, v12
        v_mul_u32_u24 v12, 24576, v12
        v_and_b32 v13, 63, v0
        v_lshl_add_u32 v14, v13, 7, v12
        v_add_u32 v14, 16384, v14
        """)
    e("s_waitcnt vmcnt(0)")
    if o.ptouch == 2:
        e(f"buffer_load_dword v12, v4, s[{SRD_WS}:{SRD_WS+3}], s50 offen\nbuffer_load_dword v13, v11, s[{SRD_WS}:{SRD_WS+3}], s50 offen")
    e(f"""
    buffer_load_dword v9, v4, s[{SRD_C}:{SRD_C+3}], s{S_T1} offen
    buffer_load_dword v10, v5, s[{SRD_C}:{SRD_C+3}], s{S_T1} offen
    s_waitcnt vmcnt(0)
    """)
    if o.ptouch == 3:
        e(f"buffer_load_dword v12, v14, s[{SRD_WS}:{SRD_WS+3}], s50 offen\ns_waitcnt vmcnt(0)")
    if o.ptouch == 1:
        e(f"buffer_load_dword v12, v4, s[{SRD_WS}:{SRD_WS+3}], s50 offen\nbuffer_load_dword v13, v11, s[{SRD_WS}:{SRD_WS+3}], s50 offen\ns_waitcnt vmcnt(0)")
    if o.sent and o.clrpos == 1: clear_inboxes(e, o)
    e("s_endpgm")

def clear_inboxes(e, o):
    e(f"""
    s_lshl_b32 s3, s52, 7
    s_load_dwordx2 s[{S_TAG}:{S_TAG+1}], s[{S_WS}:{S_WS+1}], s3
    s_mul_i32 s56, s{S_J}, 24
    s_mul_i32 s57, s52, 3
    s_add_u32 s56, s56, s57
    v_lshrrev_b32 v20, 6, v0
    v_and_b32 v21, 63, v0
    v_mul_u32_u24 v20, 3072, v20
    v_lshl_add_u32 v20, v21, 4, v20
    s_mul_i32 s57, s56, 24576
    s_add_u32 s57, s57, {WS_P + 2048}
    v_mov_b32 v24, {SENT:#x}
    v_mov_b32 v25, {SENT:#x}
    v_mov_b32 v26, {SENT:#x}
    v_mov_b32 v27, {SENT:#x}
    buffer_store_dwordx4 v[24:27], v20, s[{SRD_WS}:{SRD_WS+3}], s57 offen sc1
    s_add_u32 s57, s57, 24576
    buffer_store_dwordx4 v[24:27], v20, s[{SRD_WS}:{SRD_WS+3}], s57 offen sc1
    s_add_u32 s57, s57, 24576
    buffer_store_dwordx4 v[24:27], v20, s[{SRD_WS}:{SRD_WS+3}], s57 offen sc1
    s_waitcnt vmcnt(0) lgkmcnt(0)
    s_barrier
    s_add_u32 s{S_TAG}, s{S_TAG}, {TAGC_LO:#x}
    s_addc_u32 s{S_TAG+1}, s{S_TAG+1}, {TAGC_HI:#x}
    s_lshl_b32 s56, s56, 7
    s_add_u32 s56, s56, {WS_CF}
    v_mov_b32 v22, s{S_TAG}
    v_mov_b32 v23, s{S_TAG+1}
    v_lshlrev_b32 v21, 7, v0
    v_cmp_gt_u32 vcc, 3, v0
    s_nop 1
    s_and_saveexec_b64 s[54:55], vcc
    s_cbranch_execz L_clr_done
    buffer_store_dwordx2 v[22:23], v21, s[{SRD_WS}:{SRD_WS+3}], s56 offen sc1
    L_clr_done:
    s_mov_b64 exec, s[54:55]
    """)

def build(o):
    if o.order: P2[:] = P2B
    FS[0] = o.pfs
    _uid[0] = 0; OUTLINE.clear(); NOST[0] = o.x_nost; NOST[1] = o.x_nodsw; NOST[2] = o.hsc1; NOST[3] = o.hnt
    e = E(); prologue(e, o)
    parts = []
    ls = E(); loader_start(ls, o)
    for lw in range(3):
        x = E(); loader(x, o, lw); parts.append(("loader%d" % lw, x))
    x = E(); control(x, o); parts.append(("control", x))
    x = E(); prefetch(x, o); parts.append(("prefetch", x))
    x = E(); compute(x, o); parts.append(("compute", x))
    eg = E(); gather(eg, o)
    for k, v in parts:
        pre = e.text() + "\n" + (ls.text() + "\n" if k.startswith("loader") else "")
        pr = hazard.check(pre + v.text() + "\n" + eg.text())
        if pr: raise SystemExit(f"hazards in {k}")
    body = "\n".join([e.text(), ls.text()] + [v.text() for k, v in parts] + [eg.text(), "\n".join(OUTLINE), "L_end:", "s_endpgm"])
    nsgpr = 100 if o.stamps else 72
    hdr = f"""; Kernarg layout (48 bytes, pointers only, base s[0:1]):
;
; out = silu(x @ w1) @ w2   with M = 512 rows, D = 576, F = 4608, in ONE launch.
;
;   phase 1: h[mt rows, slice j, group g] = silu(x @ w1), three 64-wide sub-tiles, x fragments resident in registers
;   waves 0-3: MFMA (32x32x16 bf16, weights read with ds_read_b64_tr_b16), waves 4-6: LDS-DMA loaders (8 KB units,
;   11-slot ring) and final reduction, wave 7: control (hand-off flags).  One s_barrier per step of three units.
; Hand-off words carry a 64-bit tag = epoch word of the row tile (read at entry, advanced once per launch) + constant, so
; that flags left by earlier launches or any other workspace content never match.  Data and flags are write-through (sc1)
; stores read with sc1 loads; when the three h partners report the same XCC id (they share one L2) the h tile and its
; flags use plain stores instead.  Every placement of workgroups on XCDs gives the same result.
; @launch grid=({NWG + o.npf},1,1) block=(512,1,1) lds={LDS_BYTES}
.amdgcn_target "amdgcn-amd-amdhsa--gfx950"
.text
.globl {KNAME}
.p2align 8
.type {KNAME},@function
{KNAME}:
"""
    tail = f"""
.section .rodata,"a"
.p2align 6
.amdhsa_kernel {KNAME}
  .amdhsa_next_free_vgpr 256
  .amdhsa_next_free_sgpr {nsgpr}
  .amdhsa_accum_offset 256
  .amdhsa_group_segment_fixed_size 0
  .amdhsa_kernarg_size 48
  .amdhsa_user_sgpr_count 2
  .amdhsa_user_sgpr_kernarg_segment_ptr 1
  .amdhsa_system_sgpr_workgroup_id_x 1
.end_amdhsa_kernel
"""
    return hdr + body + tail

if __name__ == "__main__":
    o = Opt()
    out = sys.argv[1]
    for a in sys.argv[2:]:
        k, v = a.split("=")
        setattr(o, k, bool(int(v)) if isinstance(getattr(Opt, k), bool) else int(v))
    open(out, "w").write(build(o))
    print("wrote", out)
```

```python
import sys, os
sys.path.insert(0, os.path.dirname(__file__))
import hazard

KNAME = "standalone__dense_activation_silu__sampling_kernel"
NWG = 192
NPF = 64
XH = 0
RING = 73728
R = 11
UNIT = 8192
LDS_BYTES = 163840
WS_E, WS_ID, WS_HF, WS_PF, WS_H, WS_P, WS_ST = 0, 4096, 32768, 65536, 262144, 5242880, 16777216
WS_PFX = 12582912
FS = [8]
WS_CF = 163840
SENT = 0x7F817F81
WS_SIZE = 0x10000000
TAGC_LO, TAGC_HI = 0x7F4A7C15, 0x9E3779B9
SPIN_MAX = 1000000
FASTW = XH + 3 * UNIT

P2 = [(0,0),(1,0),(2,0), (0,1),(1,1),(2,1), (0,2),(1,2),(2,2), (3,0),(4,0),(5,0), (3,1),(4,1),(5,1),
      (6,0),(7,0),(8,0), (6,1),(7,1),(8,1), (3,2),(4,2),(5,2), (6,2),(7,2),(8,2)]
P2B = [(0,0),(1,0),(2,0), (0,1),(1,1),(2,1), (0,2),(1,2),(2,2), (3,0),(4,0),(5,0), (3,1),(4,1),(5,1),
       (3,2),(4,2),(5,2), (6,0),(7,0),(8,0), (6,1),(7,1),(8,1), (6,2),(7,2),(8,2)]
PCH = [(p % 3, p // 3) for p in range(9)]

class Opt:
    stamps = False
    LP = 3
    pairw = True
    pub0 = 17
    pub1 = 11
    DRAIN = 2
    epb = 52
    epb2 = 110
    f1pos = 8
    h0b = 8
    h1b = 11
    h2b = 13
    fastb = 4
    gap0 = 5
    gap2 = 4
    tlbw = True
    ctouch = False
    ptouch = 1
    t0b = 3
    t1b = 5
    t2b = 7
    order = 0
    touch = 2
    wgap2 = True
    ppipe = 0
    epb0 = 80
    sent = False
    gsleep = 1
    hmode = 2
    gdot = False
    clrA = 0
    clrB = 2
    pfl = 0
    wdefer = 0
    pfmerge = 3
    pf_nt = False
    ht_nt = False
    bx = 0
    probe1 = False
    latew = False
    lprio = 0
    cprio = 0
    gsplit = False
    x_perm = 0
    pfs = 8
    pfv = 2
    hdelay = 4
    clrpos = 1
    clrb = 4
    cfb = 7
    chkb = 15
    span = False
    x_pad = 0
    ep2first = False
    hnt = True
    pfdelay = 2
    pfsplit = True
    outx4 = 0
    tlbb = 0
    wbl2 = 0
    hsc1 = 0
    early = 1
    astamp = 0
    ep2_rate = 9
    prefetch_code = True
    prio = 0
    npf = 64
    force_slow = False
    sleep = 1
    w_nt = True
    x_noep = False
    x_nodma = False
    x_nopub = False
    x_nost = False
    x_hplain = False
    x_nodsw = False
    psleep = 1
    stampset = 0

class E:
    def __init__(self): self.L = []
    def __call__(self, s):
        for l in s.split("\n"):
            l = l.strip()
            if l: self.L.append(l)
    def text(self): return "\n".join(self.L)

S_X, S_W1, S_W2, S_OUT, S_WS = 4, 6, 8, 10, 12
S_J, S_MT, S_G, S_WAVE, S_CU = 14, 15, 16, 17, 18
S_FAST = 19
S_TAG = 20
S_T0, S_T1 = 22, 23
SRD_A, SRD_B, SRD_C = 24, 28, 32
SRD_WS, SRD_OUT = 36, 40
S_G1, S_G2 = 44, 45
S_CNT = 46
S_STAMP = 64

def srd(e, d, base, size):
    e(f"s_mov_b32 s{d}, s{base}\ns_and_b32 s{d+1}, s{base+1}, 0xffff\ns_mov_b32 s{d+2}, {size}\ns_mov_b32 s{d+3}, 0x20000")

def prologue(e, o):
    e(f"""
    s_cmp_ge_u32 s2, {NWG + o.npf}
    s_cbranch_scc1 L_end
    s_load_dwordx4 s[4:7], s[0:1], 0
    s_load_dwordx4 s[8:11], s[0:1], 16
    s_load_dwordx2 s[12:13], s[0:1], 40
    """)
    if o.x_perm == 1:
        e("s_lshr_b32 s3, s2, 3\ns_and_b32 s3, s3, 7\ns_xor_b32 s2, s2, s3")
    if o.x_perm == 2:
        e("s_lshr_b32 s3, s2, 5\ns_and_b32 s3, s3, 1\ns_lshr_b32 s22, s2, 3\ns_and_b32 s3, s3, s22\ns_xor_b32 s2, s2, s3")
    if o.prefetch_code:
        e(f"""
        s_getpc_b64 s[{S_T0}:{S_T0+1}]
        L_pf:
        v_lshlrev_b32 v1, 7, v0
        v_min_u32 v1, L_end-L_pf, v1
        global_load_dword v31, v1, s[{S_T0}:{S_T0+1}]
        """)
    if o.stamps:
        e(f"s_memrealtime s[{S_STAMP}:{S_STAMP+1}]\ns_memtime s[{S_STAMP+2}:{S_STAMP+3}]")
    if o.span:
        e(f"s_memrealtime s[{S_STAMP}:{S_STAMP+1}]")
    e(f"""
    v_lshrrev_b32 v1, 6, v0
    s_and_b32 s{S_J}, s2, 7
    s_lshr_b32 s3, s2, 3
    v_readfirstlane_b32 s{S_WAVE}, v1
    s_cmp_ge_u32 s2, {NWG}
    s_cbranch_scc1 L_prefetch
    s_mul_i32 s{S_MT}, s3, 171
    s_lshr_b32 s{S_MT}, s{S_MT}, 9
    s_mul_i32 s{S_G}, s{S_MT}, 3
    s_sub_u32 s{S_G}, s3, s{S_G}
    v_and_b32 v0, 63, v0
    s_cmp_lt_u32 s{S_WAVE}, 4
    s_cbranch_scc1 L_compute
    s_cmp_eq_u32 s{S_WAVE}, 7
    s_cbranch_scc1 L_control
    """)

def common_ids(e):
    e(f"""
    s_add_u32 s{S_G1}, s{S_G}, 1
    s_cmp_eq_u32 s{S_G1}, 3
    s_cselect_b32 s{S_G1}, 0, s{S_G1}
    s_add_u32 s{S_G2}, s{S_G1}, 1
    s_cmp_eq_u32 s{S_G2}, 3
    s_cselect_b32 s{S_G2}, 0, s{S_G2}
    s_lshl_b32 s{S_CU}, s{S_J}, 3
    s_add_u32 s{S_CU}, s{S_CU}, s{S_MT}
    s_mul_i32 s{S_CU}, s{S_CU}, 3
    s_add_u32 s{S_CU}, s{S_CU}, s{S_G}
    s_lshl_b32 s3, s{S_MT}, 7
    """)

def load_epoch(e):
    e(f"s_load_dwordx2 s[{S_TAG}:{S_TAG+1}], s[{S_WS}:{S_WS+1}], s3")
    srd(e, SRD_WS, S_WS, WS_SIZE)
    srd(e, SRD_OUT, S_OUT, 512*576*2)

def finish_tag(e):
    e(f"""
    s_waitcnt lgkmcnt(0)
    s_add_u32 s{S_TAG}, s{S_TAG}, {TAGC_LO:#x}
    s_addc_u32 s{S_TAG+1}, s{S_TAG+1}, {TAGC_HI:#x}
    """)

def dma_unit(e, srd_r, vp, s_off, half_step, lds, flags="", s_tmp=61, s_lb=None):
    pats = vp if len(vp) == 4 else vp * 4
    m0 = (lambda c: f"s_mov_b32 m0, {c}") if s_lb is None else (lambda c: f"s_add_u32 m0, s{s_lb}, {c}")
    e(f"{m0(lds)}\ns_add_u32 s{s_tmp}, s{s_off}, {half_step}")
    for k in range(4):
        e(f"buffer_load_dwordx4 v{pats[k]}, s[{srd_r}:{srd_r+3}], s{s_off} offen offset:{1024*k} {flags} lds")
    e(f"{m0(lds + 4096)}\ns_nop 0")
    for k in range(4):
        e(f"buffer_load_dwordx4 v{pats[k]}, s[{srd_r}:{srd_r+3}], s{s_tmp} offen offset:{1024*k} {flags} lds")

def issue_barrier(n): return -1 if n < R else (n - R) // 3 + 1

V_LX, V_LW1, V_LW2 = 8, 12, 16
S_C = [48, 49, 50]; S_XO = [51, 52, 53]; S_WO = [54, 55, 56]; S_GB = [57, 58, 59]; S_OFF = 60
S_LW, S_LB = 62, 63
S_LH = 47
V_LIN = 20

def lstamp(e, o, k):
    if o.stamps and not o.astamp: e(f"s_memtime s[{S_STAMP+16+2*k}:{S_STAMP+17+2*k}]")

def loader_start(e, o):
    wf = "nt" if o.w_nt else ""
    if o.lprio: e(f"s_setprio {o.lprio}")
    e(f"""
    s_sub_u32 s{S_LW}, s{S_WAVE}, 4
    v_lshrrev_b32 v1, 3, v0
    v_and_b32 v2, 7, v0
    v_lshrrev_b32 v6, 1, v1
    v_mul_u32_u24 v5, 1152, v1
    v_xor_b32 v6, v2, v6
    v_lshlrev_b32 v7, 4, v6
    v_add_u32 v{V_LX}, v5, v7
    v_xor_b32 v7, 64, v7
    v_add_u32 v{V_LX+1}, v5, v7
    v_add_u32 v{V_LX+1}, {9216-1024}, v{V_LX+1}
    v_add_u32 v{V_LX+2}, {2*(9216-1024)}, v{V_LX}
    v_add_u32 v{V_LX+3}, {2*(9216-1024)}, v{V_LX+1}
    s_mul_i32 s{S_T0}, s{S_G}, 3
    s_add_u32 s{S_T0}, s{S_T0}, s{S_MT}
    s_add_u32 s{S_T0}, s{S_T0}, s{S_LW}
    s_cmp_ge_u32 s{S_T0}, 9
    s_cselect_b32 s{S_T1}, 9, 0
    s_sub_u32 s{S_C[0]}, s{S_T0}, s{S_T1}
    s_mul_i32 s{S_T0}, s{S_MT}, {64*1152}
    s_lshl_b32 s{S_XO[0]}, s{S_C[0]}, 7
    s_add_u32 s{S_XO[0]}, s{S_XO[0]}, s{S_T0}
    s_lshl_b32 s{S_LB}, s{S_LW}, 13
    v_and_b32 v3, 2, v1
    v_lshlrev_b32 v3, 1, v3
    v_xor_b32 v3, v2, v3
    v_lshlrev_b32 v3, 4, v3
    v_mul_u32_u24 v4, 9216, v1
    v_add_u32 v{V_LW1}, v4, v3
    v_add_u32 v{V_LW2}, v5, v3
    s_mul_i32 s{S_T1}, s{S_J}, 1152
    s_mul_i32 s3, s{S_G}, 384
    s_add_u32 s{S_T1}, s{S_T1}, s3
    s_mul_i32 s3, s{S_C[0]}, {64*9216}
    s_add_u32 s{S_WO[0]}, s{S_T1}, s3
    v_add_u32 v{V_LW1+1}, {1*(73728-1024)}, v{V_LW1}
    v_add_u32 v{V_LW1+2}, {2*(73728-1024)}, v{V_LW1}
    v_add_u32 v{V_LW1+3}, {3*(73728-1024)}, v{V_LW1}
    s_waitcnt lgkmcnt(0)
    """)
    lstamp(e, o, 0)
    srd(e, SRD_A, S_X, 512*576*2)
    XP = [V_LX, V_LX+1, V_LX+2, V_LX+3]; WP = [V_LW1, V_LW1+1, V_LW1+2, V_LW1+3]
    dma_unit(e, SRD_A, XP, S_XO[0], 4*9216, XH, s_lb=S_LB)
    srd(e, SRD_B, S_W1, 576*4608*2)
    dma_unit(e, SRD_B, WP, S_WO[0], 4*73728, RING, wf, s_lb=S_LB)
    lstamp(e, o, 1)
    for k in (1, 2):
        e(f"""
        s_add_u32 s3, s{S_C[k-1]}, 3
        s_cmp_ge_u32 s3, 9
        s_cselect_b32 s{S_C[k]}, 9, 0
        s_sub_u32 s{S_C[k]}, s3, s{S_C[k]}
        s_lshl_b32 s3, s{S_C[k]}, 7
        s_add_u32 s{S_XO[k]}, s{S_T0}, s3
        s_mul_i32 s3, s{S_C[k]}, {64*9216}
        s_add_u32 s{S_WO[k]}, s{S_T1}, s3
        """)
        if (k == 1 and o.early < 2) or not o.early:
            dma_unit(e, SRD_A, XP, S_XO[k], 4*9216, XH + 3*k*UNIT, s_lb=S_LB)
            dma_unit(e, SRD_B, WP, S_WO[k], 4*73728, RING + 3*k*UNIT, wf, s_lb=S_LB)
    if not o.early:
        e(f"s_cmp_eq_u32 s{S_LW}, 2\ns_cbranch_scc1 L_ld_no4")
        e(f"s_add_u32 s{S_OFF}, s{S_WO[0]}, 128")
        dma_unit(e, SRD_B, WP, S_OFF, 4*73728, RING + 9*UNIT, wf, s_lb=S_LB)
        e("L_ld_no4:")
    lstamp(e, o, 2)
    common_ids(e)
    srd(e, SRD_C, S_W2, 576*4608*2)
    for k in (1, 2, 3):
        e(f"v_add_u32 v{V_LW2+k}, {k*(9216-1024)}, v{V_LW2}")
    e(f"""
    s_mul_i32 s{S_T0}, s{S_J}, {576*1152}
    s_mul_i32 s{S_T1}, s{S_G}, 384
    s_add_u32 s{S_T0}, s{S_T0}, s{S_T1}
    """)
    for k, sg in enumerate((S_G, S_G1, S_G2)):
        e(f"s_mul_i32 s3, s{sg}, {192*1152}\ns_add_u32 s{S_GB[k]}, s{S_T0}, s3")
    e(f"""
    s_cmp_eq_u32 s{S_LW}, 1
    s_cselect_b32 s3, s{S_G1}, s{S_G}
    s_cmp_eq_u32 s{S_LW}, 2
    s_cselect_b32 s3, s{S_G2}, s3
    s_sub_u32 s{S_LH}, s{S_CU}, s{S_G}
    s_add_u32 s{S_LH}, s{S_LH}, s3
    s_mul_i32 s{S_LH}, s{S_LH}, 24576
    s_add_u32 s{S_LH}, s{S_LH}, {WS_H}
    v_lshlrev_b32 v{V_LIN}, 4, v0
    """)
    e(f"s_lshl_b32 s3, s{S_MT}, 7")
    load_epoch(e)
    finish_tag(e)
    e(f"""
    s_cmp_eq_u32 s{S_LW}, 1
    s_cbranch_scc1 L_loader1
    s_cmp_eq_u32 s{S_LW}, 2
    s_cbranch_scc1 L_loader2
    """)

def loader(e, o, lw):
    wf = "nt" if o.w_nt else ""
    WP = [V_LW1, V_LW1+1, V_LW1+2, V_LW1+3]; W2P = [V_LW2, V_LW2+1, V_LW2+2, V_LW2+3]
    e(f"L_loader{lw}:")
    XP = [V_LX, V_LX+1, V_LX+2, V_LX+3]
    if o.early == 2: seq = [("x", lw), ("w", lw)]
    elif o.early: seq = [("x", lw), ("w", lw), ("x", 3+lw), ("w", 3+lw)]
    else: seq = [("x", lw), ("w", lw), ("x", 3+lw), ("w", 3+lw), ("x", 6+lw), ("w", 6+lw)] + ([("w", 9+lw)] if 9 + lw < R else [])
    def issue_w(n):
        slot = n % R
        if n < 27:
            s, i = n // 9, n % 9
            t = i // 3
            e(f"s_add_u32 s{S_OFF}, s{S_WO[t]}, {128*s}")
            dma_unit(e, SRD_B, WP, S_OFF, 4*73728, RING + slot*UNIT, wf)
        else:
            p, u = P2[n - 27]
            k, s = PCH[p]
            e(f"s_add_u32 s{S_OFF}, s{S_GB[k]}, {73728*s + 128*u}")
            dma_unit(e, SRD_C, W2P, S_OFF, 4*9216, RING + slot*UNIT, wf)
        seq.append(("w", n))
    hb = {o.h0b: 0, o.h1b: 1, o.h2b: 2}
    hneed = {9: 0, 12: 1, (15 if o.order else 14): 2}
    for st in range(18):
        need = [("w", 3*st + lw)] + ([("x", 3*st + lw)] if st < 3 else []) + ([("h", hneed[st])] if st in hneed else [])
        last = max(seq.index(x) for x in need)
        n = 8 * (len(seq) - 1 - last)
        assert n <= 63
        e(f"s_waitcnt vmcnt({n})")
        if st == 0 and not o.astamp: lstamp(e, o, 3)
        if o.astamp and (o.astamp % 100) <= st < (o.astamp % 100) + 6: e(f"s_memtime s[{S_STAMP+16+2*(st-o.astamp%100)}:{S_STAMP+17+2*(st-o.astamp%100)}]")
        e("s_barrier")
        if st in hb:
            sg = hb[st]
            e(f"s_add_u32 s{S_OFF}, s{S_LH}, {sg*UNIT}")
            dma_unit(e, SRD_WS, [V_LIN], S_OFF, 4096, XH + (3*sg + lw)*UNIT, "" if o.x_hplain else "sc1"); seq.append(("h", sg))
        if o.early == 2 and st == 0:
            dma_unit(e, SRD_A, XP, S_XO[1], 4*9216, XH + (3 + lw)*UNIT); seq.append(("x", 3 + lw))
            issue_w(3 + lw)
        if o.early and st == 0:
            dma_unit(e, SRD_A, XP, S_XO[2], 4*9216, XH + (6 + lw)*UNIT); seq.append(("x", 6 + lw))
            issue_w(6 + lw)
        if o.early and st == 1 and 9 + lw < R: issue_w(9 + lw)
        for nn in range(R, 54):
            ib = issue_barrier(nn)
            if o.wdefer and ib in hb and nn // 3 > ib + 1 + (o.wdefer == 2): ib += 1
            if nn % 3 == lw and ib == st:
                if o.x_nodma: seq.append(('w', nn))
                else: issue_w(nn)
    if o.stamps and (lw == 0 or o.astamp):
        base = WS_ST + 192 if not o.astamp else WS_ST + 192*512 + (1 + lw)*64
        e(f"s_waitcnt lgkmcnt(0)\ns_lshl_b32 s3, s{S_CU}, 9\ns_add_u32 s3, s3, {base}\ns_mov_b64 exec, 1\nv_mov_b32 v1, 0")
        for k, r0 in enumerate((S_STAMP, S_STAMP+16, S_STAMP+20, S_STAMP+24)):
            for q in range(4): e(f"v_mov_b32 v{4+q}, s{r0+q}")
            e(f"buffer_store_dwordx4 v[4:7], v1, s[{SRD_WS}:{SRD_WS+3}], s3 offen offset:{k*16}\ns_nop 1")
        e("s_mov_b64 exec, -1")
    e("s_branch L_gather")

def _poll(e, o, name, vaddr, imm, mask, vtag, vtmp, sleep=None, fl="sc1"):
    sleep = o.sleep if sleep is None else sleep
    e(f"""
    s_mov_b64 exec, {mask}
    s_mov_b32 s{S_CNT}, {SPIN_MAX}
    L_poll_{name}:
    buffer_load_dwordx2 v[{vtmp}:{vtmp+1}], v{vaddr}, s[{SRD_WS}:{SRD_WS+3}], 0 offen offset:{imm} {fl}
    s_waitcnt vmcnt(0)
    v_cmp_ne_u64 vcc, v[{vtmp}:{vtmp+1}], v[{vtag}:{vtag+1}]
    s_sub_u32 s{S_CNT}, s{S_CNT}, 1
    s_cmp_eq_u32 s{S_CNT}, 0
    s_cbranch_scc1 L_polldone_{name}
    s_nop 1
    s_cbranch_vccz L_polldone_{name}
    """)
    if sleep: e(f"s_sleep {sleep}")
    e(f"""
    s_branch L_poll_{name}
    L_polldone_{name}:
    s_mov_b64 exec, -1
    """)

def control(e, o):
    V_LIN, V_POLL, V_TAG, V_TMP, V_ID = 8, 9, 10, 12, 14
    S_OFF, S_H1, S_H2, S_XCC, S_H0 = 60, 48, 49, 50, 51
    e("L_control:")
    if o.cprio: e(f"s_setprio {o.cprio}")
    common_ids(e)
    e("s_waitcnt lgkmcnt(0)")
    load_epoch(e)
    def tlb_warm():
        e(f"""
        v_min_u32 v26, 39, v0
        v_lshlrev_b32 v26, 18, v26
        buffer_load_dword v29, v26, s[{SRD_WS}:{SRD_WS+3}], 0 offen offset:2048 sc1
        v_min_u32 v27, 8, v0
        v_lshlrev_b32 v27, 16, v27
        buffer_load_dword v28, v27, s[{SRD_OUT}:{SRD_OUT+3}], 0 offen sc1
        """)
    if o.tlbw and not o.tlbb: tlb_warm()
    e(f"""
    s_getreg_b32 s{S_XCC}, hwreg(HW_REG_XCC_ID, 0, 4)
    v_lshlrev_b32 v{V_LIN}, 4, v0
    s_sub_u32 s{S_T0}, s{S_CU}, s{S_G}
    s_add_u32 s{S_H1}, s{S_T0}, s{S_G1}
    s_add_u32 s{S_H2}, s{S_T0}, s{S_G2}
    s_lshl_b32 s{S_T0}, s{S_H1}, 7
    s_lshl_b32 s{S_T1}, s{S_H2}, 7
    v_mov_b32 v1, s{S_T0}
    v_mov_b32 v2, s{S_T1}
    s_lshl_b32 s{S_OFF}, s{S_CU}, 7
    v_mov_b32 v7, s{S_OFF}
    v_lshrrev_b32 v3, 2, v0
    v_cmp_eq_u32 vcc, 1, v3
    v_and_b32 v6, 3, v0
    v_lshlrev_b32 v6, 3, v6
    v_cndmask_b32 v4, v7, v1, vcc
    v_cmp_eq_u32 vcc, 2, v3
    s_mul_i32 s{S_H1}, s{S_H1}, 24576
    s_mul_i32 s{S_H2}, s{S_H2}, 24576
    v_cndmask_b32 v4, v4, v2, vcc
    v_add_u32 v4, {WS_HF}, v4
    v_add_u32 v{V_POLL}, v4, v6
    v_cmp_eq_u32 vcc, 0, v0
    s_mul_i32 s{S_H0}, s{S_CU}, 24576
    s_add_u32 s{S_H0}, s{S_H0}, {WS_H}
    v_cndmask_b32 v4, v2, v1, vcc
    v_add_u32 v{V_ID}, {WS_ID}, v4
    s_add_u32 s{S_H1}, s{S_H1}, {WS_H}
    s_add_u32 s{S_H2}, s{S_H2}, {WS_H}
    """)
    finish_tag(e)
    e(f"""
    s_add_u32 s{S_T0}, s{S_XCC}, 16
    s_add_u32 s{S_T0}, s{S_TAG}, s{S_T0}
    s_addc_u32 s{S_T1}, s{S_TAG+1}, 0
    v_mov_b32 v4, s{S_T0}
    v_mov_b32 v5, s{S_T1}
    s_lshl_b32 s3, s{S_CU}, 7
    s_add_u32 s3, s3, {WS_ID}
    v_mov_b32 v6, s3
    v_mov_b32 v{V_TAG}, s{S_TAG}
    v_mov_b32 v{V_TAG+1}, s{S_TAG+1}
    s_mov_b64 exec, 1
    buffer_store_dwordx2 v[4:5], v6, s[{SRD_WS}:{SRD_WS+3}], 0 offen sc1
    s_mov_b64 exec, -1
    """)
    def hdma(s):
        for k, sh in enumerate((S_H0, S_H1, S_H2)):
            p = 3 * s + k
            e(f"s_add_u32 s{S_OFF}, s{sh}, {s*UNIT}")
            dma_unit(e, SRD_WS, [V_LIN], S_OFF, 4096, XH + p * UNIT, "sc1")
    def stamp(k):
        if o.stamps: e(f"s_memtime s[{S_STAMP+4+2*k}:{S_STAMP+5+2*k}]\ns_waitcnt lgkmcnt(0)")
    bl = [0,1,2,3,6,9,10,11,12,13,14,15,16,17] if o.stampset == 0 else [0,2,3,4,5,6,7,8,9,10,11,12,14,17]
    slots = {b: i for i, b in enumerate(bl)}
    for st in range(18):
        if st == o.fastb - 2:
            e(f"s_mov_b64 exec, 3\nbuffer_load_dwordx2 v[{V_TMP}:{V_TMP+1}], v{V_ID}, s[{SRD_WS}:{SRD_WS+3}], 0 offen sc1\ns_mov_b64 exec, -1")
        if o.touch and st == o.fastb - 2:
            e(f"""
            v_lshlrev_b32 v20, 7, v0
            s_mul_i32 s{S_OFF}, s{S_CU}, {48*FS[0]}
            s_add_u32 s{S_OFF}, s{S_OFF}, {WS_PF if FS[0] == 8 else WS_PFX}
            s_mov_b64 exec, {"7" if FS[0] == 8 else "-1"}
            buffer_load_dword v24, v20, s[{SRD_WS}:{SRD_WS+3}], s{S_OFF} offen sc1
            s_lshl_b32 s{S_OFF}, s{S_CU}, 7
            s_add_u32 s{S_OFF}, s{S_OFF}, {WS_HF}
            s_mov_b64 exec, 1
            buffer_load_dword v25, v20, s[{SRD_WS}:{SRD_WS+3}], s{S_OFF} offen
            s_mov_b64 exec, -1
            """)
        for sg, tb in enumerate((o.t0b, o.t1b, o.t2b)):
            if o.ctouch and st == tb:
                e(f"""
                s_mul_i32 s{S_OFF}, s{S_CU}, 24576
                s_add_u32 s{S_OFF}, s{S_OFF}, {WS_H + sg*UNIT}
                buffer_load_dword v{21+sg}, v20, s[{SRD_WS}:{SRD_WS+3}], s{S_OFF} offen
                """)
        if st == o.fastb: e("s_waitcnt lgkmcnt(0)")
        if st == o.fastb - 1:
            e(f"""
            s_mov_b64 exec, 3
            s_mov_b32 s{S_CNT}, {SPIN_MAX}
            s_waitcnt vmcnt({(2 + (o.ctouch and o.fastb - 2 <= o.t0b <= o.fastb - 1)) if o.touch else 0})
            s_branch L_check_id
            L_poll_id:
            buffer_load_dwordx2 v[{V_TMP}:{V_TMP+1}], v{V_ID}, s[{SRD_WS}:{SRD_WS+3}], 0 offen sc1
            s_waitcnt vmcnt(0)
            L_check_id:
            v_subrev_co_u32 v4, vcc, s{S_TAG}, v{V_TMP}
            v_mov_b32 v6, s{S_TAG+1}
            s_nop 0
            v_subb_co_u32 v5, vcc, v{V_TMP+1}, v6, vcc
            v_subrev_u32 v4, 16, v4
            v_lshrrev_b32 v6, 4, v4
            v_or_b32 v6, v6, v5
            v_cmp_ne_u32 vcc, 0, v6
            s_sub_u32 s{S_CNT}, s{S_CNT}, 1
            s_cmp_eq_u32 s{S_CNT}, 0
            s_cbranch_scc1 L_id_done
            s_nop 1
            s_cbranch_vccz L_id_done
            s_sleep 1
            s_branch L_poll_id
            L_id_done:
            v_cmp_ne_u32 vcc, s{S_XCC}, v4
            s_mov_b32 s{S_FAST}, {0 if o.force_slow else 1}
            s_nop 1
            s_cmp_eq_u64 vcc, 0
            s_cselect_b32 s{S_FAST}, s{S_FAST}, 0
            s_mov_b64 exec, 1
            v_mov_b32 v4, s{S_FAST}
            v_mov_b32 v5, {FASTW}
            ds_write_b32 v5, v4
            s_mov_b64 exec, -1
            """)
        if o.sent and st == o.h0b - 1:
            e(f"""
            s_mul_i32 s3, s{S_MT}, 3
            s_add_u32 s3, s3, s{S_G}
            s_lshl_b32 s3, s3, 7
            s_add_u32 s3, s3, {WS_CF}
            v_mul_u32_u24 v37, {24*128}, v0
            v_add_u32 v37, s3, v37
            """)
        if st == o.h0b: _poll(e, o, "h0", V_POLL, 0, "0xfff", V_TAG, V_TMP)
        if o.sent and st == o.h0b:
            e(f"s_mov_b64 exec, 0xff\nbuffer_load_dwordx2 v[38:39], v37, s[{SRD_WS}:{SRD_WS+3}], 0 offen sc1\ns_mov_b64 exec, -1")
        if st == o.h1b: _poll(e, o, "h1", V_POLL, 32, "0xfff", V_TAG, V_TMP)
        if o.sent and st == o.h1b:
            e(f"""
            s_mov_b64 exec, 0xff
            v_cmp_ne_u64 vcc, v[38:39], v[{V_TAG}:{V_TAG+1}]
            s_nop 4
            s_mov_b64 exec, -1
            s_cbranch_vccz L_cf_ok
            """)
            _poll(e, o, "cf", 37, 0, "0xff", V_TAG, V_TMP)
            e("L_cf_ok:")
        if st == o.h2b: _poll(e, o, "h2", V_POLL, 64, "0xfff", V_TAG, V_TMP)
        e("s_barrier")
        if o.tlbw and o.tlbb and st == o.tlbb: tlb_warm()
        if o.wbl2 and st == o.wbl2:
            e(f"""
            s_or_b32 s3, s{S_MT}, s{S_G}
            s_cmp_lg_u32 s3, 0
            s_cbranch_scc1 L_nowb
            buffer_wbl2 sc1
            L_nowb:
            """)
        if st in slots: stamp(slots[st])
    if o.stamps:
        e(f"s_waitcnt lgkmcnt(0)")
        e(f"s_lshl_b32 s3, s{S_CU}, 9\ns_add_u32 s3, s3, {WS_ST}")
        e("s_mov_b64 exec, 1\nv_mov_b32 v1, 0")
        for k in range(0, 32, 4):
            for q in range(4): e(f"v_mov_b32 v{4+q}, s{S_STAMP+k+q}")
            e(f"buffer_store_dwordx4 v[4:7], v1, s[{SRD_WS}:{SRD_WS+3}], s3 offen offset:{k*4}\ns_nop 1")
        e(f"v_mov_b32 v4, s{S_FAST}\nbuffer_store_dword v4, v1, s[{SRD_WS}:{SRD_WS+3}], s3 offen offset:128")
        e("s_mov_b64 exec, -1")
    e("s_branch L_gather")

V_T1, V_T1B, V_T2, V_T2B = 2, 3, 4, 5
V_X = 6; V_X8 = 10
V_PF, V_PV = 6, 7
V_H, V_H8, V_FW, V_HG = 14, 15, 16, 17
V_HF = 1
V_TAG = 18
V_EP = 20
V_P = 24
V_WF = 32
V_ACC1 = 64
V_XF = 112
S_MH, S_NH, S_HST, S_NL2E = 48, 49, 50, 51
S_PO = 52
S_PFB = 54

class Stream:
    def __init__(self, e): self.e = e; self.nlds = 0; self.done = 0; self.count = 0; self.fast_ok = False; self.flags = set(); self.hold_silu = 0
    def emit(self, s):
        for l in s.split("\n"):
            l = l.strip()
            if l:
                self.e(l)
                if not l.endswith(":"): self.count += 1
    def lds(self, s):
        self.emit(s); self.nlds += 1; return self.nlds
    def wait_lds(self, opid):
        if opid <= self.done: return
        n = min(self.nlds - opid, 15)
        self.emit(f"s_waitcnt lgkmcnt({n})"); self.done = self.nlds - n

_uid = [0]
OUTLINE = []
NOST = [False, False, 0, False]
def dual(txt, force_sc1=False):
    if force_sc1: return txt + " sc1"
    _uid[0] += 1; k = _uid[0]
    OUTLINE.append(f"L_ds{k}:\n{txt} sc1\ns_branch L_dd{k}")
    nt = " nt" if (NOST[3] and "dwordx4" in txt) else ""
    return (f"s_cmp_eq_u32 s{S_FAST}, 0\ns_cbranch_scc1 L_ds{k}\n{txt}{nt}\nL_dd{k}:")

def silu_ops(acc, s, noep=False):
    ops = []
    for q in range(4):
        v = [acc + 4 * q + r for r in range(4)]
        t = [V_EP + r for r in range(4)]
        if not noep:
            for r in range(4): ops.append(("silu", f"v_mul_f32 v{t[r]}, s{S_NL2E}, v{v[r]}"))
            for r in range(4): ops.append(("v", f"v_exp_f32 v{t[r]}, v{t[r]}"))
            for r in range(4): ops.append(("v", f"v_add_f32 v{t[r]}, 1.0, v{t[r]}"))
            for r in range(4): ops.append(("v", f"v_rcp_f32 v{t[r]}, v{t[r]}"))
            for r in range(4): ops.append(("silu", f"v_mul_f32 v{v[r]}, v{v[r]}, v{t[r]}"))
        ops.append(("silu", f"v_cvt_pk_bf16_f32 v{V_P+2*q}, v{v[0]}, v{v[1]}"))
        ops.append(("silu", f"v_cvt_pk_bf16_f32 v{V_P+2*q+1}, v{v[2]}, v{v[3]}"))
    sts = [("st", "s_nop 0" if NOST[0] else dual(f"buffer_store_dwordx4 v[{V_P+4*tt}:{V_P+4*tt+3}], v{V_HG}, s[{SRD_WS}:{SRD_WS+3}], s{S_HST} offen offset:{tt*1024}", s < NOST[2])) for tt in range(2)]
    if s < NOST[2] or s == 2:
        k = [i for i, x in enumerate(ops) if x[1].startswith(f"v_cvt_pk_bf16_f32 v{V_P+3},")]
        if k: ops.insert(k[0] + 1, sts[0]); ops.append(sts[1])
        else: ops += sts
    else: ops += sts
    if s < 2: ops.append(("v", f"s_add_u32 s{S_HST}, s{S_HST}, {UNIT}"))
    return ops

def hflag_ops(s, n):
    return [("v", f"s_waitcnt vmcnt({n})\ns_mov_b64 exec, 1"),
            ("st", dual(f"buffer_store_dwordx2 v[{V_TAG}:{V_TAG+1}], v{V_HF}, s[{SRD_WS}:{SRD_WS+3}], 0 offen offset:{s*32}")),
            ("flag%d" % s, "s_mov_b64 exec, -1")]

def pflag(e, u, n):
    e(f"""
    s_mov_b32 s60, {u*16*FS[0]}
    s_waitcnt vmcnt({n})
    s_mov_b64 exec, 0xf
    buffer_store_dwordx2 v[{V_TAG}:{V_TAG+1}], v{V_PF}, s[{SRD_WS}:{SRD_WS+3}], s60 offen sc1
    s_mov_b64 exec, -1
    """)

def compute(e, o):
    e("L_compute:")
    if o.prio: e(f"s_setprio {o.prio}")
    common_ids(e)
    e(f"""
    s_lshr_b32 s{S_MH}, s{S_WAVE}, 1
    s_and_b32 s{S_NH}, s{S_WAVE}, 1
    s_mov_b32 s{S_NL2E}, 0xbfb8aa3b
    v_lshrrev_b32 v20, 5, v0
    v_lshrrev_b32 v21, 4, v0
    v_and_b32 v21, 1, v21
    v_and_b32 v22, 15, v0
    v_lshrrev_b32 v23, 2, v22
    v_and_b32 v22, 3, v22
    v_lshrrev_b32 v24, 1, v22
    v_lshl_add_u32 v24, v21, 1, v24
    s_lshl_b32 s{S_T0}, s{S_NH}, 2
    v_add_u32 v24, s{S_T0}, v24
    v_and_b32 v25, 2, v23
    v_lshlrev_b32 v25, 1, v25
    v_xor_b32 v24, v24, v25
    v_lshlrev_b32 v24, 4, v24
    v_and_b32 v22, 1, v22
    v_lshl_add_u32 v24, v22, 3, v24
    v_lshl_add_u32 v24, v23, 7, v24
    v_add_u32 v24, {RING}, v24
    v_lshl_add_u32 v{V_T1}, v20, 10, v24
    v_lshl_add_u32 v{V_T2}, v20, 9, v24
    v_add_u32 v{V_T1B}, {8*UNIT}, v{V_T1}
    v_add_u32 v{V_T2B}, {8*UNIT}, v{V_T2}
    v_and_b32 v25, 31, v0
    v_lshrrev_b32 v26, 1, v25
    v_and_b32 v26, 7, v26
    v_xor_b32 v26, v20, v26
    v_lshlrev_b32 v26, 4, v26
    s_lshl_b32 s{S_T1}, s{S_MH}, 12
    v_lshl_add_u32 v26, v25, 7, v26
    v_add_u32 v{V_X}, s{S_T1}, v26
    v_xor_b32 v{V_X+1}, 32, v{V_X}
    v_xor_b32 v{V_X+2}, 64, v{V_X}
    v_xor_b32 v{V_X+3}, 96, v{V_X}
    """)
    for ks in range(4): e(f"v_add_u32 v{V_X8+ks}, {8*UNIT}, v{V_X+ks}")
    e(f"""
    v_lshlrev_b32 v27, 4, v0
    v_add_u32 v{V_H}, s{S_T1}, v27
    v_add_u32 v{V_H8}, {8*UNIT}, v{V_H}
    s_lshl_b32 s{S_T0}, s{S_NH}, 11
    v_add_u32 v{V_HG}, s{S_T0}, v{V_H}
    s_mul_i32 s{S_HST}, s{S_CU}, 24576
    s_add_u32 s{S_HST}, s{S_HST}, {WS_H}
    s_lshl_b32 s{S_T0}, s{S_CU}, 7
    s_lshl_b32 s{S_T1}, s{S_WAVE}, 3
    s_add_u32 s{S_T0}, s{S_T0}, s{S_T1}
    s_add_u32 s{S_T0}, s{S_T0}, {WS_HF}
    v_mov_b32 v{V_HF}, s{S_T0}
    s_mul_i32 s{S_T0}, s{S_MT}, 3
    s_add_u32 s{S_T0}, s{S_T0}, s{S_G}
    s_lshl_b32 s{S_T1}, s{S_MH}, 2
    s_mul_i32 s{S_T1}, s{S_T1}, 24
    s_add_u32 s{S_T0}, s{S_T0}, s{S_T1}
    s_mul_i32 s{S_PO}, s{S_T0}, 24576
    s_mul_i32 s{S_T1}, s{S_J}, 3072
    s_add_u32 s{S_PO}, s{S_PO}, s{S_T1}
    s_lshl_b32 s{S_T1}, s{S_NH}, 9
    s_add_u32 s{S_PO}, s{S_PO}, s{S_T1}
    s_add_u32 s{S_PO}, s{S_PO}, {WS_P}
    s_add_u32 s{S_PO+1}, s{S_PO}, {2*24*24576}
    s_mul_i32 s{S_T0}, s{S_T0}, {48*FS[0]}
    s_lshl_b32 s{S_T1}, s{S_J}, 1
    s_add_u32 s{S_T1}, s{S_T1}, s{S_NH}
    s_mul_i32 s{S_T1}, s{S_T1}, {FS[0]}
    s_add_u32 s{S_T0}, s{S_T0}, s{S_T1}
    s_add_u32 s{S_PFB}, s{S_T0}, {WS_PF if FS[0] == 8 else WS_PFX}
    v_mov_b32 v{V_FW}, {FASTW}
    s_waitcnt lgkmcnt(0)
    """)
    load_epoch(e)
    finish_tag(e)
    e(f"v_mov_b32 v{V_TAG}, s{S_TAG}\nv_mov_b32 v{V_TAG+1}, s{S_TAG+1}")
    if not o.latew: e("s_waitcnt vmcnt(0)")

    tasks = []
    def ringbase(n, vA, vB):
        slot = n % R
        return (vA, slot * UNIT) if slot < 8 else (vB, (slot - 8) * UNIT)
    for n in range(27):
        st = n // 3; s = n // 9; i = n % 9
        base, so = ringbase(n, V_T1, V_T1B)
        for ks in range(4):
            t = dict(step=st, first=(n % 3 == 0 and ks == 0), idx=len(tasks))
            t["wr"] = [(base, so + (16 * ks + 4 * b) * 128) for b in range(2)]
            xf = V_XF + (i * 4 + ks) * 4
            t["pre"] = []
            if s == 0:
                xb = (V_X8 + ks) if i == 8 else (V_X + ks)
                t["pre"] = [f"ds_read_b128 v[{xf}:{xf+3}], v{xb} offset:{0 if i == 8 else i*UNIT}"]
            acc = V_ACC1 + 16 * (s & 1)
            t["mf"] = lambda wf, acc=acc, xf=xf, z=(i == 0 and ks == 0): f"v_mfma_f32_32x32x16_bf16 v[{acc}:{acc+15}], v[{wf}:{wf+3}], v[{xf}:{xf+3}], " + ("0" if z else f"v[{acc}:{acc+15}]")
            tasks.append(t)
    seen_p, seen_u, last_u = set(), set(), {}
    ACCU = {0: V_ACC1 + 16, 1: V_ACC1 + 32, 2: V_ACC1}
    for q, (p, u) in enumerate(P2):
        n = 27 + q; st = n // 3
        base, so = ringbase(n, V_T2, V_T2B)
        for ks in range(4):
            t = dict(step=st, first=(n % 3 == 0 and ks == 0), idx=len(tasks))
            t["wr"] = [(base, so + (16 * ks + 8 * b) * 128) for b in range(2)]
            hf = V_XF + (p * 4 + ks) * 4
            t["pre"] = []
            if p not in seen_p:
                hb = V_H8 if p == 8 else V_H
                t["pre"] = [f"ds_read_b128 v[{hf}:{hf+3}], v{hb} offset:{(0 if p == 8 else p*UNIT) + ks*1024}"]
            acc = ACCU[u]
            t["mf"] = lambda wf, acc=acc, hf=hf, z=(u not in seen_u and ks == 0): f"v_mfma_f32_32x32x16_bf16 v[{acc}:{acc+15}], v[{hf}:{hf+3}], v[{wf}:{wf+3}], " + ("0" if z else f"v[{acc}:{acc+15}]")
            tasks.append(t); last_u[u] = t["idx"]
        seen_p.add(p); seen_u.add(u)
    global PUBACC
    n = len(tasks)
    S = Stream(e)
    NP = n // 2
    side = []; side_start = [0]; hold = [0]; cur = [0]
    last_of_step = {}
    for t in tasks: last_of_step[t["step"]] = t["idx"]
    def pubops(u):
        ops = []
        a = ACCU[u]
        for q in range(8): ops.append(("v", f"v_cvt_pk_bf16_f32 v{V_P+q}, v{a+2*q}, v{a+2*q+1}"))
        ops.append(("v", "s_nop 0"))
        for q in range(2):
            d = V_P + 4 * q
            ops.append(("v", f"v_permlane32_swap_b32 v{d}, v{d+2}"))
            ops.append(("v", f"v_permlane32_swap_b32 v{d+1}, v{d+3}"))
        if not o.x_nopub:
            for q in range(2):
                d = V_P + 4 * q
                ops.append(("st", f"buffer_store_dwordx4 v[{d}:{d+3}], v{V_PV}, s[{SRD_WS}:{SRD_WS+3}], s{S_PO+q} offen offset:{u*1024} sc1"))
            ops.append(("v", "s_nop 0"))
        return ops
    def cost(kind, txt):
        if kind == "lds": return 24
        if kind == "st": return 16
        if txt.startswith(("v_exp", "v_rcp")): return 8
        if txt.startswith("s_") and not txt.startswith(("s_waitcnt", "s_nop")): return 2
        return 4
    def pop_side(budget):
        used = 0
        while side and S.count >= side_start[0] and cur[0] >= hold[0]:
            kind, txt = side[0]
            if kind == "gap": side.pop(0); hold[0] = cur[0] + txt; continue
            if kind == "st" and "L_ds" in txt and not S.fast_ok: break
            if kind == "silu" and S.count < S.hold_silu: break
            c = cost(kind, txt)
            if used and used + c > budget: break
            side.pop(0)
            if kind == "lds": S.lds(txt)
            else: S.emit(txt)
            if kind.startswith("flag"): S.flags.add(int(kind[4:]))
            used += c
    NR = o.LP + 1
    def tr_reads(q):
        for h in range(2):
            t = tasks[2*q + h]
            wf = V_WF + 8 * (q % NR) + 4 * h
            t["wf"] = wf
            for b, (base, off) in enumerate(t["wr"]):
                t["last"] = S.lds(f"ds_read_b64_tr_b16 v[{wf+2*b}:{wf+2*b+1}], v{base} offset:{off}")
    def pre_reads(q):
        k = 0
        for h in range(2):
            t = tasks[2*q + h]
            for x in t["pre"]:
                t["last"] = S.lds(x); k += 1
        return k
    def barrier(step):
        for fs, fb in ((0, o.h0b), (1, o.h1b), (2, o.h2b)):
            if step == fb: assert fs in S.flags, f"flag {fs} must be sent before B_{fb} (the control wave waits for it there)"
        if o.astamp and (o.astamp % 100) <= step < (o.astamp % 100) + 6: S.emit(f"s_memtime s[{S_STAMP+16+2*(step-o.astamp%100)}:{S_STAMP+17+2*(step-o.astamp%100)}]")
        S.emit("s_waitcnt lgkmcnt(0)"); S.done = S.nlds
        S.emit("s_barrier")
    late_addr = [("v", f"v_and_b32 v{V_PV}, 31, v0"), ("v", f"v_lshrrev_b32 v{V_PF}, 5, v0"), ("v", f"v_lshlrev_b32 v{V_PV}, 4, v{V_PV}"),
                 ("v", f"v_mul_u32_u24 v{V_PF}, {24*24576}, v{V_PF}"), ("v", f"v_add_u32 v{V_PV}, v{V_PV}, v{V_PF}"),
                 ("v", f"v_mul_u32_u24 v{V_PF}, {24*48*FS[0]}, v0"), ("v", f"v_add_u32 v{V_PF}, s{S_PFB}, v{V_PF}")]
    budget = o.epb
    pubq = []
    fast_known = False
    barrier(0)
    for q0 in range(o.LP):
        tr_reads(q0); pre_reads(q0)
    for q in range(NP):
        cur[0] = q
        A, B = tasks[2*q], tasks[2*q+1]
        nq = q + o.LP
        deferred = False
        f9 = 6 * 9
        if o.ep2first and q == f9:
            S.emit("s_nop 7\ns_nop 3")
            side_start[0] = 0; S.hold_silu = 0
            pop_side(10**6)
            barrier(9)
            for q0 in range(f9, f9 + o.LP): tr_reads(q0); pre_reads(q0)
        if nq < NP and not (o.ep2first and f9 <= nq < f9 + o.LP):
            if tasks[2*nq]["first"]:
                barrier(tasks[2*nq]["step"]); deferred = True
            else:
                tr_reads(nq)
        skip_pre = o.ep2first and f9 <= nq < f9 + o.LP
        if A["first"] and A["step"] == 11:
            assert not any(x[0] == "silu" for x in side), "acc of sub-tile 2 still in use"
        S.wait_lds(max(A["last"], B["last"]))
        S.emit(A["mf"](A["wf"]))
        if deferred:
            if tasks[2*nq]["step"] == o.fastb: S.lds(f"ds_read_b32 v{V_FW}, v{V_FW}")
            tr_reads(nq); pre_reads(nq)
        else:
            k = pre_reads(nq) if (nq < NP and not skip_pre) else 0
            if not (o.ep2first and q >= f9 - 0 and side and side[0][0] == 'silu' and False): pop_side(budget if k == 0 else max(budget - 24, 4))
            if o.wgap2 and q + 1 < NP and k == 0 and "last" in tasks[2*q+2] and "last" in tasks[2*q+3]:
                S.wait_lds(max(tasks[2*q+2]["last"], tasks[2*q+3]["last"]))
        S.emit(B["mf"](B["wf"]))
        if A["first"] and A["step"] == o.fastb:
            S.emit(f"v_readfirstlane_b32 s{S_FAST}, v{V_FW}"); S.fast_ok = True
        im = B["idx"]
        if im == last_of_step.get(2):
            if o.latew: side.append(("v", "s_waitcnt vmcnt(0)"))
            side += silu_ops(V_ACC1, 0, o.x_noep) + [("gap", o.gap0)] + hflag_ops(0, 0); side_start[0] = S.count + 12; budget = o.epb0
        if im == last_of_step.get(5):
            assert not any(x[0] == "silu" or x[0] == "st" and "x4" in x[1] for x in side), len(side)
            side += silu_ops(V_ACC1 + 16, 1, o.x_noep); budget = o.epb
            S.hold_silu = S.count + 12
        if im == last_of_step.get(8):
            assert not side, len(side)
            ops2 = silu_ops(V_ACC1, 2, o.x_noep)
            k1 = min(o.f1pos, len(ops2) - 2)
            ops2 = ops2[:k1] + hflag_ops(1, 0) + ops2[k1:]
            side += ops2 + late_addr + [("gap", o.gap2)] + hflag_ops(2, 0); side_start[0] = S.count + 12; budget = o.epb2
        for u, at in ((0, o.pub0), (1, o.pub1)):
            if at and q >= NP - at and im >= last_u[u] + 4 and u not in pubq and not side:
                pubq.append(u); side += pubops(u); side_start[0] = S.count; budget = 24
    assert not side
    if o.x_pad:
        e(f"s_mov_b32 s60, {o.x_pad}\nL_xpad:\nv_mov_b32 v20, v21\nv_mov_b32 v22, v21\nv_mov_b32 v20, v21\nv_mov_b32 v22, v21\ns_sub_u32 s60, s60, 1\ns_cmp_lg_u32 s60, 0\ns_cbranch_scc1 L_xpad")
    e("s_nop 7")
    if o.stamps: e(f"s_memtime s[{S_STAMP+4}:{S_STAMP+5}]")
    e("s_nop 3")
    rest = [u for u in (0, 1, 2) if u not in pubq]
    order = pubq + rest
    for u in rest:
        for k, x in pubops(u): e(x)
    for i, u in enumerate(order):
        younger = 2 * (len(order) - 1 - i) + i
        if o.x_nopub: younger = i
        if o.stamps and i == 2: e(f"s_memtime s[{S_STAMP+14}:{S_STAMP+15}]")
        if o.sent and u == 2: continue
        pflag(e, u, younger)
    if o.stamps:
        e(f"s_memtime s[{S_STAMP+6}:{S_STAMP+7}]")
        e(f"s_cmp_lg_u32 s{S_WAVE}, 0\ns_cbranch_scc1 L_end\ns_waitcnt lgkmcnt(0)")
        e(f"s_lshl_b32 s3, s{S_CU}, 9\ns_add_u32 s3, s3, {WS_ST + 256}\ns_mov_b64 exec, 1\nv_mov_b32 v1, 0")
        for k in range(0, 16, 4):
            for q in range(4): e(f"v_mov_b32 v{4+q}, s{S_STAMP+k+q}")
            e(f"buffer_store_dwordx4 v[4:7], v1, s[{SRD_WS}:{SRD_WS+3}], s3 offen offset:{k*4}\ns_nop 1")
        if o.astamp:
            e(f"s_lshl_b32 s3, s{S_CU}, 9\ns_add_u32 s3, s3, {WS_ST + 192*512}")
            for k, r0 in enumerate((S_STAMP, S_STAMP+16, S_STAMP+20, S_STAMP+24)):
                for q in range(4): e(f"v_mov_b32 v{4+q}, s{r0+q}")
                e(f"buffer_store_dwordx4 v[4:7], v1, s[{SRD_WS}:{SRD_WS+3}], s3 offen offset:{k*16}\ns_nop 1")
        e("s_waitcnt vmcnt(0)")
    if o.gsplit:
        e(f"s_cmp_lt_u32 s{S_WAVE}, 3\ns_cbranch_scc1 L_gather")
    e("s_endpgm")

def gather(e, o):
    VT, VA, VL, VD, VS = 2, 4, 5, 8, 44
    S_U = 48
    e("L_gather:")
    e(f"""
    s_cmp_eq_u32 s{S_WAVE}, 7
    s_cbranch_scc1 L_end
    s_and_b32 s{S_U}, s{S_WAVE}, 3
    s_cmp_lt_u32 s{S_WAVE}, 4
    s_cselect_b32 s57, 1, 0
    s_mul_i32 s3, s{S_CU}, {48*FS[0]}
    s_min_u32 s50, s{S_U}, {1 if o.sent else 2}
    s_mul_i32 s50, s50, {16*FS[0]}
    s_add_u32 s3, s3, s50
    s_add_u32 s3, s3, {WS_PF if FS[0] == 8 else WS_PFX}
    v_mul_u32_u24 v{VA}, {FS[0]}, v0
    v_add_u32 v{VA}, s3, v{VA}
    v_lshlrev_b32 v{VL}, 4, v0
    v_mov_b32 v{VT}, s{S_TAG}
    v_mov_b32 v{VT+1}, s{S_TAG+1}
    s_mul_i32 s52, s{S_CU}, 24576
    s_lshl_b32 s53, s{S_U}, 10
    s_add_u32 s52, s52, s53
    s_add_u32 s52, s52, {WS_P}
    v_lshlrev_b32 v6, 1, v0
    s_lshl_b32 s50, s{S_MT}, 6
    s_lshl_b32 s51, s{S_J}, 3
    s_add_u32 s50, s50, s51
    s_mul_i32 s50, s50, 1152
    s_mul_i32 s51, s{S_G}, 384
    s_add_u32 s50, s50, s51
    s_lshl_b32 s51, s{S_U}, 7
    s_add_u32 s50, s50, s51
    s_add_u32 s53, s50, 4608
    s_mov_b32 s54, 0xffff0000
    """)
    if o.ppipe:
        e(f"""
        s_mov_b64 exec, 0xffff
        s_mov_b32 s{S_CNT}, {SPIN_MAX}
        buffer_load_dwordx2 v[40:41], v{VA}, s[{SRD_WS}:{SRD_WS+3}], 0 offen sc1
        L_pp:
        s_sleep {o.ppipe}
        buffer_load_dwordx2 v[42:43], v{VA}, s[{SRD_WS}:{SRD_WS+3}], 0 offen sc1
        s_waitcnt vmcnt(1)
        v_cmp_ne_u64 vcc, v[40:41], v[{VT}:{VT+1}]
        s_sub_u32 s{S_CNT}, s{S_CNT}, 1
        s_cmp_eq_u32 s{S_CNT}, 0
        s_cbranch_scc1 L_ppdone
        s_nop 1
        s_cbranch_vccz L_ppdone
        s_sleep {o.ppipe}
        buffer_load_dwordx2 v[40:41], v{VA}, s[{SRD_WS}:{SRD_WS+3}], 0 offen sc1
        s_waitcnt vmcnt(1)
        v_cmp_ne_u64 vcc, v[42:43], v[{VT}:{VT+1}]
        s_nop 4
        s_cbranch_vccnz L_pp
        L_ppdone:
        s_mov_b64 exec, -1
        """)
    else:
        _poll(e, o, "p", VA, 0, "0xffff", VT, 40, o.psleep, ["sc1", "sc0 sc1", "nt sc1", "sc0 nt sc1"][o.pfl])
    if o.stamps: e(f"s_memtime s[{S_STAMP+8}:{S_STAMP+9}]")
    if o.sent:
        e(f"s_cmp_eq_u32 s{S_U}, 2\ns_cbranch_scc1 L_gsent")
    if o.gsplit:
        e(f"s_lshl_b32 s56, s57, 3\ns_add_u32 s52, s52, s56\ns_mul_i32 s56, s57, 4608\ns_add_u32 s50, s50, s56")
    for p in range(8):
        if o.gsplit: e(f"buffer_load_dwordx2 v[{VD+4*p}:{VD+4*p+1}], v{VL}, s[{SRD_WS}:{SRD_WS+3}], s52 offen sc1")
        else: e(f"buffer_load_dwordx4 v[{VD+4*p}:{VD+4*p+3}], v{VL}, s[{SRD_WS}:{SRD_WS+3}], s52 offen sc1")
        if p < 7: e(f"s_add_u32 s52, s52, 3072")
    if o.sent:
        e(f"""
        s_branch L_gloaded
        L_gsent:
        s_mov_b32 s{S_CNT}, {SPIN_MAX}
        s_mov_b32 s55, {SENT:#x}
        L_gretry:
        s_mov_b32 s56, s52
        """)
        for p in range(8):
            e(f"buffer_load_dwordx4 v[{VD+4*p}:{VD+4*p+3}], v{VL}, s[{SRD_WS}:{SRD_WS+3}], s56 offen sc1")
            if p < 7: e(f"s_add_u32 s56, s56, 3072")
        e("s_mov_b64 s[58:59], 0")
        for p in range(8):
            e(f"s_waitcnt vmcnt({7-p})")
            e(f"v_cmp_eq_u32 vcc, s55, v{VD+4*p}\nv_cmp_eq_u32 s[60:61], s55, v{VD+4*p+3}")
            e(f"s_nop 0\ns_or_b64 s[58:59], s[58:59], vcc\ns_or_b64 s[58:59], s[58:59], s[60:61]")
        e(f"""
        s_sub_u32 s{S_CNT}, s{S_CNT}, 1
        s_cmp_eq_u32 s{S_CNT}, 0
        s_cbranch_scc1 L_gloaded
        s_cmp_eq_u64 s[58:59], 0
        s_cbranch_scc1 L_gloaded
        s_sleep {o.gsleep}
        s_branch L_gretry
        L_gloaded:
        """)
    e(f"""
    s_or_b32 s51, s{S_J}, s{S_G}
    s_or_b32 s51, s51, s{S_U}
    s_or_b32 s51, s51, s57
    s_cmp_lg_u32 s51, 0
    s_cbranch_scc1 L_noepoch
    s_lshl_b32 s51, s{S_MT}, 7
    v_mov_b32 v{VA}, s51
    s_mov_b64 exec, 1
    buffer_store_dwordx2 v[{VT}:{VT+1}], v{VA}, s[{SRD_WS}:{SRD_WS+3}], 0 offen sc1
    s_mov_b64 exec, -1
    s_waitcnt vmcnt(0)
    L_noepoch:
    """)
    ND = 2 if o.gsplit else 4
    if o.gdot:
        e("s_mov_b32 s55, 0x05040100\ns_mov_b32 s56, 0x07060302\ns_mov_b32 s59, 0x3f803f80")
        for p in range(0, 8, 2):
            e(f"s_waitcnt vmcnt({6-p})")
            for d in range(ND):
                a, b = VD + 4 * p + d, VD + 4 * (p + 1) + d
                e(f"v_perm_b32 v{VS+8}, v{b}, v{a}, s55\nv_perm_b32 v{VS+9}, v{b}, v{a}, s56")
                c0 = "0" if p == 0 else f"v{VS+2*d}"; c1 = "0" if p == 0 else f"v{VS+2*d+1}"
                e(f"v_dot2_f32_bf16 v{VS+2*d}, v{VS+8}, s59, {c0}\nv_dot2_f32_bf16 v{VS+2*d+1}, v{VS+9}, s59, {c1}")
    else:
      for p in range(8):
        e(f"s_waitcnt vmcnt({7-p})")
        for d in range(ND):
            src = VD + 4 * p + d
            if p == 0:
                e(f"v_lshlrev_b32 v{VS+2*d}, 16, v{src}\nv_and_b32 v{VS+2*d+1}, s54, v{src}")
            else:
                e(f"v_lshlrev_b32 v{VS+8}, 16, v{src}\nv_and_b32 v{VS+9}, s54, v{src}")
                e(f"v_add_f32 v{VS+2*d}, v{VS+2*d}, v{VS+8}\nv_add_f32 v{VS+2*d+1}, v{VS+2*d+1}, v{VS+9}")
    for d in range(ND):
        e(f"v_cvt_pk_bf16_f32 v{VD+d}, v{VS+2*d}, v{VS+2*d+1}")
    if o.outx4:
        e(f"""
        s_lshl_b32 s51, s{S_U}, 10
        v_add_u32 v7, s51, v6
        v_lshl_add_u32 v{VA}, v0, 4, s51
        v_lshrrev_b32 v{VS+8}, 3, v0
        v_mul_u32_u24 v{VS+8}, 1152, v{VS+8}
        v_and_b32 v{VS+9}, 7, v0
        v_lshl_add_u32 v{VS+8}, v{VS+9}, 4, v{VS+8}
        """)
        for d in range(4):
            e(f"ds_write_b16 v7, v{VD+d} offset:{2*d*128}\nds_write_b16_d16_hi v7, v{VD+d} offset:{(2*d+1)*128}")
        e(f"""
        s_waitcnt lgkmcnt(0)
        ds_read_b128 v[{VD+4}:{VD+7}], v{VA}
        s_waitcnt lgkmcnt(0)
        buffer_store_dwordx4 v[{VD+4}:{VD+7}], v{VS+8}, s[{SRD_OUT}:{SRD_OUT+3}], s50 offen {"sc1" if o.outx4 == 2 else ""}
        """)
    else:
      for d in range(ND):
        so = "s50" if d < 2 else "s53"
        e(f"buffer_store_short v{VD+d}, v6, s[{SRD_OUT}:{SRD_OUT+3}], {so} offen offset:{(2*d % 4)*1152}")
        e(f"buffer_store_short_d16_hi v{VD+d}, v6, s[{SRD_OUT}:{SRD_OUT+3}], {so} offen offset:{((2*d+1) % 4)*1152}")
    if o.span:
        e(f"""
        s_waitcnt vmcnt(0)
        s_memrealtime s[{S_STAMP+2}:{S_STAMP+3}]
        s_waitcnt lgkmcnt(0)
        s_lshl_b32 s3, s{S_CU}, 6
        s_lshl_b32 s51, s{S_U}, 4
        s_add_u32 s3, s3, s51
        s_add_u32 s3, s3, {WS_ST}
        s_cmp_eq_u32 s57, 1
        s_cselect_b32 s3, {WS_ST + 192*64}, s3
        s_mov_b64 exec, 1
        v_mov_b32 v1, 0
        v_mov_b32 v4, s{S_STAMP}
        v_mov_b32 v5, s{S_STAMP+1}
        v_mov_b32 v6, s{S_STAMP+2}
        v_mov_b32 v7, s{S_STAMP+3}
        buffer_store_dwordx4 v[4:7], v1, s[{SRD_WS}:{SRD_WS+3}], s3 offen sc1
        """)
    if o.stamps:
        e(f"""
        s_cmp_lg_u32 s{S_WAVE}, 6
        s_cbranch_scc1 L_end
        s_waitcnt vmcnt(0)
        s_memtime s[{S_STAMP+10}:{S_STAMP+11}]
        s_memrealtime s[{S_STAMP+12}:{S_STAMP+13}]
        s_waitcnt lgkmcnt(0)
        s_lshl_b32 s3, s{S_CU}, 9
        s_add_u32 s3, s3, {WS_ST + 384}
        s_mov_b64 exec, 1
        v_mov_b32 v1, 0
        """)
        for k in range(0, 16, 4):
            for q in range(4): e(f"v_mov_b32 v{4+q}, s{S_STAMP+k+q}")
            e(f"buffer_store_dwordx4 v[4:7], v1, s[{SRD_WS}:{SRD_WS+3}], s3 offen offset:{k*4}\ns_nop 1")
        e("s_waitcnt vmcnt(0)")
    e("s_endpgm")

def clear_issue(e, o):
    srd(e, SRD_WS, S_WS, WS_SIZE)
    e(f"""
    s_lshl_b32 s3, s52, 7
    s_load_dwordx2 s[{S_TAG}:{S_TAG+1}], s[{S_WS}:{S_WS+1}], s3
    s_mul_i32 s58, s{S_J}, 24
    s_mul_i32 s57, s52, 3
    s_add_u32 s58, s58, s57
    v_lshrrev_b32 v20, 6, v0
    v_and_b32 v21, 63, v0
    v_mul_u32_u24 v20, 3072, v20
    v_lshl_add_u32 v20, v21, 4, v20
    s_mul_i32 s57, s58, 24576
    s_add_u32 s57, s57, {WS_P + 2048}
    v_mov_b32 v24, {SENT:#x}
    v_mov_b32 v25, {SENT:#x}
    v_mov_b32 v26, {SENT:#x}
    v_mov_b32 v27, {SENT:#x}
    buffer_store_dwordx4 v[24:27], v20, s[{SRD_WS}:{SRD_WS+3}], s57 offen sc1
    s_add_u32 s57, s57, 24576
    buffer_store_dwordx4 v[24:27], v20, s[{SRD_WS}:{SRD_WS+3}], s57 offen sc1
    s_add_u32 s57, s57, 24576
    buffer_store_dwordx4 v[24:27], v20, s[{SRD_WS}:{SRD_WS+3}], s57 offen sc1
    """)

def clear_finish(e, o, name):
    e(f"""
    s_waitcnt lgkmcnt(0)
    s_barrier
    s_cmp_lg_u32 s{S_WAVE}, 0
    s_cbranch_scc1 L_clr_{name}
    s_add_u32 s{S_TAG}, s{S_TAG}, {TAGC_LO:#x}
    s_addc_u32 s{S_TAG+1}, s{S_TAG+1}, {TAGC_HI:#x}
    s_lshl_b32 s58, s58, 7
    s_add_u32 s58, s58, {WS_CF}
    v_mov_b32 v22, s{S_TAG}
    v_mov_b32 v23, s{S_TAG+1}
    v_lshlrev_b32 v21, 7, v0
    s_mov_b64 exec, 7
    buffer_store_dwordx2 v[22:23], v21, s[{SRD_WS}:{SRD_WS+3}], s58 offen sc1
    s_mov_b64 exec, -1
    L_clr_{name}:
    """)

def prefetch2(e, o):
    NT = "nt" if o.pf_nt else ""; HNT = "nt" if o.ht_nt else ""
    e("L_prefetch:")
    e(f"""
    s_sub_u32 s52, s3, 24
    s_cmp_ge_u32 s{S_WAVE}, 4
    s_cbranch_scc1 L_pf_h
    v_min_u32 v1, 215, v0
    s_mov_b32 s{S_T0}, 21846
    v_mul_u32_u24 v2, s{S_T0}, v1
    v_lshrrev_b32 v2, 16, v2
    v_mul_u32_u24 v3, 3, v2
    v_sub_u32 v3, v1, v3
    v_mul_u32_u24 v4, 9216, v2
    v_mul_u32_u24 v3, 384, v3
    v_add_u32 v4, v4, v3
    s_mul_i32 s53, s52, {72*9216}
    s_mul_i32 s{S_T1}, s{S_J}, 1152
    s_add_u32 s53, s53, s{S_T1}
    s_add_u32 s53, s53, 128
    s_mov_b32 s{S_T0}, 7282
    v_mul_u32_u24 v5, s{S_T0}, v1
    v_lshrrev_b32 v5, 16, v5
    v_mul_u32_u24 v6, 9, v5
    v_sub_u32 v6, v1, v6
    s_mul_i32 s54, s52, 24
    v_add_u32 v5, s54, v5
    v_lshrrev_b32 v7, 6, v5
    v_and_b32 v5, 63, v5
    v_mul_u32_u24 v7, 192, v7
    v_add_u32 v5, v5, v7
    v_mul_u32_u24 v5, 1152, v5
    v_lshl_add_u32 v5, v6, 7, v5
    s_mul_i32 s55, s{S_J}, {576*1152}
    s_waitcnt lgkmcnt(0)
    """)
    srd(e, SRD_B, S_W1, 576*4608*2)
    srd(e, SRD_C, S_W2, 576*4608*2)
    for k in range(o.pfdelay):
        if o.probe1: e(f"s_sub_u32 s56, s53, 128\nv_and_b32 v9, 7, v1\nv_mul_u32_u24 v9, 9216, v9\nbuffer_load_dword v8, v9, s[{SRD_B}:{SRD_B+3}], s56 offen\ns_waitcnt vmcnt(0)")
        elif k == 0: e(f"s_sub_u32 s56, s53, 128\nbuffer_load_dword v8, v4, s[{SRD_B}:{SRD_B+3}], s56 offen {NT}\ns_waitcnt vmcnt(0)")
        else:
            srd(e, SRD_A, S_X, 512*576*2)
            e(f"s_mul_i32 s56, s52, {576*128}\ns_add_u32 s56, s56, {(k-1)*216*128}\nv_lshlrev_b32 v9, 7, v1\nbuffer_load_dword v8, v9, s[{SRD_A}:{SRD_A+3}], s56 offen\ns_waitcnt vmcnt(0)")
    loads = {"s1": (SRD_B, 4, "s53", 0), "s2": (SRD_B, 4, "s53", 128), "t0": (SRD_C, 5, "s55", 0), "t1": (SRD_C, 5, "s55", 64*1152), "t2": (SRD_C, 5, "s55", 128*1152)}
    rounds = {0: [["s1"], ["s2"], ["t0"], ["t1"], ["t2"]],
              1: [["s1"], ["s2", "t0"], ["t1", "t2"]],
              2: [["s1", "s2"], ["t0", "t1", "t2"]],
              3: [["s1"], ["s2"], ["t0", "t1"], ["t2"]],
              4: [["s1"], ["s2", "t0", "t1", "t2"]]}[o.pfmerge]
    for ri, rnd in enumerate(rounds):
        if o.sent and o.clrpos == 2 and ri == o.clrA: clear_issue(e, o)
        for k, nm in enumerate(rnd):
            sr, vv, sb, add = loads[nm]
            e(f"s_add_u32 s56, {sb}, {add}\nbuffer_load_dword v{8+k}, v{vv}, s[{sr}:{sr+3}], s56 offen {NT}")
        e("s_waitcnt vmcnt(0)")
        if o.sent and o.clrpos == 2 and ri == o.clrA: clear_finish(e, o, "a")
    e(f"""
    s_endpgm
    L_pf_h:
    v_subrev_u32 v1, 256, v0
    v_min_u32 v1, 191, v1
    v_lshrrev_b32 v2, 6, v1
    v_and_b32 v3, 63, v1
    v_mul_u32_u24 v2, 24576, v2
    v_lshl_add_u32 v2, v3, 7, v2
    s_mul_i32 s53, s{S_J}, {24*24576}
    s_mul_i32 s54, s52, {3*24576}
    s_add_u32 s53, s53, s54
    s_add_u32 s53, s53, {WS_H}
    v_and_b32 v4, {7 if o.probe1 else 63}, v3
    v_mul_u32_u24 v4, 9216, v4
    s_mul_i32 s54, s52, {72*9216}
    s_mul_i32 s55, s{S_J}, 1152
    s_add_u32 s54, s54, s55
    s_waitcnt lgkmcnt(0)
    """)
    srd(e, SRD_B, S_W1, 576*4608*2)
    srd(e, SRD_WS, S_WS, WS_SIZE)
    if not o.ptouch:
        e("s_endpgm")
        return
    if o.bx or o.hmode:
        srd(e, SRD_A, S_X, 512*576*2)
        e(f"v_lshlrev_b32 v9, 7, v1\ns_mul_i32 s56, s52, {576*128}")
    if o.hmode:
        e(f"buffer_load_dword v8, v4, s[{SRD_B}:{SRD_B+3}], s54 offen\ns_waitcnt vmcnt(0)")
        for k in range(o.hmode):
            e(f"s_add_u32 s57, s56, {(216 + 192*k)*128}\nbuffer_load_dword v8, v9, s[{SRD_A}:{SRD_A+3}], s57 offen\ns_waitcnt vmcnt(0)")
    for k in range(0 if o.hmode else o.hdelay):
        if o.sent and o.clrpos == 2 and k == o.clrB: clear_issue(e, o)
        if o.bx and k < 3:
            e(f"buffer_load_dword v8, v9, s[{SRD_A}:{SRD_A+3}], s56 offen\ns_waitcnt vmcnt(0)\ns_add_u32 s56, s56, {192*128}")
        else:
            e(f"buffer_load_dword v8, v4, s[{SRD_B}:{SRD_B+3}], s54 offen\ns_waitcnt vmcnt(0)\ns_add_u32 s54, s54, 384")
        if o.sent and o.clrpos == 2 and k == o.clrB: clear_finish(e, o, "b")
    for st in range(3):
        e(f"buffer_load_dword v8, v2, s[{SRD_WS}:{SRD_WS+3}], s53 offen {HNT}\ns_waitcnt vmcnt(0)")
        if st < 2: e(f"s_add_u32 s53, s53, {UNIT}")
    e("s_endpgm")

def prefetch(e, o):
    if o.pfv == 2: return prefetch2(e, o)
    e("L_prefetch:")
    e(f"""
    s_sub_u32 s3, s3, 24
    s_mov_b32 s52, s3
    s_mov_b32 s{S_T0}, 10923
    v_mul_u32_u24 v1, s{S_T0}, v0
    v_lshrrev_b32 v1, 16, v1
    v_mul_u32_u24 v2, 6, v1
    v_sub_u32 v2, v0, v2
    v_lshrrev_b32 v3, 1, v2
    v_and_b32 v2, 1, v2
    v_mul_u32_u24 v3, 384, v3
    v_lshl_add_u32 v3, v2, 7, v3
    v_mul_u32_u24 v1, 9216, v1
    v_add_u32 v1, v1, v3
    s_mul_i32 s{S_T0}, s3, {72*9216}
    s_mul_i32 s{S_T1}, s{S_J}, 1152
    s_add_u32 s{S_T0}, s{S_T0}, s{S_T1}
    s_add_u32 s{S_T0}, s{S_T0}, 128
    s_mul_i32 s{S_T1}, s{S_J}, {576*1152}
    s_mul_i32 s3, s3, {72*1152}
    s_add_u32 s{S_T1}, s{S_T1}, s3
    v_lshlrev_b32 v4, 7, v0
    v_add_u32 v5, 65536, v4
    v_min_u32 v5, {647*128}, v5
    v_cmp_gt_u32 vcc, 432, v0
    s_waitcnt lgkmcnt(0)
    """)
    srd(e, SRD_B, S_W1, 576*4608*2)
    srd(e, SRD_C, S_W2, 576*4608*2)
    e(f"""
    v_mov_b32 v6, 0
    v_cndmask_b32 v1, v6, v1, vcc
    """)
    if o.sent and o.clrpos == 0:
        srd(e, SRD_WS, S_WS, WS_SIZE)
        clear_inboxes(e, o)
    if o.pfdelay:
        e(f"""
        v_min_u32 v15, {o.pfdelay * 8 - 1}, v0
        v_mul_u32_u24 v15, 9216, v15
        s_sub_u32 s53, s{S_T0}, 128
        buffer_load_dword v16, v15, s[{SRD_B}:{SRD_B+3}], s53 offen
        s_waitcnt vmcnt(0)
        """)
    if o.pfsplit:
        e(f"""
        v_cmp_eq_u32 vcc, 0, v2
        s_nop 1
        s_and_saveexec_b64 s[54:55], vcc
        buffer_load_dword v8, v1, s[{SRD_B}:{SRD_B+3}], s{S_T0} offen
        s_waitcnt vmcnt(0)
        s_andn2_b64 exec, s[54:55], exec
        buffer_load_dword v8, v1, s[{SRD_B}:{SRD_B+3}], s{S_T0} offen
        s_mov_b64 exec, s[54:55]
        """)
    else:
        e(f"buffer_load_dword v8, v1, s[{SRD_B}:{SRD_B+3}], s{S_T0} offen")
    if o.ptouch:
        srd(e, SRD_WS, S_WS, WS_SIZE)
        e(f"""
        s_mul_i32 s50, s{S_J}, {24*24576}
        s_mul_i32 s51, s52, {576*128}
        s_add_u32 s50, s50, s51
        s_add_u32 s50, s50, {WS_H}
        v_min_u32 v11, 63, v0
        v_lshlrev_b32 v11, 7, v11
        v_add_u32 v11, 65536, v11
        """)
    if o.ptouch == 3:
        e(f"""
        v_lshrrev_b32 v12, 6, v0
        v_min_u32 v12, 2, v12
        v_mul_u32_u24 v12, 24576, v12
        v_and_b32 v13, 63, v0
        v_lshl_add_u32 v14, v13, 7, v12
        v_add_u32 v14, 16384, v14
        """)
    e("s_waitcnt vmcnt(0)")
    if o.ptouch == 2:
        e(f"buffer_load_dword v12, v4, s[{SRD_WS}:{SRD_WS+3}], s50 offen\nbuffer_load_dword v13, v11, s[{SRD_WS}:{SRD_WS+3}], s50 offen")
    e(f"""
    buffer_load_dword v9, v4, s[{SRD_C}:{SRD_C+3}], s{S_T1} offen
    buffer_load_dword v10, v5, s[{SRD_C}:{SRD_C+3}], s{S_T1} offen
    s_waitcnt vmcnt(0)
    """)
    if o.ptouch == 3:
        e(f"buffer_load_dword v12, v14, s[{SRD_WS}:{SRD_WS+3}], s50 offen\ns_waitcnt vmcnt(0)")
    if o.ptouch == 1:
        e(f"buffer_load_dword v12, v4, s[{SRD_WS}:{SRD_WS+3}], s50 offen\nbuffer_load_dword v13, v11, s[{SRD_WS}:{SRD_WS+3}], s50 offen\ns_waitcnt vmcnt(0)")
    if o.sent and o.clrpos == 1: clear_inboxes(e, o)
    e("s_endpgm")

def clear_inboxes(e, o):
    e(f"""
    s_lshl_b32 s3, s52, 7
    s_load_dwordx2 s[{S_TAG}:{S_TAG+1}], s[{S_WS}:{S_WS+1}], s3
    s_mul_i32 s56, s{S_J}, 24
    s_mul_i32 s57, s52, 3
    s_add_u32 s56, s56, s57
    v_lshrrev_b32 v20, 6, v0
    v_and_b32 v21, 63, v0
    v_mul_u32_u24 v20, 3072, v20
    v_lshl_add_u32 v20, v21, 4, v20
    s_mul_i32 s57, s56, 24576
    s_add_u32 s57, s57, {WS_P + 2048}
    v_mov_b32 v24, {SENT:#x}
    v_mov_b32 v25, {SENT:#x}
    v_mov_b32 v26, {SENT:#x}
    v_mov_b32 v27, {SENT:#x}
    buffer_store_dwordx4 v[24:27], v20, s[{SRD_WS}:{SRD_WS+3}], s57 offen sc1
    s_add_u32 s57, s57, 24576
    buffer_store_dwordx4 v[24:27], v20, s[{SRD_WS}:{SRD_WS+3}], s57 offen sc1
    s_add_u32 s57, s57, 24576
    buffer_store_dwordx4 v[24:27], v20, s[{SRD_WS}:{SRD_WS+3}], s57 offen sc1
    s_waitcnt vmcnt(0) lgkmcnt(0)
    s_barrier
    s_add_u32 s{S_TAG}, s{S_TAG}, {TAGC_LO:#x}
    s_addc_u32 s{S_TAG+1}, s{S_TAG+1}, {TAGC_HI:#x}
    s_lshl_b32 s56, s56, 7
    s_add_u32 s56, s56, {WS_CF}
    v_mov_b32 v22, s{S_TAG}
    v_mov_b32 v23, s{S_TAG+1}
    v_lshlrev_b32 v21, 7, v0
    v_cmp_gt_u32 vcc, 3, v0
    s_nop 1
    s_and_saveexec_b64 s[54:55], vcc
    s_cbranch_execz L_clr_done
    buffer_store_dwordx2 v[22:23], v21, s[{SRD_WS}:{SRD_WS+3}], s56 offen sc1
    L_clr_done:
    s_mov_b64 exec, s[54:55]
    """)

def build(o):
    if o.order: P2[:] = P2B
    FS[0] = o.pfs
    _uid[0] = 0; OUTLINE.clear(); NOST[0] = o.x_nost; NOST[1] = o.x_nodsw; NOST[2] = o.hsc1; NOST[3] = o.hnt
    e = E(); prologue(e, o)
    parts = []
    ls = E(); loader_start(ls, o)
    for lw in range(3):
        x = E(); loader(x, o, lw); parts.append(("loader%d" % lw, x))
    x = E(); control(x, o); parts.append(("control", x))
    x = E(); prefetch(x, o); parts.append(("prefetch", x))
    x = E(); compute(x, o); parts.append(("compute", x))
    eg = E(); gather(eg, o)
    for k, v in parts:
        pre = e.text() + "\n" + (ls.text() + "\n" if k.startswith("loader") else "")
        pr = hazard.check(pre + v.text() + "\n" + eg.text())
        if pr: raise SystemExit(f"hazards in {k}")
    body = "\n".join([e.text(), ls.text()] + [v.text() for k, v in parts] + [eg.text(), "\n".join(OUTLINE), "L_end:", "s_endpgm"])
    nsgpr = 100 if o.stamps else 72
    hdr = f"""; Kernarg layout (48 bytes, pointers only, base s[0:1]):
;
; out = silu(x @ w1) @ w2   with M = 512 rows, D = 576, F = 4608, in ONE launch.
;
;   phase 1: h[mt rows, slice j, group g] = silu(x @ w1), three 64-wide sub-tiles, x fragments resident in registers
;   waves 0-3: MFMA (32x32x16 bf16, weights read with ds_read_b64_tr_b16), waves 4-6: LDS-DMA loaders (8 KB units,
;   11-slot ring) and final reduction, wave 7: control (hand-off flags).  One s_barrier per step of three units.
; Hand-off words carry a 64-bit tag = epoch word of the row tile (read at entry, advanced once per launch) + constant, so
; that flags left by earlier launches or any other workspace content never match.  Data and flags are write-through (sc1)
; stores read with sc1 loads; when the three h partners report the same XCC id (they share one L2) the h tile and its
; flags use plain stores instead.  Every placement of workgroups on XCDs gives the same result.
; @launch grid=({NWG + o.npf},1,1) block=(512,1,1) lds={LDS_BYTES}
.amdgcn_target "amdgcn-amd-amdhsa--gfx950"
.text
.globl {KNAME}
.p2align 8
.type {KNAME},@function
{KNAME}:
"""
    tail = f"""
.section .rodata,"a"
.p2align 6
.amdhsa_kernel {KNAME}
  .amdhsa_next_free_vgpr 256
  .amdhsa_next_free_sgpr {nsgpr}
  .amdhsa_accum_offset 256
  .amdhsa_group_segment_fixed_size 0
  .amdhsa_kernarg_size 48
  .amdhsa_user_sgpr_count 2
  .amdhsa_user_sgpr_kernarg_segment_ptr 1
  .amdhsa_system_sgpr_workgroup_id_x 1
.end_amdhsa_kernel
"""
    return hdr + body + tail

if __name__ == "__main__":
    o = Opt()
    out = sys.argv[1]
    for a in sys.argv[2:]:
        k, v = a.split("=")
        setattr(o, k, bool(int(v)) if isinstance(getattr(Opt, k), bool) else int(v))
    open(out, "w").write(build(o))
    print("wrote", out)
```
